```python
import torch

def _softmax(x, axis=-1):
    return torch.softmax(x, dim=axis)
def _gelu(x):
    return torch.nn.functional.gelu(x, approximate="tanh")
def _silu(x):
    return torch.nn.functional.silu(x)
def _sigmoid(x):
    return torch.sigmoid(x)
def _layernorm(x, axis=-1, eps=1e-5):
    m = x.mean(dim=axis, keepdim=True)
    v = x.var(dim=axis, keepdim=True, unbiased=False)
    return (x - m) / torch.sqrt(v + eps)
def _scatter_add(tgt, idx, src, axis=0):
    return tgt.clone().index_add_(axis, idx, src)
def _segment_sum(src, seg, n):
    out = torch.zeros((n,) + src.shape[1:], dtype=src.dtype)
    return out.index_add_(0, seg, src)
def _pad(x, pw):
    flat = tuple(v for pair in reversed(pw) for v in pair)
    return torch.nn.functional.pad(x, flat)

kernel_name = 'sequential_preLN__grouped_kv_mqa__glu_gated_bilinear__prompt'

def setup_inputs():

    _w = (lambda a: (lambda t: t.to(torch.bfloat16) if t.is_floating_point() else t)(torch.as_tensor(a)))
    def _A_setup():
        B, S, D, H = 1, 2048, 576, 32
        Dh = D // H
        return {
            "x": _w((lambda *s: torch.randn(*s, dtype=torch.bfloat16) * 0.05)(B, S, D)),
            "wq": _w((lambda *s: torch.randn(*s, dtype=torch.bfloat16) * 0.05)(D, H * Dh)),
            "wk": _w((lambda *s: torch.randn(*s, dtype=torch.bfloat16) * 0.05)(D, Dh)),
            "wv": _w((lambda *s: torch.randn(*s, dtype=torch.bfloat16) * 0.05)(D, Dh)),
            "wo": _w((lambda *s: torch.randn(*s, dtype=torch.bfloat16) * 0.05)(H * Dh, D)),
        }
    _A_in = _A_setup()

    def _B_setup():
        B, S, D, F = 1, 2048, 576, 4608
        return {
            "x": _w((lambda *s: torch.randn(*s, dtype=torch.bfloat16) * 0.05)(B, S, D)),
            "w_gate": _w((lambda *s: torch.randn(*s, dtype=torch.bfloat16) * 0.4)(D, F) * (D ** -0.5)),
            "w_up": _w((lambda *s: torch.randn(*s, dtype=torch.bfloat16) * 0.4)(D, F) * (D ** -0.5)),
            "w_down": _w((lambda *s: torch.randn(*s, dtype=torch.bfloat16) * 0.4)(F, D) * (F ** -0.5)),
        }
    _B_in = _B_setup()

    return {
        "A_x": _A_in["x"],
        "A_wq": _A_in["wq"],
        "A_wk": _A_in["wk"],
        "A_wv": _A_in["wv"],
        "A_wo": _A_in["wo"],
        "B_x": _B_in["x"],
        "B_w_gate": _B_in["w_gate"],
        "B_w_up": _B_in["w_up"],
        "B_w_down": _B_in["w_down"],
    }

def reference(A_x, A_wq, A_wk, A_wv, A_wo, B_x, B_w_gate, B_w_up, B_w_down):
    def _A_ref(x, wq, wk, wv, wo):
        B, S, D = x.shape
        H = 32
        Dh = D // H
        q = (lambda x, *d: x.permute(*d))((x @ wq).reshape(B, S, H, Dh), 0, 2, 1, 3)
        k = x @ wk
        v = x @ wv
        scores = torch.einsum("bhqd,bkd->bhqk", q, k) * (Dh ** -0.5)
        p = _softmax(scores, axis=-1)
        o = torch.einsum("bhqk,bkd->bhqd", p, v)
        return (lambda x, *d: x.permute(*d))(o, 0, 2, 1, 3).reshape(B, S, H * Dh) @ wo

    def _B_ref(x, w_gate, w_up, w_down):
        g = torch.einsum("bsd,df->bsf", x, w_gate)
        u = torch.einsum("bsd,df->bsf", x, w_up)
        h = g * u
        return torch.einsum("bsf,fd->bsd", h, w_down)

    x = A_x
    h = x + _A_ref(_layernorm(x, axis=-1), A_wq, A_wk, A_wv, A_wo)
    h2 = h + _B_ref(_layernorm(h, axis=-1), B_w_gate, B_w_up, B_w_down)
    return h2
```

```python
import re

REG_RE = re.compile(r'^([vsa])(\d+)$|^([vsa])\[(\d+):(\d+)\]$')

def parse_reg(tok):
    tok = tok.strip()
    neg = tok.startswith('-')
    if neg: tok = tok[1:]
    m = re.match(r'^abs\((.*)\)$', tok)
    if m: tok = m.group(1)
    if tok.startswith('|') and tok.endswith('|'): tok = tok[1:-1]
    m = REG_RE.match(tok)
    if m:
        if m.group(1):
            return {(m.group(1), int(m.group(2)))}
        return {(m.group(3), i) for i in range(int(m.group(4)), int(m.group(5)) + 1)}
    if tok == 'vcc': return {('s', 'vcc_lo'), ('s', 'vcc_hi')}
    if tok in ('vcc_lo', 'vcc_hi'): return {('s', tok)}
    if tok == 'exec': return {('s', 'exec_lo'), ('s', 'exec_hi')}
    if tok in ('exec_lo', 'exec_hi'): return {('s', tok)}
    if tok == 'm0': return {('s', 'm0')}
    if tok == 'scc': return {('s', 'scc')}
    return set()

def split_ops(s):
    ops = []; depth = 0; cur = ''
    for ch in s:
        if ch in '[(': depth += 1
        if ch in '])': depth -= 1
        if ch == ',' and depth == 0:
            ops.append(cur.strip()); cur = ''
        else:
            cur += ch
    if cur.strip(): ops.append(cur.strip())
    return ops

TRANS = ('v_exp_f32', 'v_log_f32', 'v_rcp_f32', 'v_rsq_f32', 'v_sqrt_f32', 'v_sin_f32', 'v_cos_f32', 'v_exp_f16', 'v_rcp_iflag_f32')
VCC = {('s', 'vcc_lo'), ('s', 'vcc_hi')}
EXEC = {('s', 'exec_lo'), ('s', 'exec_hi')}
M0 = {('s', 'm0')}

class Ins:
    __slots__ = ('text', 'mn', 'kind', 'defs', 'uses', 'tag', 'opt', 'passes', 'srcC', 'srcAB', 'is_lds_dma', 'wide_store_data',
                 'nops', 'pre', 'sgpr_uses_vmem', 'lanesel', 'mask_uses', 'smem', 'meta')
    def __init__(self, text, tag=None):
        self.text = text; self.tag = tag; self.opt = None
        self.defs = set(); self.uses = set(); self.passes = 0; self.srcC = set(); self.srcAB = set()
        self.is_lds_dma = False; self.wide_store_data = set(); self.pre = []
        self.sgpr_uses_vmem = set(); self.lanesel = set(); self.mask_uses = set(); self.smem = False
        self.meta = None
        self.parse()

    def parse(self):
        t = self.text.split(';')[0].strip()
        if not t or t.endswith(':') or t.startswith('.'):
            self.mn = ''; self.kind = 'none'; return
        parts = t.split(None, 1)
        mn = parts[0]; rest = parts[1] if len(parts) > 1 else ''
        self.mn = mn
        ops = split_ops(rest)
        mods = []
        if ops:
            last = ops[-1].split()
            if len(last) > 1:
                ops[-1] = last[0]; mods = last[1:]
        R = [parse_reg(o) for o in ops]
        allmods = ' '.join(mods)
        base = re.sub(r'_(e32|e64|sdwa|dpp)$', '', mn)
        if mn.startswith('v_mfma'):
            self.kind = 'mfma'
            self.defs = set(R[0]); self.srcAB = R[1] | R[2]; self.srcC = set(R[3]) if len(R) > 3 else set()
            self.uses = self.srcAB | self.srcC | EXEC
            if '32x32x16' in mn or '32x32x8' in mn: self.passes = 8
            elif '16x16x32' in mn or '16x16x16' in mn: self.passes = 4
            else: raise ValueError('unknown mfma ' + mn)
        elif mn.startswith('v_'):
            self.kind = 'valu'
            if base in TRANS: self.kind = 'trans'
            if base.startswith('v_dot'): self.kind = 'dot'
            if base.startswith('v_cmp'):
                self.defs = set(R[0]); self.uses = set().union(*R[1:]) | EXEC
                if base.startswith('v_cmpx'): self.defs |= EXEC
            elif base in ('v_readfirstlane_b32',):
                self.defs = set(R[0]); self.uses = R[1] | EXEC; self.kind = 'readlane'
            elif base == 'v_readlane_b32':
                self.defs = set(R[0]); self.uses = R[1] | R[2]; self.lanesel = set(R[2]); self.kind = 'readlane'
            elif base == 'v_writelane_b32':
                self.defs = set(R[0]); self.uses = R[0] | R[1] | R[2]; self.lanesel = set(R[2])
            elif base.startswith('v_permlane16_swap') or base.startswith('v_permlane32_swap') or base == 'v_swap_b32':
                self.defs = R[0] | R[1]; self.uses = R[0] | R[1] | EXEC
                if base.startswith('v_permlane'): self.kind = 'permlane'
            elif base in ('v_add_co_u32', 'v_sub_co_u32', 'v_subrev_co_u32'):
                self.defs = R[0] | R[1]; self.uses = set().union(*R[2:]) | EXEC
            elif base in ('v_addc_co_u32', 'v_subb_co_u32', 'v_subbrev_co_u32'):
                self.defs = R[0] | R[1]; self.uses = set().union(*R[2:]) | EXEC
                self.mask_uses = set(R[4])
            elif base == 'v_cndmask_b32':
                self.defs = set(R[0]); self.uses = set().union(*R[1:]) | EXEC
                self.mask_uses = set(R[3]) if len(R) > 3 else set(VCC)
                if len(R) <= 3: self.uses |= VCC
            else:
                self.defs = set(R[0]); self.uses = set().union(*R[1:]) | EXEC if len(R) > 1 else set(EXEC)
                if base in ('v_fmac_f32', 'v_dot2c_f32_bf16', 'v_dot2c_f32_f16', 'v_fmamk_f32_acc') or 'UNUSED_PRESERVE' in allmods:
                    self.uses |= R[0]
            if 'dpp' in mn or 'row_' in allmods or 'quad_perm' in allmods: self.meta = 'dpp'
        elif mn.startswith('ds_'):
            self.kind = 'ds'
            if mn.startswith('ds_read') or mn.startswith('ds_bpermute') or mn.startswith('ds_permute') or mn.startswith('ds_swizzle'):
                self.defs = set(R[0]); self.uses = set().union(*R[1:]) | EXEC
            elif mn.startswith('ds_write'):
                self.uses = set().union(*R) | EXEC
            elif mn.startswith('ds_add_rtn') or '_rtn_' in mn:
                self.defs = set(R[0]); self.uses = set().union(*R[1:]) | EXEC
            else:
                self.uses = set().union(*R) | EXEC
        elif mn.startswith('buffer_') or mn.startswith('global_'):
            self.kind = 'vmem'
            lds = (' lds' in (' ' + allmods)) or mn.startswith('global_load_lds')
            if mn in ('buffer_wbl2', 'buffer_inv'):
                pass
            elif lds:
                self.is_lds_dma = True
                self.uses = set().union(*R) | EXEC | M0
            elif '_load' in mn:
                self.defs = set(R[0]); self.uses = set().union(*R[1:]) | EXEC
            elif '_store' in mn:
                self.uses = set().union(*R) | EXEC
                data = R[0] if mn.startswith('buffer_') else R[1]
                if 'x4' in mn or 'x3' in mn: self.wide_store_data = set(data)
            elif '_atomic' in mn:
                self.uses = set().union(*R) | EXEC
                if 'sc0' in allmods:
                    self.defs = set(R[0])
                    if mn.startswith('global_'): self.uses = set().union(*R[1:]) | EXEC
            self.sgpr_uses_vmem = {r for r in self.uses if r[0] == 's' and r not in EXEC and r not in M0}
        elif mn.startswith('s_'):
            self.kind = 'salu'
            if mn.startswith('s_load') or mn.startswith('s_buffer_load') or mn in ('s_memtime', 's_memrealtime'):
                self.kind = 'smem'; self.smem = True
                self.defs = set(R[0]); self.uses = set().union(*R[1:]) if len(R) > 1 else set()
            elif mn in ('s_nop', 's_waitcnt', 's_barrier', 's_endpgm', 's_branch', 's_setprio', 's_sleep') or mn.startswith('s_cbranch'):
                self.kind = 'ctl'
                if mn == 's_cbranch_vccz' or mn == 's_cbranch_vccnz': self.uses = set(VCC)
                if mn in ('s_cbranch_execz', 's_cbranch_execnz'): self.uses = set(EXEC)
            elif mn.startswith('s_cmp') or mn.startswith('s_bitcmp'):
                self.uses = set().union(*R)
            elif 'saveexec' in mn:
                self.defs = R[0] | EXEC; self.uses = R[1] | EXEC
            elif mn == 's_getreg_b32':
                self.defs = set(R[0])
            elif mn == 's_setreg_b32' or mn == 's_setreg_imm32_b32':
                self.uses = set().union(*R)
            else:
                self.defs = set(R[0]); self.uses = set().union(*R[1:]) if len(R) > 1 else set()
                if mn in ('s_addk_i32', 's_mulk_i32', 's_cmov_b32'): self.uses |= R[0]
        else:
            raise ValueError('cannot parse: ' + self.text)

    def states(self):
        if self.kind == 'none': return 0
        if self.mn == 's_nop':
            return int(self.text.split()[1], 0) + 1
        return 1


class Asm:
    def __init__(self):
        self.items = []
        self.cur_opt = None
        self.nopt = 0
        self.raw_tail = []

    def __call__(self, text, tag=None):
        for ln in text.split('\n'):
            ln = ln.strip()
            if not ln: continue
            i = Ins(ln, tag)
            i.opt = self.cur_opt
            self.items.append(i)
    def label(self, l):
        i = Ins(l + ':'); i.opt = self.cur_opt; self.items.append(i)
    def comment(self, c):
        i = Ins('; ' + c); self.items.append(i)
    def directive(self, d):
        i = Ins(d); self.items.append(i)
    def loop_begin(self, label):
        self.items.append(('loop_begin', label)); self.label(label)
    def loop_end(self, branch):
        self(branch); self.items.append(('loop_end',))
    def opt_begin(self):
        assert self.cur_opt is None
        self.nopt += 1; self.cur_opt = self.nopt
    def opt_end(self):
        self.cur_opt = None
    def wait_vm(self, tag):
        self.items.append(('wait_vm', tag, self.cur_opt))
    def wait_lgkm(self, tag):
        self.items.append(('wait_lgkm', tag, self.cur_opt))
    def drain(self, vm=True, lgkm=True):
        s = 's_waitcnt' + (' vmcnt(0)' if vm else '') + (' lgkmcnt(0)' if lgkm else '')
        self(s)

    def _expand(self):
        trace = []
        stack = []
        i = 0
        items = self.items
        def rec(lo, hi):
            out = []
            j = lo
            while j < hi:
                it = items[j]
                if isinstance(it, tuple) and it[0] == 'loop_begin':
                    depth = 1; k = j + 1
                    while depth:
                        if isinstance(items[k], tuple):
                            if items[k][0] == 'loop_begin': depth += 1
                            elif items[k][0] == 'loop_end': depth -= 1
                        k += 1
                    body = rec(j + 1, k - 1)
                    out += body * 3
                    j = k
                else:
                    out.append(j); j += 1
            return out
        return rec(0, len(items))

    def _scenarios(self):
        import itertools
        items = self.items
        full = self._expand()
        opts = sorted({(it.opt if isinstance(it, Ins) else (it[2] if it[0] in ('wait_vm', 'wait_lgkm') else None)) for it in items} - {None})
        assert len(opts) <= 8
        for combo in itertools.product((True, False), repeat=len(opts)):
            taken = {o for o, t in zip(opts, combo) if t}
            tr = []
            for pos in full:
                it = items[pos]
                o = it.opt if isinstance(it, Ins) else (it[2] if it[0] in ('wait_vm', 'wait_lgkm') else None)
                if o is not None and o not in taken: continue
                tr.append(pos)
                if isinstance(it, Ins) and it.mn == 's_endpgm': break
            yield tr

    def _waitcnt_pass(self):
        items = self.items
        need_vm = {}; need_lg = {}
        def req(d, pos, n):
            d[pos] = min(d.get(pos, 1 << 30), n)
        for trace in self._scenarios():
            vmq = []; lgq = []
            for pos in trace:
                it = items[pos]
                if isinstance(it, tuple):
                    if it[0] == 'wait_vm':
                        idxs = [k for k, e in enumerate(vmq) if e['tag'] == it[1]]
                        if idxs:
                            k = idxs[-1]; req(need_vm, pos, len(vmq) - 1 - k)
                            del vmq[:k + 1]
                    elif it[0] == 'wait_lgkm':
                        idxs = [k for k, e in enumerate(lgq) if e['tag'] == it[1]]
                        if idxs:
                            k = idxs[-1]
                            n = 0 if any(e['smem'] for e in lgq) else len(lgq) - 1 - k
                            req(need_lg, pos, n)
                            if n == 0: lgq.clear()
                            else: del lgq[:k + 1]
                    continue
                if it.kind == 'none': continue
                if it.mn == 's_waitcnt':
                    m = re.search(r'vmcnt\((\d+)\)', it.text)
                    if m:
                        n = int(m.group(1))
                        if len(vmq) > n: vmq[:] = vmq[len(vmq) - n:] if n else []
                    m = re.search(r'lgkmcnt\((\d+)\)', it.text)
                    if m:
                        n = int(m.group(1))
                        if n == 0: lgq.clear()
                        elif not any(e['smem'] for e in lgq) and len(lgq) > n: lgq[:] = lgq[len(lgq) - n:]
                    continue
                touched = it.uses | it.defs
                k = -1
                for idx, e in enumerate(vmq):
                    if e['defs'] & touched: k = idx
                if k >= 0:
                    req(need_vm, pos, len(vmq) - 1 - k)
                    del vmq[:k + 1]
                k = -1
                for idx, e in enumerate(lgq):
                    if e['defs'] & touched: k = idx
                if k >= 0:
                    n = 0 if any(e['smem'] for e in lgq) else len(lgq) - 1 - k
                    req(need_lg, pos, n)
                    if n == 0: lgq.clear()
                    else: del lgq[:k + 1]
                if it.kind == 'vmem':
                    vmq.append(dict(defs=set(it.defs), tag=it.tag, smem=False))
                elif it.kind == 'ds':
                    lgq.append(dict(defs=set(it.defs), tag=it.tag, smem=False))
                elif it.kind == 'smem':
                    lgq.append(dict(defs=set(it.defs), tag=it.tag, smem=True))
        new = []
        for pos, it in enumerate(items):
            v = need_vm.get(pos); l = need_lg.get(pos)
            if v is not None or l is not None:
                s = 's_waitcnt'
                if v is not None:
                    s += ' vmcnt(%d)' % min(v, 63)
                if l is not None:
                    s += ' lgkmcnt(%d)' % min(l, 15)
                w = Ins(s)
                w.opt = it.opt if isinstance(it, Ins) else it[2]
                new.append(w)
            if isinstance(it, tuple) and it[0] in ('wait_vm', 'wait_lgkm'):
                continue
            new.append(it)
        self.items = new

    def _hazard_pass(self):
        rounds = 0
        while True:
            rounds += 1
            assert rounds < 50
            items = self.items
            add = {}
            for tr in self._scenarios():
                trace = [p for p in tr if isinstance(items[p], Ins) and items[p].kind != 'none']
                for ti, pos in enumerate(trace):
                    it = items[pos]
                    need = 0
                    dist = 0
                    tj = ti - 1
                    while tj >= 0 and dist < 20:
                        pr = items[trace[tj]]
                        req = self._hazard(pr, it)
                        if req > dist:
                            need = max(need, req - dist)
                        dist += pr.states() + add.get(trace[tj], 0)
                        tj -= 1
                    if need > add.get(pos, 0):
                        add[pos] = need
            if not add: break
            new = []
            for pos, it in enumerate(items):
                if pos in add:
                    n = add[pos]
                    while n > 0:
                        k = min(n, 16)
                        w = Ins('s_nop %d' % (k - 1)); w.opt = it.opt
                        new.append(w); n -= k
                new.append(it)
            self.items = new

    @staticmethod
    def _hazard(p, c):
        r = 0
        pv = {x for x in p.defs if x[0] in 'va'}
        ps = {x for x in p.defs if x[0] == 's'}
        p_valu = p.kind in ('valu', 'trans', 'dot', 'readlane', 'permlane')
        c_valu = c.kind in ('valu', 'trans', 'dot', 'readlane', 'permlane')
        if p_valu:
            if c.kind == 'mfma' and pv & c.uses: r = max(r, 2)
            if p.kind == 'trans' and c_valu and c.kind != 'trans' and pv & c.uses: r = max(r, 1)
            if p.kind == 'trans' and c.kind == 'trans' and False: pass
            if p.kind == 'dot' and (pv & (c.uses | c.defs)) and c.kind in ('valu', 'trans', 'dot', 'readlane', 'permlane', 'mfma', 'vmem', 'ds'):
                if not (c.mn == p.mn and not (pv & (c.uses - c.defs))):
                    r = max(r, 3)
            if c.kind == 'readlane' and pv & c.uses: r = max(r, 1)
            if c.kind == 'permlane' and pv & c.uses: r = max(r, 2)
            if c.meta == 'dpp' and pv & c.uses: r = max(r, 2)
            if ps:
                if c_valu and (ps & (c.uses - EXEC)): r = max(r, 2)
                if c.lanesel & ps: r = max(r, 4)
                if c.kind == 'vmem' and ps & c.sgpr_uses_vmem: r = max(r, 5)
                if (ps & EXEC) and c.kind == 'mfma': r = max(r, 4)
        if p.kind == 'mfma':
            big = {4: 8, 8: 12}[p.passes]
            if c.kind == 'mfma':
                if p.defs & c.srcAB: r = max(r, big)
                if p.defs & c.srcC:
                    if not (p.defs == c.srcC and p.passes == c.passes):
                        r = max(r, {4: 6, 8: 10}[p.passes])
                if p.defs & c.defs and not (p.defs & c.srcC):
                    if p.passes != c.passes: r = max(r, {4: 6, 8: 10}[p.passes])
            elif c.kind in ('valu', 'trans', 'dot', 'readlane', 'permlane', 'vmem', 'ds'):
                if p.defs & (c.uses | c.defs): r = max(r, big)
            if c_valu and (p.srcC & c.defs): r = max(r, {4: 3, 8: 7}[p.passes])
        if p.kind == 'salu' and (p.defs & M0) and c.is_lds_dma: r = max(r, 1)
        if p.wide_store_data and (p.wide_store_data & c.defs):
            r = max(r, 2 if c_valu else 1)
        return r

    def finish(self):
        self._waitcnt_pass()
        self._hazard_pass()
        out = []
        for it in self.items:
            if isinstance(it, tuple): continue
            t = it.text
            if t.endswith(':') or t.startswith('.'): out.append(t)
            else: out.append('  ' + t)
        return '\n'.join(out) + '\n'


def vr(a, n=1):
    return 'v%d' % a if n == 1 else 'v[%d:%d]' % (a, a + n - 1)
def sr(a, n=1):
    return 's%d' % a if n == 1 else 's[%d:%d]' % (a, a + n - 1)

def kernel_header(name):
    return '.globl %s\n.p2align 8\n.type %s,@function\n%s:\n' % (name, name, name)

def kernel_desc(name, vgpr=256, sgpr=102):
    acc = (vgpr + 3) // 4 * 4
    return ('.p2align 6\n.amdhsa_kernel %s\n  .amdhsa_next_free_vgpr %d\n  .amdhsa_next_free_sgpr %d\n  .amdhsa_accum_offset %d\n'
            '  .amdhsa_group_segment_fixed_size 0\n  .amdhsa_kernarg_size 96\n  .amdhsa_user_sgpr_count 2\n'
            '  .amdhsa_user_sgpr_kernarg_segment_ptr 1\n  .amdhsa_system_sgpr_workgroup_id_x 1\n'
            '.end_amdhsa_kernel\n') % (name, vgpr, sgpr, acc)
```

```python
import struct, math
def f32(x):
    return '0x%08x' % struct.unpack('<I', struct.pack('<f', x))[0]

S, D, H, DH, F = 2048, 576, 32, 18, 4608
WS_Q    = 0x0000000
WS_KV   = 0x0240000
KV_CHUNK = 40960
KV_VOFF = 18432
WS_O    = 0x0280000
WS_H    = 0x04C0000
WS_ST   = 0x0700000
WS_HB   = 0x0800000
WS_PART = 0x1A00000
WS_FLAG = 0x2C00000
WS_SIZE = 268435456
QSCALE = (DH ** -0.5) * math.log2(math.e)
EPS = 1e-5

def srd(a, lo, base_lo, base_hi, nbytes):
    a('s_mov_b32 s%d, s%d' % (lo, base_lo))
    a('s_mov_b32 s%d, s%d' % (lo + 1, base_hi))
    a('s_mov_b32 s%d, 0x%x' % (lo + 2, nbytes))
    a('s_mov_b32 s%d, 0x00020000' % (lo + 3))

def srd_off(a, lo, base_lo, base_hi, off, nbytes):
    a('s_add_u32 s%d, s%d, 0x%x' % (lo, base_lo, off))
    a('s_addc_u32 s%d, s%d, 0' % (lo + 1, base_hi))
    a('s_mov_b32 s%d, 0x%x' % (lo + 2, nbytes))
    a('s_mov_b32 s%d, 0x00020000' % (lo + 3))

def mfma16(d, a_, b_, c=None):
    cs = 'v[%d:%d]' % (d, d + 3) if c is None else (c if isinstance(c, str) else 'v[%d:%d]' % (c, c + 3))
    return 'v_mfma_f32_16x16x32_bf16 v[%d:%d], v[%d:%d], v[%d:%d], %s' % (d, d + 3, a_, a_ + 3, b_, b_ + 3, cs)
def mfma32(d, a_, b_, c=None):
    cs = 'v[%d:%d]' % (d, d + 15) if c is None else (c if isinstance(c, str) else 'v[%d:%d]' % (c, c + 15))
    return 'v_mfma_f32_32x32x16_bf16 v[%d:%d], v[%d:%d], v[%d:%d], %s' % (d, d + 15, a_, a_ + 3, b_, b_ + 3, cs)
def mfma32k8(d, a_, b_, c=None):
    cs = 'v[%d:%d]' % (d, d + 15) if c is None else (c if isinstance(c, str) else 'v[%d:%d]' % (c, c + 15))
    return 'v_mfma_f32_32x32x8_bf16 v[%d:%d], v[%d:%d], v[%d:%d], %s' % (d, d + 15, a_, a_ + 1, b_, b_ + 1, cs)

def xlane_sum(a, v, tmp):
    a('v_mov_b32 v%d, v%d' % (tmp, v))
    a('v_permlane16_swap_b32 v%d, v%d' % (v, tmp))
    a('v_add_f32 v%d, v%d, v%d' % (v, v, tmp))
    a('v_mov_b32 v%d, v%d' % (tmp, v))
    a('v_permlane32_swap_b32 v%d, v%d' % (v, tmp))
    a('v_add_f32 v%d, v%d, v%d' % (v, v, tmp))
```

```python
from asmgen import *
from common import *
LDS_F1 = 3 * 49152
X = 16
ACC = {'a': 160, 'b': 176}
FR = 192
NB = 8
vE = 224
vRA, vRB_, vDG, vDU, vHO = 240, 241, 242, 243, 244
vLANE, vT = 1, 2
CARRY = 3

def dma_instrs(slot, sK):
    out = []
    for m in range(3):
        for mat in range(2):
            out.append(['s_add_u32 m0, s23, %d' % (slot * 49152 + mat * 24576 + m * 8192),
                        's_add_u32 s33, s%d, %d' % (sK, m * 64 * 9216),
                        ('buffer_load_dwordx4 v%d, s[%d:%d], s33 offen lds' % (vDU if mat else vDG, 28 if mat else 24, 31 if mat else 27), 'w%d' % slot)])
    return out

def epilogue(tile, sH):
    A = ACC[tile]
    ins = []
    for r in range(8):
        ins.append('v_mul_f32 v%d, v%d, v%d' % (vE + r, A + r, A + r + 8))
    for i in range(4):
        ins.append('v_cvt_pk_bf16_f32 v%d, v%d, v%d' % (vE + 8 + i, vE + 2 * i, vE + 2 * i + 1))
    ins.append('buffer_store_dwordx4 v[%d:%d], v%d, s[40:43], s%d offen' % (vE + 8, vE + 11, vHO, sH))
    return ins

def body(a, tiles, deferred):
    steps = [(sp, t, k) for sp in range(3) for t in tiles for k in range(12)]
    N = len(steps)
    per = N // 3
    bounds = {0: 0, per: 1, 2 * per: 2}
    synced = set()
    r = 0; m = 0
    side = []
    pend_dma = []
    def emit(ins):
        if isinstance(ins, tuple): a(ins[0], tag=ins[1])
        else: a(ins)
    def do_read(i):
        sp, t, k = steps[i]
        fr = FR + 4 * (i % NB)
        base = vRA if t == 'a' else vRB_
        off = k * 2048
        a('ds_read_b64_tr_b16 v[%d:%d], v%d offset:%d' % (fr, fr + 1, base, off))
        a('ds_read_b64_tr_b16 v[%d:%d], v%d offset:%d' % (fr + 2, fr + 3, base, off + 512))
    while m < N:
        progressed = False
        while r < N and r - m < NB - 1 + (1 if r == m else 0) and not (r in bounds and r not in synced):
            do_read(r); r += 1; progressed = True
            if r - m >= NB - 1: break
        if r < N and r in bounds and r not in synced and r - m <= (CARRY if r else 0):
            sp = bounds[r]
            assert not pend_dma
            a('s_waitcnt lgkmcnt(0)')
            a.wait_vm('w%d' % sp)
            a('s_barrier')
            d = 49152 if sp else -2 * 49152
            a('v_add_u32 v%d, %d, v%d' % (vRA, d, vRA))
            a('v_add_u32 v%d, %d, v%d' % (vRB_, d, vRB_))
            synced.add(r)
            if sp == 0:
                a('s_add_u32 s34, s21, %d' % (384 * 9216)); tgt = 2
            elif sp == 1:
                a('s_mov_b32 s34, s22'); tgt = 0
            else:
                a('s_add_u32 s34, s22, %d' % (192 * 9216)); tgt = 1
            dm = dma_instrs(tgt, 34)
            side_dma = [x for grp in dm for x in [grp]]
            pend_dma = list(side_dma)
            if sp == 0 and deferred:
                side = [[x] for x in epilogue('b', 45)]
            continue
        sp, t, k = steps[m]
        fr = FR + 4 * (m % NB)
        c0 = '0' if (sp == 0 and k == 0) else None
        a(mfma32(ACC[t], fr, X + 4 * (sp * 12 + k), c0))
        m += 1
        if pend_dma and (m % 2 == 1 or len(tiles) == 1):
            for x in pend_dma.pop(0): emit(x)
        if side and m >= 2:
            for _ in range(2):
                if side:
                    for x in side.pop(0): emit(x)
        if len(tiles) == 2 and steps[m - 1] == (2, 'a', 11):
            ea = [[x] for x in epilogue('a', 44)]
            delay_a = 2
            side_a = ea
        if len(tiles) == 2 and m - 1 > steps.index((2, 'a', 11)):
            delay_a -= 1
            if delay_a <= 0:
                for _ in range(2):
                    if side_a:
                        for x in side_a.pop(0): emit(x)
    assert not pend_dma and not side
    if len(tiles) == 2:
        for g in side_a:
            for x in g: emit(x)
    elif tiles == ['a']:
        for x in epilogue('a', 44): emit(x)

def gen_f1(name='f1_kernel'):
    a = Asm()
    a('s_load_dwordx4 s[4:7], s[0:1], 48')
    a('s_load_dwordx2 s[12:13], s[0:1], 88')
    a('s_cmp_ge_u32 s2, 256')
    a('s_cbranch_scc1 F1_END')
    a('v_and_b32 v%d, 63, v0' % vLANE)
    a('v_lshrrev_b32 v%d, 6, v0' % vT)
    a('v_readfirstlane_b32 s16, v%d' % vT)
    a('s_and_b32 s17, s16, 3')
    a('s_lshr_b32 s18, s16, 2')
    a('s_lshr_b32 s19, s2, 4')
    a('s_and_b32 s20, s2, 7')
    a('s_lshl_b32 s20, s20, 1')
    a('s_bfe_u32 s33, s2, 0x10003')
    a('s_add_u32 s20, s20, s33')
    a('s_lshl_b32 s46, s19, 2')
    a('s_add_u32 s46, s46, s17')
    a('s_mul_i32 s34, s46, %d' % (36 * 1024))
    a('v_lshlrev_b32 v%d, 4, v%d' % (vT, vLANE))
    a('v_and_b32 v%d, 31, v%d' % (vT + 1, vLANE))
    a('v_lshrrev_b32 v%d, 5, v%d' % (vT + 2, vLANE))
    a('s_lshl_b32 s33, s46, 5')
    a('v_add_u32 v%d, s33, v%d' % (vT + 3, vT + 1))
    a('v_mul_u32_u24 v%d, 96, v%d' % (vT + 3, vT + 3))
    a('v_mul_u32_u24 v%d, 48, v%d' % (vT + 4, vT + 2))
    a('v_add_u32 v%d, v%d, v%d' % (vT + 3, vT + 3, vT + 4))
    a('v_lshrrev_b32 v%d, 3, v%d' % (vT + 4, vLANE))
    a('v_and_b32 v%d, 7, v%d' % (vT + 5, vLANE))
    a('v_bfe_u32 v%d, v%d, 1, 1' % (vT + 6, vT + 4))
    a('v_lshlrev_b32 v%d, 1, v%d' % (vT + 6, vT + 6))
    a('v_xor_b32 v%d, v%d, v%d' % (vT + 5, vT + 5, vT + 6))
    a('s_lshl_b32 s33, s16, 3')
    a('v_add_u32 v%d, s33, v%d' % (vT + 4, vT + 4))
    a('v_mul_u32_u24 v%d, 9216, v%d' % (vT + 4, vT + 4))
    a('v_lshl_add_u32 v%d, v%d, 4, v%d' % (vDG, vT + 5, vT + 4))
    a('v_xor_b32 v%d, 4, v%d' % (vT + 5, vT + 5))
    a('v_lshl_add_u32 v%d, v%d, 4, v%d' % (vDU, vT + 5, vT + 4))
    a('s_mul_i32 s21, s20, 576')
    a('s_and_b32 s33, s20, 1')
    a('s_lshl_b32 s33, s33, 6')
    a('s_sub_u32 s21, s21, s33')
    a('s_lshl_b32 s23, s16, 10')
    a('s_waitcnt lgkmcnt(0)')
    srd(a, 24, 4, 5, D * F * 2)
    srd(a, 28, 6, 7, D * F * 2)
    srd_off(a, 36, 12, 13, WS_H, WS_HB - WS_H)
    srd_off(a, 40, 12, 13, WS_HB, WS_FLAG - WS_HB)
    SB = vE
    a('s_mov_b32 s35, 0x%x' % (WS_ST - WS_H))
    for i in range(3):
        a('buffer_load_dwordx4 v[%d:%d], v%d, s[36:39], s35 offen offset:%d' % (SB + 4 * i, SB + 4 * i + 3, vT + 3, 16 * i))
    for k in range(36):
        a('buffer_load_dwordx4 v[%d:%d], v%d, s[36:39], s34 offen offset:%d' % (X + 4 * k, X + 4 * k + 3, vT, (k % 4) * 1024))
        if k % 4 == 3: a('s_add_u32 s34, s34, 4096')
    a('s_mov_b32 s34, s21')
    for grp in dma_instrs(0, 34):
        for x in grp:
            if isinstance(x, tuple): a(x[0], tag=x[1])
            else: a(x)
    a('s_add_u32 s34, s21, %d' % (192 * 9216))
    for grp in dma_instrs(1, 34):
        for x in grp:
            if isinstance(x, tuple): a(x[0], tag=x[1])
            else: a(x)
    a('v_lshrrev_b32 v%d, 4, v%d' % (vT + 4, vLANE))
    a('v_and_b32 v%d, 1, v%d' % (vT + 5, vT + 4))
    a('v_lshrrev_b32 v%d, 1, v%d' % (vT + 6, vT + 4))
    a('v_and_b32 v%d, 15, v%d' % (vT + 7, vLANE))
    a('v_lshrrev_b32 v%d, 2, v%d' % (vT + 8, vT + 7))
    a('v_lshl_add_u32 v%d, v%d, 3, v%d' % (vT + 8, vT + 6, vT + 8))
    a('v_lshlrev_b32 v%d, 7, v%d' % (vT + 8, vT + 8))
    a('v_mul_u32_u24 v%d, 24576, v%d' % (vT + 9, vT + 5))
    a('v_add_u32 v%d, v%d, v%d' % (vT + 8, vT + 8, vT + 9))
    a('v_and_b32 v%d, 3, v%d' % (vT + 9, vT + 7))
    a('v_lshl_add_u32 v%d, v%d, 3, v%d' % (vT + 8, vT + 9, vT + 8))
    a('v_bfe_u32 v%d, v%d, 3, 1' % (vT + 9, vT + 7))
    a('v_lshl_add_u32 v%d, v%d, 1, v%d' % (vT + 9, vT + 5, vT + 9))
    a('v_xor_b32 v%d, s18, v%d' % (vT + 10, vT + 9))
    a('v_lshl_add_u32 v%d, v%d, 5, v%d' % (vRA, vT + 10, vT + 8))
    a('v_xor_b32 v%d, 2, v%d' % (vT + 10, vT + 10))
    a('v_lshl_add_u32 v%d, v%d, 5, v%d' % (vRB_, vT + 10, vT + 8))
    a('v_add_u32 v%d, %d, v%d' % (vRA, 2 * 49152, vRA))
    a('v_add_u32 v%d, %d, v%d' % (vRB_, 2 * 49152, vRB_))
    a('v_bfe_u32 v%d, v%d, 4, 1' % (vT + 4, vLANE))
    a('v_lshlrev_b32 v%d, 10, v%d' % (vT + 4, vT + 4))
    a('s_lshl_b32 s33, s18, 1')
    a('v_add_u32 v%d, s33, v%d' % (vT + 5, vT + 2))
    a('v_lshlrev_b32 v%d, 4, v%d' % (vT + 5, vT + 5))
    a('v_and_b32 v%d, 15, v%d' % (vT + 6, vLANE))
    a('v_add_u32 v%d, v%d, v%d' % (vT + 5, vT + 5, vT + 6))
    a('v_lshl_add_u32 v%d, v%d, 4, v%d' % (vHO, vT + 5, vT + 4))
    m_, q_ = vT + 4, vT + 5
    a('v_add_f32 v%d, v%d, v%d' % (m_, SB, SB + 2))
    a('v_add_f32 v%d, v%d, v%d' % (q_, SB + 1, SB + 3))
    for i in range(1, 3):
        a('v_add_f32 v%d, v%d, v%d' % (m_, m_, SB + 4 * i))
        a('v_add_f32 v%d, v%d, v%d' % (q_, q_, SB + 4 * i + 1))
        a('v_add_f32 v%d, v%d, v%d' % (m_, m_, SB + 4 * i + 2))
        a('v_add_f32 v%d, v%d, v%d' % (q_, q_, SB + 4 * i + 3))
    for v in (m_, q_):
        a('v_mov_b32 v%d, v%d' % (vT + 6, v))
        a('v_permlane32_swap_b32 v%d, v%d' % (v, vT + 6))
        a('v_add_f32 v%d, v%d, v%d' % (v, v, vT + 6))
    a('v_mul_f32 v%d, %s, v%d' % (m_, f32(1.0 / 576), m_))
    a('v_mul_f32 v%d, %s, v%d' % (q_, f32(1.0 / 576), q_))
    a('v_fma_f32 v%d, -v%d, v%d, v%d' % (q_, m_, m_, q_))
    a('v_max_f32 v%d, 0, v%d' % (q_, q_))
    a('v_add_f32 v%d, %s, v%d' % (q_, f32(EPS), q_))
    a('v_rsq_f32 v%d, v%d' % (q_, q_))
    a('v_mul_f32 v%d, v%d, v%d' % (m_, m_, q_))
    a('v_sub_f32 v%d, 0, v%d' % (m_, m_))
    for i in range(144):
        t0 = vE + 2 * (i % 4)
        a('v_lshlrev_b32 v%d, 16, v%d' % (t0, X + i))
        a('v_and_b32 v%d, 0xffff0000, v%d' % (t0 + 1, X + i))
        a('v_fma_f32 v%d, v%d, v%d, v%d' % (t0, t0, q_, m_))
        a('v_fma_f32 v%d, v%d, v%d, v%d' % (t0 + 1, t0 + 1, q_, m_))
        a('v_cvt_pk_bf16_f32 v%d, v%d, v%d' % (X + i, t0, t0 + 1))
    a('s_mul_i32 s47, s46, %d' % (144 * 2048))
    a('s_lshl_b32 s33, s2, 3')
    a('s_add_u32 s33, s33, s16')
    a('s_lshl_b32 s33, s33, 12')
    a('s_add_u32 s45, s33, 0x%x' % (WS_PART - WS_HB))
    a('s_add_u32 s22, s21, 128')
    a('s_lshl_b32 s44, s21, 5')
    a('s_add_u32 s44, s44, s47')
    a('s_and_b32 s48, s20, 1')
    a('s_cmp_eq_u32 s48, 0')
    a('s_cbranch_scc1 F1_LOOP_INIT')
    a.opt_begin()
    body(a, ['b'], False)
    advance_(a)
    a.opt_end()
    a.label('F1_LOOP_INIT')
    a('s_mov_b32 s49, 0')
    a.loop_begin('F1_LOOP')
    body(a, ['a', 'b'], True)
    advance_(a)
    a('s_min_u32 s22, s22, %d' % (9216 - 128))
    a('s_add_u32 s49, s49, 1')
    a('s_cmp_lt_u32 s49, 4')
    a.loop_end('s_cbranch_scc1 F1_LOOP')
    a('s_cmp_eq_u32 s48, 0')
    a('s_cbranch_scc1 F1_HA')
    a.opt_begin()
    for x in epilogue('b', 45): a(x)
    a('s_endpgm')
    a.opt_end()
    a.label('F1_HA')
    body(a, ['a'], True)
    a.label('F1_END')
    a('s_endpgm')
    return kernel_header(name) + a.finish(), kernel_desc(name, 256, 64), (256, 512, LDS_F1)

def advance_(a):
    a('s_add_u32 s45, s44, 2048')
    a('s_add_u32 s44, s44, 4096')
    a('s_mov_b32 s21, s22')
    a('s_add_u32 s22, s22, 128')
```

```python
from asmgen import *
from common import *
STG = 128 * 288
LDS_F2 = 4 * STG
ACC = 16
HFR = 88
FR = 136
NB = 6
vDM = 160
vRB, vHO = 165, 166
vLANE, vT = 1, 2
CARRY = 2
NSTG = 9

def main_variant(a, pp):
    nd = 5 if pp == 0 else 4
    def dma(s):
        out = []
        slot = s % 4
        for m in range(nd):
            out.append(['s_add_u32 m0, s23, %d' % (slot * STG + m * 8192),
                        's_add_u32 s33, s22, %d' % (s * 128 * 1152),
                        ('buffer_load_dwordx4 v%d, s[24:27], s33 offen lds' % (vDM + m), 'w%d' % s)])
        return out
    def hloads(s):
        out = []
        st = HFR + 16 * (s % 3)
        for m in range(2):
            for t in range(2):
                k = 4 * s + pp + 2 * m
                out.append(['s_add_u32 s34, s21, %d' % (k * 2048),
                            'buffer_load_dwordx4 v[%d:%d], v%d, s[36:39], s34 offen offset:%d' % (st + 8 * m + 4 * t, st + 8 * m + 4 * t + 3, vHO, t * 1024)])
        return out
    def emit(x):
        if isinstance(x, tuple): a(x[0], tag=x[1])
        else: a(x)
    for s in range(2):
        for g in hloads(s):
            for x in g: emit(x)
        for g in dma(s):
            for x in g: emit(x)
    steps = [(s, m, dt) for s in range(NSTG) for m in range(2) for dt in range(9)]
    N = len(steps); per = 18
    synced = set(); r = 0; mi = 0
    pend = []
    def do_read(i):
        s, m, dt = steps[i]
        fr = FR + 4 * (i % NB)
        off = m * 18432 + dt * 32
        a('ds_read_b64_tr_b16 v[%d:%d], v%d offset:%d' % (fr, fr + 1, vRB, off))
        a('ds_read_b64_tr_b16 v[%d:%d], v%d offset:%d' % (fr + 2, fr + 3, vRB, off + 2304))
    while mi < N:
        while r < N and r - mi < NB - 1 and not (r % per == 0 and r not in synced):
            do_read(r); r += 1
        if r < N and r % per == 0 and r not in synced and r - mi <= (CARRY if r else 0):
            s = r // per
            a.wait_vm('w%d' % s)
            a('s_barrier')
            if s > 0:
                d = STG if s % 4 else -3 * STG
                a('v_add_u32 v%d, %d, v%d' % (vRB, d, vRB))
            synced.add(r)
            pend = []
            if s + 2 < NSTG:
                pend = hloads(s + 2) + dma(s + 2)
            continue
        s, m, dt = steps[mi]
        fr = FR + 4 * (mi % NB)
        st = HFR + 16 * (s % 3) + 8 * m
        for t in range(2):
            c0 = '0' if (s == 0 and m == 0) else None
            a(mfma16(ACC + 4 * (dt * 2 + t), fr, st + 4 * t, c0))
        mi += 1
        if pend and mi % per >= CARRY + 1 or (pend and mi % per == 0):
            for x in pend.pop(0): emit(x)
    assert not pend

def gen_f2(name='f2_kernel'):
    a = Asm()
    a('s_load_dwordx2 s[4:5], s[0:1], 64')
    a('s_load_dwordx2 s[12:13], s[0:1], 88')
    a('s_cmp_ge_u32 s2, 256')
    a('s_cbranch_scc1 F2_END')
    a('v_and_b32 v%d, 63, v0' % vLANE)
    a('v_lshrrev_b32 v%d, 6, v0' % vT)
    a('v_readfirstlane_b32 s16, v%d' % vT)
    a('s_and_b32 s17, s16, 3')
    a('s_lshr_b32 s18, s16, 2')
    a('s_and_b32 s33, s2, 7')
    a('s_lshr_b32 s34, s2, 3')
    a('s_and_b32 s19, s33, 3')
    a('s_lshr_b32 s33, s33, 2')
    a('s_lshl_b32 s33, s33, 3')
    a('s_lshr_b32 s20, s34, 2')
    a('s_add_u32 s20, s20, s33')
    a('s_and_b32 s35, s34, 3')
    a('s_lshl_b32 s21, s20, 2')
    a('s_add_u32 s21, s21, s17')
    a('s_mul_i32 s21, s21, 144')
    a('s_mul_i32 s33, s19, 36')
    a('s_add_u32 s21, s21, s33')
    a('s_lshl_b32 s21, s21, 11')
    a('s_mul_i32 s22, s19, %d' % (1152 * 1152))
    a('s_mul_i32 s33, s35, 288')
    a('s_add_u32 s22, s22, s33')
    a('s_lshl_b32 s23, s16, 10')
    a('v_lshlrev_b32 v%d, 4, v%d' % (vHO, vLANE))
    a('s_lshl_b32 s33, s16, 6')
    a('v_add_u32 v%d, s33, v%d' % (vT, vLANE))
    for m in range(5):
        a('v_add_u32 v%d, %d, v%d' % (vT + 1, 512 * m, vT))
        a('v_mul_u32_u24 v%d, 3641, v%d' % (vT + 2, vT + 1))
        a('v_lshrrev_b32 v%d, 16, v%d' % (vT + 2, vT + 2))
        a('v_mul_u32_u24 v%d, 18, v%d' % (vT + 3, vT + 2))
        a('v_sub_u32 v%d, v%d, v%d' % (vT + 3, vT + 1, vT + 3))
        a('v_mul_u32_u24 v%d, 1152, v%d' % (vT + 2, vT + 2))
        a('v_lshl_add_u32 v%d, v%d, 4, v%d' % (vDM + m, vT + 3, vT + 2))
    a('v_lshrrev_b32 v%d, 4, v%d' % (vT, vLANE))
    a('v_lshrrev_b32 v%d, 1, v%d' % (vT + 1, vT))
    a('v_lshlrev_b32 v%d, 4, v%d' % (vT + 1, vT + 1))
    a('v_and_b32 v%d, 1, v%d' % (vT + 2, vT))
    a('v_lshl_add_u32 v%d, v%d, 2, v%d' % (vT + 1, vT + 2, vT + 1))
    a('v_bfe_u32 v%d, v%d, 2, 2' % (vT + 2, vLANE))
    a('v_add_u32 v%d, v%d, v%d' % (vT + 1, vT + 1, vT + 2))
    a('s_lshl_b32 s33, s18, 5')
    a('v_add_u32 v%d, s33, v%d' % (vT + 1, vT + 1))
    a('v_mul_u32_u24 v%d, 288, v%d' % (vT + 1, vT + 1))
    a('v_and_b32 v%d, 3, v%d' % (vT + 2, vLANE))
    a('v_lshl_add_u32 v%d, v%d, 3, v%d' % (vRB, vT + 2, vT + 1))
    a('s_waitcnt lgkmcnt(0)')
    srd(a, 24, 4, 5, F * D * 2)
    srd_off(a, 36, 12, 13, WS_HB, WS_PART - WS_HB)
    srd_off(a, 40, 12, 13, WS_PART, WS_FLAG - WS_PART)
    a('s_cmp_lg_u32 s18, 0')
    a('s_cbranch_scc1 F2_P1')
    t0 = a.finish()
    a = Asm()
    main_variant(a, 0)
    a('s_barrier')
    a('s_barrier')
    a('s_mul_i32 s33, s17, 18432')
    a('v_add_u32 v%d, s33, v%d' % (vT, vHO))
    a('s_lshl_b32 s34, s2, 2')
    a('s_add_u32 s34, s34, s17')
    a('s_mul_i32 s34, s34, 18432')
    for i in range(18):
        tb = HFR + 4 * (i % 8)
        a('ds_read_b128 v[%d:%d], v%d offset:%d' % (tb, tb + 3, vT, i * 1024))
        for r in range(4):
            a('v_add_f32 v%d, v%d, v%d' % (ACC + 4 * i + r, ACC + 4 * i + r, tb + r))
        a('buffer_store_dwordx4 v[%d:%d], v%d, s[40:43], s34 offen offset:%d' % (ACC + 4 * i, ACC + 4 * i + 3, vHO, (i % 4) * 1024))
        if i % 4 == 3: a('s_add_u32 s34, s34, 4096')
    a('s_endpgm')
    t1 = a.finish()
    a = Asm()
    a.label('F2_P1')
    main_variant(a, 1)
    a('s_barrier')
    a('s_mul_i32 s33, s17, 18432')
    a('v_add_u32 v%d, s33, v%d' % (vT, vHO))
    for i in range(18):
        a('ds_write_b128 v%d, v[%d:%d] offset:%d' % (vT, ACC + 4 * i, ACC + 4 * i + 3, i * 1024))
    a('s_waitcnt lgkmcnt(0)')
    a('s_barrier')
    a.label('F2_END')
    a('s_endpgm')
    t2 = a.finish()
    return kernel_header(name) + t0 + t1 + t2, kernel_desc(name, 176, 64), (256, 512, LDS_F2)

def gen_red(name='red_kernel'):
    a = Asm()
    a('s_load_dwordx2 s[4:5], s[0:1], 72')
    a('s_load_dwordx2 s[12:13], s[0:1], 88')
    a('s_cmp_ge_u32 s2, 576')
    a('s_cbranch_scc1 RED_END')
    a('v_and_b32 v1, 63, v0')
    a('v_lshrrev_b32 v2, 6, v0')
    a('v_readfirstlane_b32 s16, v2')
    a('s_lshl_b32 s17, s2, 3')
    a('s_add_u32 s17, s17, s16')
    a('s_mul_hi_u32 s18, s17, 0x%x' % ((2 ** 32 + 17) // 18))
    a('s_mul_i32 s19, s18, 18')
    a('s_sub_u32 s19, s17, s19')
    a('s_and_b32 s20, s18, 3')
    a('s_bfe_u32 s21, s18, 0x20002')
    a('s_lshr_b32 s22, s18, 4')
    a('s_lshr_b32 s23, s19, 1')
    a('s_and_b32 s33, s19, 1')
    a('s_waitcnt lgkmcnt(0)')
    srd(a, 24, 4, 5, S * D * 2)
    srd_off(a, 36, 12, 13, WS_H, S * D * 2)
    srd_off(a, 40, 12, 13, WS_PART, WS_FLAG - WS_PART)
    a('v_lshlrev_b32 v3, 4, v1')
    a('s_lshr_b32 s34, s22, 3')
    a('s_lshl_b32 s34, s34, 2')
    a('s_and_b32 s35, s22, 7')
    a('s_lshl_b32 s35, s35, 2')
    a('s_add_u32 s35, s35, s21')
    a('s_lshl_b32 s35, s35, 3')
    a('s_add_u32 s34, s34, s35')
    a('s_lshl_b32 s34, s34, 2')
    a('s_add_u32 s34, s34, s20')
    a('s_mul_i32 s34, s34, 18')
    a('s_add_u32 s34, s34, s19')
    a('s_lshl_b32 s34, s34, 10')
    for s in range(4):
        a('buffer_load_dwordx4 v[%d:%d], v3, s[40:43], s34 offen' % (8 + 4 * s, 11 + 4 * s))
        if s < 3: a('s_add_u32 s34, s34, %d' % (4 * 18432))
    a('s_lshl_b32 s44, s22, 2')
    a('s_add_u32 s44, s44, s20')
    a('s_mul_i32 s45, s44, 36')
    a('s_mul_i32 s46, s21, 9')
    a('s_add_u32 s45, s45, s46')
    a('s_add_u32 s45, s45, s23')
    a('s_lshl_b32 s45, s45, 10')
    a('v_and_b32 v4, 15, v1')
    a('v_lshrrev_b32 v5, 4, v1')
    a('s_lshl_b32 s46, s33, 4')
    a('v_add_u32 v6, s46, v4')
    a('v_lshrrev_b32 v7, 1, v5')
    a('v_lshl_add_u32 v7, v7, 5, v6')
    a('v_lshlrev_b32 v7, 4, v7')
    a('v_and_b32 v24, 1, v5')
    a('v_lshl_add_u32 v7, v24, 3, v7')
    a('buffer_load_dwordx2 v[26:27], v7, s[36:39], s45 offen')
    a('s_lshl_b32 s46, s44, 5')
    a('v_add_u32 v6, s46, v6')
    a('v_mul_u32_u24 v6, 1152, v6')
    a('v_lshl_add_u32 v6, v5, 3, v6')
    a('s_mul_i32 s46, s21, 288')
    a('s_lshl_b32 s47, s23, 5')
    a('s_add_u32 s46, s46, s47')
    for r in range(4):
        a('v_add_f32 v%d, v%d, v%d' % (8 + r, 8 + r, 12 + r))
        a('v_add_f32 v%d, v%d, v%d' % (16 + r, 16 + r, 20 + r))
    a('v_lshlrev_b32 v28, 16, v26')
    a('v_and_b32 v29, 0xffff0000, v26')
    a('v_lshlrev_b32 v30, 16, v27')
    a('v_and_b32 v31, 0xffff0000, v27')
    for r in range(4):
        a('v_add_f32 v%d, v%d, v%d' % (8 + r, 8 + r, 16 + r))
        a('v_add_f32 v%d, v%d, v%d' % (8 + r, 8 + r, 28 + r))
    a('v_cvt_pk_bf16_f32 v8, v8, v9')
    a('v_cvt_pk_bf16_f32 v9, v10, v11')
    a('buffer_store_dwordx2 v[8:9], v6, s[24:27], s46 offen')
    a.label('RED_END')
    a('s_endpgm')
    return kernel_header(name) + a.finish(), kernel_desc(name, 32, 64), (576, 512, 0)
```

```python
from asmgen import *
from common import *

LDS_K1 = 92160
X = 32
ONES = 104
FR = 108
ACC = 132
CS = 144
SUM = 156
SUMR = 160
vLANE, vG, vN = 1, 2, 3
vXOFF = 4
vA = 6
vSTR = 8
vT0, vT1, vT2, vT3, vT4, vT5 = 10, 11, 12, 13, 14, 15
vMEAN, vRSTD, vSC = 16, 17, 18
vSQ = 20
vRB0, vRB1 = 24, 25
vSOFF = 26
vROW = 27
vMR = 164
vRR = 168

def gen_main_block(tiles, vform, name):
    a = Asm()
    a.label(name)
    nt = len(tiles)
    steps = [(k, ti) for k in range(18) for ti in range(nt)]
    NB = 6
    def reads(idx):
        k, ti = steps[idx]
        t = tiles[ti]
        fr = FR + 4 * (idx % NB)
        base = vRB0 if k < 12 else vRB1
        off = (k if k < 12 else k - 12) * 5120 + t * 32
        a('ds_read_b64_tr_b16 v[%d:%d], v%d offset:%d' % (fr, fr + 1, base, off))
        a('ds_read_b64_tr_b16 v[%d:%d], v%d offset:%d' % (fr + 2, fr + 3, base, off + 1280))
    PD = NB - 1
    for i in range(min(PD, len(steps))): reads(i)
    for idx, (k, ti) in enumerate(steps):
        fr = FR + 4 * (idx % NB)
        c0 = '0' if k == 0 else None
        if vform:
            a(mfma16(ACC + 4 * ti, X + 4 * k, fr, c0))
            a(mfma16(CS + 4 * ti, ONES, fr, c0))
        else:
            a(mfma16(ACC + 4 * ti, fr, X + 4 * k, c0))
            a(mfma16(CS + 4 * ti, fr, ONES, c0))
        if idx + PD < len(steps): reads(idx + PD)
    return a

def epi_T(a, ti, scale_reg):
    for r in range(4):
        a('v_fma_f32 v%d, -v%d, v%d, v%d' % (vT2 + r, vMEAN, CS + 4 * ti + r, ACC + 4 * ti + r))
    for r in range(4):
        a('v_mul_f32 v%d, v%d, v%d' % (vT2 + r, vT2 + r, scale_reg))
    a('v_cvt_pk_bf16_f32 v%d, v%d, v%d' % (vT0, vT2, vT2 + 1))
    a('v_cvt_pk_bf16_f32 v%d, v%d, v%d' % (vT0 + 1, vT2 + 2, vT2 + 3))

def gen_k1(name='k1_kernel'):
    a = Asm()
    a('s_load_dwordx4 s[4:7], s[0:1], 0')
    a('s_load_dwordx4 s[8:11], s[0:1], 16')
    a('s_load_dwordx2 s[12:13], s[0:1], 88')
    a('s_cmp_ge_u32 s2, 256')
    a('s_cbranch_scc1 K1_END')
    a('v_and_b32 v%d, 63, v0' % vLANE)
    a('v_lshrrev_b32 v%d, 6, v0' % vT0)
    a('v_readfirstlane_b32 s16, v%d' % vT0)
    a('s_and_b32 s19, s16, 3')
    a('s_lshr_b32 s20, s16, 2')
    a('s_and_b32 s21, s2, 7')
    a('s_lshr_b32 s22, s2, 3')
    a('s_and_b32 s22, s22, 3')
    a('s_lshl_b32 s22, s22, 3')
    a('s_add_u32 s17, s21, s22')
    a('s_lshr_b32 s18, s2, 5')
    a('v_and_b32 v%d, 15, v%d' % (vN, vLANE))
    a('v_lshrrev_b32 v%d, 4, v%d' % (vG, vLANE))
    a('s_lshl_b32 s23, s17, 6')
    a('s_lshl_b32 s33, s19, 4')
    a('s_add_u32 s23, s23, s33')
    a('v_add_u32 v%d, s23, v%d' % (vROW, vN))
    a('v_mul_u32_u24 v%d, 1152, v%d' % (vXOFF, vROW))
    a('v_lshl_add_u32 v%d, v%d, 4, v%d' % (vXOFF, vG, vXOFF))
    a('v_mul_u32_u24 v%d, 6554, v%d' % (vT0, vLANE))
    a('v_lshrrev_b32 v%d, 16, v%d' % (vT0, vT0))
    a('v_mul_u32_u24 v%d, 10, v%d' % (vT1, vT0))
    a('v_sub_u32 v%d, v%d, v%d' % (vT1, vLANE, vT1))
    a('s_mul_i32 s33, s16, 6')
    a('v_add_u32 v%d, s33, v%d' % (vT0, vT0))
    a('v_and_b32 v%d, 0x33, v%d' % (vT2, vT0))
    a('v_and_b32 v%d, 4, v%d' % (vT3, vT0))
    a('v_lshl_or_b32 v%d, v%d, 1, v%d' % (vT2, vT3, vT2))
    a('v_and_b32 v%d, 8, v%d' % (vT3, vT0))
    a('v_lshrrev_b32 v%d, 1, v%d' % (vT3, vT3))
    a('v_or_b32 v%d, v%d, v%d' % (vT2, vT2, vT3))
    a('s_waitcnt lgkmcnt(0)')
    srd(a, 24, 4, 5, S * D * 2)
    srd(a, 28, 12, 13, WS_O)
    for k in range(18):
        a('buffer_load_dwordx4 v[%d:%d], v%d, s[24:27], 0 offen offset:%d' % (X + 4 * k, X + 4 * k + 3, vXOFF, 64 * k), tag='x')
    a('s_mul_i32 s33, s18, 160')
    a('v_mul_u32_u24 v%d, 1152, v%d' % (vT3, vT2))
    a('v_lshl_add_u32 v%d, v%d, 4, v%d' % (vT3, vT1, vT3))
    a('v_add_u32 v%d, s33, v%d' % (vT3, vT3))
    a('v_mov_b32 v%d, s6' % vA)
    a('v_mov_b32 v%d, s7' % (vA + 1))
    a('v_mov_b32 v%d, %d' % (vSTR, 48 * 1152))
    a('s_cmp_lg_u32 s18, 7')
    a('s_cbranch_scc1 K1_NOKV')
    a.opt_begin()
    a('v_lshrrev_b32 v%d, 1, v%d' % (vT4, vT1))
    a('v_and_b32 v%d, 1, v%d' % (vT5, vT1))
    a('v_lshlrev_b32 v%d, 4, v%d' % (vT5, vT5))
    a('v_and_b32 v%d, 1, v%d' % (vT0, vT4))
    a('v_cmp_eq_u32 vcc, 1, v%d' % vT0)
    a('v_cndmask_b32 v%d, 20, v%d, vcc' % (vT5, vT5))
    a('v_mul_u32_u24 v%d, 36, v%d' % (vT0, vT2))
    a('v_add_u32 v%d, v%d, v%d' % (vT5, vT5, vT0))
    a('v_cmp_le_u32 vcc, 1, v%d' % vT4)
    a('v_cndmask_b32 v%d, v%d, v%d, vcc' % (vT3, vT3, vT5))
    a('v_mov_b32 v%d, %d' % (vT0, 48 * 36))
    a('v_cndmask_b32 v%d, v%d, v%d, vcc' % (vSTR, vSTR, vT0))
    a('v_mov_b32 v%d, s8' % vT0)
    a('v_cndmask_b32 v%d, v%d, v%d, vcc' % (vA, vA, vT0))
    a('v_mov_b32 v%d, s9' % vT0)
    a('v_cndmask_b32 v%d, v%d, v%d, vcc' % (vA + 1, vA + 1, vT0))
    a('v_cmp_le_u32 vcc, 3, v%d' % vT4)
    a('v_mov_b32 v%d, s10' % vT0)
    a('v_cndmask_b32 v%d, v%d, v%d, vcc' % (vA, vA, vT0))
    a('v_mov_b32 v%d, s11' % vT0)
    a('v_cndmask_b32 v%d, v%d, v%d, vcc' % (vA + 1, vA + 1, vT0))
    a.opt_end()
    a.label('K1_NOKV')
    a('v_add_co_u32 v%d, vcc, v%d, v%d' % (vA, vA, vT3))
    a('v_addc_co_u32 v%d, vcc, 0, v%d, vcc' % (vA + 1, vA + 1))
    a('s_mul_i32 s34, s16, 960')
    a('s_mov_b32 exec_hi, 0x0fffffff')
    for q in range(12):
        a('s_mov_b32 m0, s34')
        a('global_load_lds_dwordx4 v[%d:%d], off' % (vA, vA + 1), tag='w')
        if q < 11:
            a('v_add_co_u32 v%d, vcc, v%d, v%d' % (vA, vA, vSTR))
            a('v_addc_co_u32 v%d, vcc, 0, v%d, vcc' % (vA + 1, vA + 1))
            a('s_add_u32 s34, s34, %d' % (8 * 960))
    a('s_mov_b32 exec_hi, -1')
    for r in range(4):
        a('v_mov_b32 v%d, 0x3f803f80' % (ONES + r))
    a('v_lshrrev_b32 v%d, 1, v%d' % (vT0, vG))
    a('v_lshlrev_b32 v%d, 4, v%d' % (vT0, vT0))
    a('v_and_b32 v%d, 1, v%d' % (vT1, vG))
    a('v_lshl_add_u32 v%d, v%d, 2, v%d' % (vT0, vT1, vT0))
    a('v_lshrrev_b32 v%d, 2, v%d' % (vT1, vN))
    a('v_add_u32 v%d, v%d, v%d' % (vT0, vT0, vT1))
    a('v_mul_u32_u24 v%d, 160, v%d' % (vT0, vT0))
    a('v_and_b32 v%d, 3, v%d' % (vT1, vN))
    a('v_lshl_add_u32 v%d, v%d, 3, v%d' % (vRB0, vT1, vT0))
    a('v_add_u32 v%d, %d, v%d' % (vRB1, 12 * 5120, vRB0))
    for r in range(4):
        a('v_mov_b32 v%d, 0' % (vSQ + r))
    for k in range(18):
        a(mfma16(SUM, ONES, X + 4 * k, '0' if k == 0 else None))
        a(mfma16(SUMR, X + 4 * k, ONES, '0' if k == 0 else None))
        for r in range(4):
            a('v_dot2_f32_bf16 v%d, v%d, v%d, v%d' % (vSQ + r, X + 4 * k + r, X + 4 * k + r, vSQ + r))
    a('v_add_f32 v%d, v%d, v%d' % (vSQ, vSQ, vSQ + 1))
    a('v_add_f32 v%d, v%d, v%d' % (vSQ + 2, vSQ + 2, vSQ + 3))
    a('v_add_f32 v%d, v%d, v%d' % (vSQ, vSQ, vSQ + 2))
    xlane_sum(a, vSQ, vT0)
    a('v_mul_f32 v%d, %s, v%d' % (vMEAN, f32(1.0 / 576), SUM))
    a('v_mul_f32 v%d, %s, v%d' % (vSQ, f32(1.0 / 576), vSQ))
    a('v_fma_f32 v%d, -v%d, v%d, v%d' % (vSQ, vMEAN, vMEAN, vSQ))
    a('v_max_f32 v%d, 0, v%d' % (vSQ, vSQ))
    a('v_add_f32 v%d, %s, v%d' % (vSQ, f32(EPS), vSQ))
    a('v_rsq_f32 v%d, v%d' % (vRSTD, vSQ))
    a('v_mul_f32 v%d, %s, v%d' % (vSC, f32(QSCALE), vRSTD))
    a('s_mul_i32 s33, s18, 160')
    a('v_mul_u32_u24 v%d, 1152, v%d' % (vSOFF, vROW))
    a('v_lshl_add_u32 v%d, v%d, 3, v%d' % (vSOFF, vG, vSOFF))
    a('v_add_u32 v%d, s33, v%d' % (vSOFF, vSOFF))
    a('s_waitcnt vmcnt(0) lgkmcnt(0)')
    a('s_barrier')
    a('s_cmp_lg_u32 s20, 0')
    a('s_cbranch_scc1 K1_HF1')
    txt = a.finish()

    b = gen_main_block([0, 1, 2], False, 'K1_A')
    b('s_cmp_eq_u32 s18, 7')
    b('s_cbranch_scc1 K1_A_KV')
    txtA = b.finish()
    b = Asm()
    b('s_nop 7')
    for ti in range(3):
        epi_T(b, ti, vSC)
        b('buffer_store_dwordx2 v[%d:%d], v%d, s[28:31], 0 offen offset:%d' % (vT0, vT0 + 1, vSOFF, ti * 32))
        b('s_nop 0')
    b('s_endpgm')
    txtA += b.finish()
    b = Asm()
    b.label('K1_A_KV')
    b('s_nop 7')
    epi_T(b, 0, vSC)
    b('buffer_store_dwordx2 v[%d:%d], v%d, s[28:31], 0 offen' % (vT0, vT0 + 1, vSOFF))
    kb = 28
    b('v_lshrrev_b32 v%d, 9, v%d' % (kb, vROW))
    b('v_mul_u32_u24 v%d, %d, v%d' % (kb, KV_CHUNK, kb))
    b('v_bfe_u32 v%d, v%d, 5, 4' % (kb + 1, vROW))
    b('v_mul_u32_u24 v%d, 1152, v%d' % (kb + 1, kb + 1))
    b('v_add_u32 v%d, v%d, v%d' % (kb, kb, kb + 1))
    b('v_add_u32 v%d, 0x%x, v%d' % (kb, WS_KV, kb))
    b('v_and_b32 v%d, 31, v%d' % (kb + 1, vROW))
    b('v_lshrrev_b32 v%d, 1, v%d' % (kb + 2, vG))
    b('v_lshl_add_u32 v%d, v%d, 5, v%d' % (kb + 2, kb + 2, kb + 1))
    b('v_lshl_add_u32 v%d, v%d, 4, v%d' % (kb + 2, kb + 2, kb))
    b('v_and_b32 v%d, 1, v%d' % (kb + 3, vG))
    b('v_lshl_add_u32 v%d, v%d, 3, v%d' % (kb + 2, kb + 3, kb + 2))
    epi_T(b, 1, vRSTD)
    b('buffer_store_dwordx2 v[%d:%d], v%d, s[28:31], 0 offen' % (vT0, vT0 + 1, kb + 2))
    epi_T(b, 2, vRSTD)
    b('v_lshl_add_u32 v%d, v%d, 2, v%d' % (kb + 2, kb + 1, kb))
    b('v_cmp_eq_u32 vcc, 1, v%d' % vG)
    b('s_and_saveexec_b64 s[36:37], vcc')
    b('buffer_store_dword v%d, v%d, s[28:31], 0 offen offset:1024' % (vT0 + 1, kb + 2))
    b('s_endpgm')
    txtA += b.finish()

    b = Asm()
    b.label('K1_HF1')
    b('s_cmp_eq_u32 s18, 7')
    b('s_cbranch_scc1 K1_BV')
    txtB = b.finish()
    b = gen_main_block([3, 4], False, 'K1_B')
    b('s_nop 7')
    for ti in range(2):
        epi_T(b, ti, vSC)
        b('buffer_store_dwordx2 v[%d:%d], v%d, s[28:31], 0 offen offset:%d' % (vT0, vT0 + 1, vSOFF, (3 + ti) * 32))
        b('s_nop 0')
    b('s_endpgm')
    txtB += b.finish()
    b = gen_main_block([3, 4], True, 'K1_BV')
    b('v_lshlrev_b32 v%d, 4, v%d' % (vT0, vG))
    for r in range(4):
        b('v_add_u32 v%d, %d, v%d' % (vT1, 4 * r, vT0))
        b('ds_bpermute_b32 v%d, v%d, v%d' % (vRR + r, vT1, vRSTD))
    for r in range(4):
        b('v_mul_f32 v%d, %s, v%d' % (vMR + r, f32(1.0 / 576), SUMR + r))
    b('s_lshr_b32 s33, s23, 4')
    b('s_lshr_b32 s34, s33, 5')
    b('s_mul_i32 s34, s34, %d' % KV_CHUNK)
    b('s_and_b32 s33, s33, 31')
    b('s_mul_i32 s33, s33, 608')
    b('s_add_u32 s33, s33, s34')
    b('s_add_u32 s33, s33, 0x%x' % (WS_KV + KV_VOFF))
    vb = 28
    b('v_and_b32 v%d, 1, v%d' % (vb, vG))
    b('v_mul_u32_u24 v%d, 19, v%d' % (vb, vb))
    b('v_add_u32 v%d, v%d, v%d' % (vb, vb, vN))
    b('v_lshlrev_b32 v%d, 4, v%d' % (vb, vb))
    b('v_lshrrev_b32 v%d, 1, v%d' % (vb + 1, vG))
    b('v_lshl_add_u32 v%d, v%d, 3, v%d' % (vb, vb + 1, vb))
    b('v_add_u32 v%d, s33, v%d' % (vb, vb))
    def epi_V(ti):
        for r in range(4):
            b('v_fma_f32 v%d, -v%d, v%d, v%d' % (vT2 + r, vMR + r, CS + 4 * ti + r, ACC + 4 * ti + r))
        for r in range(4):
            b('v_mul_f32 v%d, v%d, v%d' % (vT2 + r, vT2 + r, vRR + r))
        b('v_cvt_pk_bf16_f32 v%d, v%d, v%d' % (vT0, vT2, vT2 + 1))
        b('v_cvt_pk_bf16_f32 v%d, v%d, v%d' % (vT0 + 1, vT2 + 2, vT2 + 3))
    epi_V(0)
    b('buffer_store_dwordx2 v[%d:%d], v%d, s[28:31], 0 offen' % (vT0, vT0 + 1, vb))
    b('s_nop 0')
    epi_V(1)
    b('v_cmp_eq_u32 vcc, 8, v%d' % vN)
    b('v_mov_b32 v%d, 0x3f803f80' % vT2)
    b('v_cndmask_b32 v%d, v%d, v%d, vcc' % (vT0, vT0, vT2))
    b('v_cndmask_b32 v%d, v%d, v%d, vcc' % (vT0 + 1, vT0 + 1, vT2))
    b('v_add_u32 v%d, 160, v%d' % (vb, vb))
    b('v_add_u32 v%d, -6, v%d' % (vT2, vN))
    b('v_cmp_gt_u32 vcc, 3, v%d' % vT2)
    b('s_and_saveexec_b64 s[36:37], vcc')
    b('buffer_store_dwordx2 v[%d:%d], v%d, s[28:31], 0 offen' % (vT0, vT0 + 1, vb))
    b('s_endpgm')
    txtB += b.finish()
    end = 'K1_END:\n  s_endpgm\n'
    return kernel_header(name) + txt + txtA + txtB + end, kernel_desc(name, 176, 64), (256, 512, LDS_K1)
```

```python
from asmgen import *
from common import *

LDS_K2 = 4 * KV_CHUNK
Q1, Q2 = 8, 12
SB = [16, 32]
P = 48
O = 56
K1B = [72, 76]
K2B = [80, 82]
VB = [84, 92]
vK1A, vK2A, vVA = 100, 101, 102
vLANE, vHI, vQ = 1, 2, 3
vT = 104
vOOFF = 4
vM, vMX, vAL = 112, 113, 114

def kreads(a, tile15, buf):
    a('ds_read_b128 v[%d:%d], v%d offset:%d' % (K1B[buf], K1B[buf] + 3, vK1A, tile15 * 1152))
    a('ds_read_b32 v%d, v%d offset:%d' % (K2B[buf], vK2A, tile15 * 1152))
def vreads(a, tile15, buf):
    a('ds_read_b128 v[%d:%d], v%d offset:%d' % (VB[buf], VB[buf] + 3, vVA, tile15 * 1216))
    a('ds_read_b128 v[%d:%d], v%d offset:%d' % (VB[buf] + 4, VB[buf] + 7, vVA, tile15 * 1216 + 608))

def gen_k2(name='k2_kernel'):
    a = Asm()
    a('s_load_dwordx2 s[12:13], s[0:1], 88')
    a('s_cmp_ge_u32 s2, 256')
    a('s_cbranch_scc1 K2_END')
    a('v_and_b32 v%d, 63, v0' % vLANE)
    a('v_lshrrev_b32 v%d, 6, v0' % vT)
    a('v_readfirstlane_b32 s16, v%d' % vT)
    a('v_and_b32 v%d, 31, v%d' % (vQ, vLANE))
    a('v_lshrrev_b32 v%d, 5, v%d' % (vHI, vLANE))
    a('s_lshl_b32 s17, s2, 3')
    a('s_add_u32 s17, s17, s16')
    a('s_mul_i32 s18, s17, 1152')
    a('v_mul_u32_u24 v%d, 36, v%d' % (vOOFF, vQ))
    a('v_add_u32 v%d, s18, v%d' % (vOOFF, vOOFF))
    a('v_lshl_add_u32 v%d, v%d, 4, v%d' % (vT, vHI, vOOFF))
    a('v_lshlrev_b32 v%d, 4, v0' % (vT + 1))
    a('s_waitcnt lgkmcnt(0)')
    srd(a, 24, 12, 13, WS_KV)
    srd_off(a, 28, 12, 13, WS_KV, 4 * KV_CHUNK)
    srd_off(a, 32, 12, 13, WS_O, S * D * 2)
    a('buffer_load_dwordx4 v[%d:%d], v%d, s[24:27], 0 offen' % (Q1, Q1 + 3, vT))
    a('buffer_load_dword v%d, v%d, s[24:27], 0 offen offset:32' % (Q2, vOOFF))
    a('s_lshl_b32 s19, s16, 10')
    for c in range(4):
        for i in range(5):
            off = c * KV_CHUNK + i * 8192
            a('s_add_u32 m0, s19, %d' % off)
            a('s_mov_b32 s20, %d' % off)
            a('buffer_load_dwordx4 v%d, s[28:31], s20 offen lds' % (vT + 1), tag='kv%d' % c)
    a('v_lshlrev_b32 v%d, 4, v%d' % (vK1A, vLANE))
    a('v_lshlrev_b32 v%d, 2, v%d' % (vK2A, vQ))
    a('v_add_u32 v%d, 1024, v%d' % (vK2A, vK2A))
    a('v_mov_b32 v%d, v%d' % (vT + 2, vQ))
    a('v_cmp_lt_u32 vcc, 18, v%d' % vQ)
    a('v_cndmask_b32 v%d, v%d, 4, vcc' % (vT + 2, vT + 2))
    a('v_add_u32 v%d, -20, v%d' % (vT + 3, vQ))
    a('v_cmp_gt_u32 vcc, 8, v%d' % (vT + 3))
    a('v_cndmask_b32 v%d, v%d, 0, vcc' % (vT + 2, vT + 2))
    a('v_mul_u32_u24 v%d, 19, v%d' % (vT + 3, vHI))
    a('v_add_u32 v%d, v%d, v%d' % (vT + 2, vT + 2, vT + 3))
    a('v_lshlrev_b32 v%d, 4, v%d' % (vVA, vT + 2))
    a('v_add_u32 v%d, %d, v%d' % (vVA, KV_VOFF, vVA))
    for b in range(2):
        a('v_mov_b32 v%d, 0' % (K2B[b] + 1))
    for r in range(16):
        a('v_mov_b32 v%d, 0' % (O + r))
    a('v_mov_b32 v%d, 0' % (Q2 + 1))
    a('v_cmp_eq_u32 vcc, 0, v%d' % vHI)
    a('v_cndmask_b32 v%d, 0, v%d, vcc' % (Q2, Q2))
    a.wait_vm('kv0')
    a('s_barrier')
    kreads(a, 0, 0)
    kreads(a, 1, 1)
    vreads(a, 0, 0)
    a(mfma32k8(SB[0], K2B[0], Q2, '0'))
    a(mfma32(SB[0], K1B[0], Q1))
    a('s_mov_b32 s21, 0')
    a('s_mov_b32 s23, %d' % (-3 * KV_CHUNK))
    a('s_mov_b32 s42, %d' % KV_CHUNK)
    a('s_nop 9')
    a.loop_begin('K2_LOOP')
    a('s_cmp_eq_u32 s21, 3')
    a('s_cselect_b32 s22, s23, s42')
    for tl in range(16):
        cur = tl & 1; nxt = cur ^ 1
        Sc = SB[cur]; Sn = SB[nxt]
        if tl == 14:
            a('s_cmp_lg_u32 s21, 0')
            a('s_cbranch_scc1 K2_NOBAR')
            a.opt_begin()
            a('s_waitcnt vmcnt(0)')
            a('s_barrier')
            a.opt_end()
            a.label('K2_NOBAR')
            a('v_add_u32 v%d, s22, v%d' % (vK1A, vK1A))
            a('v_add_u32 v%d, s22, v%d' % (vK2A, vK2A))
        if tl == 15:
            a('v_add_u32 v%d, s22, v%d' % (vVA, vVA))
        a(mfma32k8(Sn, K2B[nxt], Q2, '0'))
        for r in range(0, 4): a('v_exp_f32 v%d, v%d' % (Sc + r, Sc + r))
        a(mfma32(Sn, K1B[nxt], Q1))
        for r in range(4, 6): a('v_exp_f32 v%d, v%d' % (Sc + r, Sc + r))
        kreads(a, (tl + 2) & 15, cur)
        vreads(a, (tl + 1) & 15, nxt)
        a('v_cvt_pk_bf16_f32 v%d, v%d, v%d' % (P + 0, Sc + 0, Sc + 1))
        for r in range(6, 8): a('v_exp_f32 v%d, v%d' % (Sc + r, Sc + r))
        a('v_cvt_pk_bf16_f32 v%d, v%d, v%d' % (P + 1, Sc + 2, Sc + 3))
        a('v_cvt_pk_bf16_f32 v%d, v%d, v%d' % (P + 2, Sc + 4, Sc + 5))
        for r in range(8, 10): a('v_exp_f32 v%d, v%d' % (Sc + r, Sc + r))
        a('v_cvt_pk_bf16_f32 v%d, v%d, v%d' % (P + 3, Sc + 6, Sc + 7))
        for r in range(10, 12): a('v_exp_f32 v%d, v%d' % (Sc + r, Sc + r))
        a(mfma32(O, VB[cur], P))
        for r in range(12, 14): a('v_exp_f32 v%d, v%d' % (Sc + r, Sc + r))
        a('v_cvt_pk_bf16_f32 v%d, v%d, v%d' % (P + 4, Sc + 8, Sc + 9))
        for r in range(14, 16): a('v_exp_f32 v%d, v%d' % (Sc + r, Sc + r))
        a('v_cvt_pk_bf16_f32 v%d, v%d, v%d' % (P + 5, Sc + 10, Sc + 11))
        a('v_cvt_pk_bf16_f32 v%d, v%d, v%d' % (P + 6, Sc + 12, Sc + 13))
        a('v_cvt_pk_bf16_f32 v%d, v%d, v%d' % (P + 7, Sc + 14, Sc + 15))
        a(mfma32(O, VB[cur] + 4, P + 4))
    a('s_add_u32 s21, s21, 1')
    a('s_cmp_lt_u32 s21, 4')
    a.loop_end('s_cbranch_scc1 K2_LOOP')
    a('v_mov_b32 v%d, v%d' % (vT, O + 10))
    a('v_mov_b32 v%d, v%d' % (vT + 1, O + 10))
    a('v_permlane32_swap_b32 v%d, v%d' % (vT, vT + 1))
    a('v_max3_f32 v%d, |v%d|, |v%d|, |v%d|' % (vT + 2, O, O + 1, O + 2))
    a('v_max3_f32 v%d, |v%d|, |v%d|, v%d' % (vT + 2, O + 3, O + 4, vT + 2))
    a('v_max3_f32 v%d, |v%d|, |v%d|, v%d' % (vT + 2, O + 5, O + 6, vT + 2))
    a('v_max3_f32 v%d, |v%d|, |v%d|, v%d' % (vT + 2, O + 7, O + 8, vT + 2))
    a('v_max_f32 v%d, |v%d|, v%d' % (vT + 2, O + 9, vT + 2))
    a('v_cmp_lt_f32 vcc, %s, v%d' % (f32(2.0 ** -60), vT))
    a('s_mov_b32 s38, %s' % f32(2.0 ** 60))
    a('s_mov_b32 s39, %s' % f32(2.0 ** 120))
    a('v_cmp_gt_f32 s[36:37], s38, v%d' % vT)
    a('v_cmp_gt_f32 s[40:41], s39, v%d' % (vT + 2))
    a('s_and_b64 s[36:37], s[36:37], vcc')
    a('s_and_b64 s[36:37], s[36:37], s[40:41]')
    a('s_cmp_eq_u64 s[36:37], -1')
    a('s_cbranch_scc0 K2_SLOW')
    t1 = a.finish()

    a = Asm()
    a.label('K2_FIN')
    a('v_rcp_f32 v%d, v%d' % (vT, vT))
    for r in range(10):
        a('v_mul_f32 v%d, v%d, v%d' % (O + r, O + r, vT))
    for i in range(5):
        a('v_cvt_pk_bf16_f32 v%d, v%d, v%d' % (P + i, O + 2 * i, O + 2 * i + 1))
    a('s_lshr_b32 s22, s16, 1')
    a('s_mul_i32 s22, s22, %d' % KV_CHUNK)
    a('s_and_b32 s23, s16, 1')
    a('s_mul_i32 s23, s23, 1168')
    a('s_add_u32 s22, s22, s23')
    a('s_add_u32 s22, s22, %d' % (KV_CHUNK - 3072))
    a('v_mul_u32_u24 v%d, 36, v%d' % (vT + 1, vQ))
    a('v_add_u32 v%d, s22, v%d' % (vT + 1, vT + 1))
    a('v_lshl_add_u32 v%d, v%d, 3, v%d' % (vT + 2, vHI, vT + 1))
    a('ds_write2_b32 v%d, v%d, v%d offset0:0 offset1:1' % (vT + 2, P, P + 1))
    a('ds_write2_b32 v%d, v%d, v%d offset0:4 offset1:5' % (vT + 2, P + 2, P + 3))
    a('s_mov_b32 exec_hi, 0')
    a('ds_write_b32 v%d, v%d offset:32' % (vT + 1, P + 4))
    a('s_mov_b32 exec_hi, -1')
    a('s_waitcnt lgkmcnt(0)')
    a('s_barrier')
    def out_units(ireg):
        a('v_and_b32 v%d, 7, v%d' % (vT + 3, vLANE))
        a('v_bfe_u32 v%d, v%d, 3, 2' % (vT + 4, vLANE))
        a('v_lshrrev_b32 v%d, 5, v%d' % (vT + 5, vLANE))
        a('s_lshl_b32 s23, %s, 1' % ireg)
        a('v_add_u32 v%d, s23, v%d' % (vT + 5, vT + 5))
        a('v_lshrrev_b32 v%d, 1, v%d' % (vT + 6, vT + 3))
        a('v_mul_u32_u24 v%d, %d, v%d' % (vT + 6, KV_CHUNK, vT + 6))
        a('v_and_b32 v%d, 1, v%d' % (vT + 7, vT + 3))
        a('v_mul_u32_u24 v%d, 1168, v%d' % (vT + 7, vT + 7))
        a('v_add3_u32 v%d, v%d, v%d, s47' % (vT + 6, vT + 6, vT + 7))
        a('v_lshl_add_u32 v%d, v%d, 6, v%d' % (vT + 6, vT + 5, vT + 6))
        a('v_lshl_add_u32 v%d, v%d, 4, v%d' % (vT + 6, vT + 4, vT + 6))
        a('ds_read_b128 v[%d:%d], v%d' % (P, P + 3, vT + 6))
        a('v_lshlrev_b32 v%d, 10, v%d' % (vT + 7, vT + 5))
        a('v_lshl_add_u32 v%d, v%d, 8, v%d' % (vT + 7, vT + 4, vT + 7))
        a('v_lshl_add_u32 v%d, v%d, 4, v%d' % (vT + 7, vT + 3, vT + 7))
        a('buffer_store_dwordx4 v[%d:%d], v%d, s[32:35], s48 offen' % (P, P + 3, vT + 7))
    a('s_mov_b32 s47, %d' % (KV_CHUNK - 3072))
    a('s_lshr_b32 s48, s2, 1')
    a('s_mul_i32 s48, s48, 18432')
    a('s_and_b32 s49, s2, 1')
    a('s_lshl_b32 s49, s49, 7')
    a('s_add_u32 s48, s48, s49')
    out_units('s16')
    a('s_cmp_lg_u32 s16, 0')
    a('s_cbranch_scc1 K2_DONE')
    a('s_mov_b32 s50, 8')
    out_units('s50')
    a.label('K2_DONE')
    a('s_endpgm')
    t2 = a.finish()

    a = Asm()
    a.label('K2_SLOW')
    a('v_lshlrev_b32 v%d, 4, v%d' % (vK1A, vLANE))
    a('v_lshlrev_b32 v%d, 2, v%d' % (vK2A, vQ))
    a('v_add_u32 v%d, 1024, v%d' % (vK2A, vK2A))
    for r in range(16):
        a('v_mov_b32 v%d, 0' % (O + r))
    a('v_mov_b32 v%d, %s' % (vM, f32(-3.0e38)))
    a('s_mov_b32 s43, %d' % (KV_CHUNK - 15 * 1152))
    a('s_mov_b32 s44, 1152')
    a('s_mov_b32 s45, %d' % (KV_CHUNK - 15 * 1216))
    a('s_mov_b32 s46, 1216')
    a('s_mov_b32 s21, 0')
    Sc = SB[0]
    a.loop_begin('K2_SLOOP')
    kreads(a, 0, 0)
    vreads(a, 0, 0)
    a(mfma32k8(Sc, K2B[0], Q2, '0'))
    a(mfma32(Sc, K1B[0], Q1))
    a('v_max3_f32 v%d, v%d, v%d, v%d' % (vMX, Sc, Sc + 1, Sc + 2))
    for r in range(3, 15, 2):
        a('v_max3_f32 v%d, v%d, v%d, v%d' % (vMX, Sc + r, Sc + r + 1, vMX))
    a('v_max_f32 v%d, v%d, v%d' % (vMX, Sc + 15, vMX))
    a('v_mov_b32 v%d, v%d' % (vAL, vMX))
    a('v_permlane32_swap_b32 v%d, v%d' % (vMX, vAL))
    a('v_max3_f32 v%d, v%d, v%d, v%d' % (vMX, vMX, vAL, vM))
    a('v_sub_f32 v%d, v%d, v%d' % (vAL, vM, vMX))
    a('v_exp_f32 v%d, v%d' % (vAL, vAL))
    a('v_mov_b32 v%d, v%d' % (vM, vMX))
    for r in range(16):
        a('v_sub_f32 v%d, v%d, v%d' % (Sc + r, Sc + r, vM))
    for r in range(16):
        a('v_exp_f32 v%d, v%d' % (Sc + r, Sc + r))
    for r in range(16):
        a('v_mul_f32 v%d, v%d, v%d' % (O + r, O + r, vAL))
    for i in range(8):
        a('v_cvt_pk_bf16_f32 v%d, v%d, v%d' % (P + i, Sc + 2 * i, Sc + 2 * i + 1))
    a(mfma32(O, VB[0], P))
    a(mfma32(O, VB[0] + 4, P + 4))
    a('s_add_u32 s21, s21, 1')
    a('s_and_b32 s22, s21, 15')
    a('s_cmp_eq_u32 s22, 0')
    a('s_cselect_b32 s22, s43, s44')
    a('s_cselect_b32 s23, s45, s46')
    a('v_add_u32 v%d, s22, v%d' % (vK1A, vK1A))
    a('v_add_u32 v%d, s22, v%d' % (vK2A, vK2A))
    a('v_add_u32 v%d, s23, v%d' % (vVA, vVA))
    a('s_cmp_lt_u32 s21, 64')
    a.loop_end('s_cbranch_scc1 K2_SLOOP')
    a('v_mov_b32 v%d, v%d' % (vT, O + 10))
    a('v_mov_b32 v%d, v%d' % (vT + 1, O + 10))
    a('v_permlane32_swap_b32 v%d, v%d' % (vT, vT + 1))
    a('s_nop 1')
    a('s_branch K2_FIN')
    t3 = a.finish()
    end = 'K2_END:\n  s_endpgm\n'
    return kernel_header(name) + t1 + t2 + t3 + end, kernel_desc(name, 128, 64), (256, 512, LDS_K2)
```

```python
from asmgen import *
from common import *
LDS_K3 = 576 * 192
X = 32
FR = 108
ACC = 132
XR = 144
vLANE, vG, vN, vROW = 1, 2, 3, 4
vT = 10
vRB = 24
vD = 6
vS1, vS2 = 28, 29
ONE = 30

def gen_k3(name='k3_kernel'):
    a = Asm()
    a('s_load_dwordx2 s[4:5], s[0:1], 0')
    a('s_load_dwordx2 s[6:7], s[0:1], 32')
    a('s_load_dwordx2 s[12:13], s[0:1], 88')
    a('s_cmp_ge_u32 s2, 192')
    a('s_cbranch_scc1 K3_END')
    a('v_and_b32 v%d, 63, v0' % vLANE)
    a('v_lshrrev_b32 v%d, 6, v0' % vT)
    a('v_readfirstlane_b32 s16, v%d' % vT)
    a('s_and_b32 s19, s16, 3')
    a('s_lshr_b32 s20, s16, 2')
    a('s_and_b32 s21, s2, 7')
    a('s_lshr_b32 s22, s2, 3')
    a('s_and_b32 s22, s22, 3')
    a('s_lshl_b32 s22, s22, 3')
    a('s_add_u32 s17, s21, s22')
    a('s_lshr_b32 s18, s2, 5')
    a('v_and_b32 v%d, 15, v%d' % (vN, vLANE))
    a('v_lshrrev_b32 v%d, 4, v%d' % (vG, vLANE))
    a('s_lshl_b32 s23, s17, 2')
    a('s_add_u32 s23, s23, s19')
    a('s_lshl_b32 s33, s23, 4')
    a('v_add_u32 v%d, s33, v%d' % (vROW, vN))
    a('v_lshlrev_b32 v%d, 4, v%d' % (vT, vLANE))
    a('s_mul_i32 s34, s23, 18432')
    a('v_mul_u32_u24 v%d, 5462, v%d' % (vT + 1, vLANE))
    a('v_lshrrev_b32 v%d, 16, v%d' % (vT + 1, vT + 1))
    a('v_mul_u32_u24 v%d, 12, v%d' % (vT + 2, vT + 1))
    a('v_sub_u32 v%d, v%d, v%d' % (vT + 2, vLANE, vT + 2))
    a('s_lshl_b32 s33, s16, 2')
    a('v_add_u32 v%d, s33, v%d' % (vT + 1, vT + 1))
    a('v_and_b32 v%d, 0x33, v%d' % (vT + 3, vT + 1))
    a('v_and_b32 v%d, 4, v%d' % (vT + 4, vT + 1))
    a('v_lshl_or_b32 v%d, v%d, 1, v%d' % (vT + 3, vT + 4, vT + 3))
    a('v_and_b32 v%d, 8, v%d' % (vT + 4, vT + 1))
    a('v_lshrrev_b32 v%d, 1, v%d' % (vT + 4, vT + 4))
    a('v_or_b32 v%d, v%d, v%d' % (vT + 3, vT + 3, vT + 4))
    a('s_and_b32 s33, s16, 1')
    a('s_lshl_b32 s33, s33, 1')
    a('v_xor_b32 v%d, s33, v%d' % (vT + 2, vT + 2))
    a('v_mul_u32_u24 v%d, 1152, v%d' % (vT + 3, vT + 3))
    a('v_lshl_add_u32 v%d, v%d, 4, v%d' % (vD, vT + 2, vT + 3))
    a('s_mul_i32 s33, s18, 192')
    a('v_add_u32 v%d, s33, v%d' % (vD, vD))
    a('s_waitcnt lgkmcnt(0)')
    srd(a, 24, 4, 5, S * D * 2)
    srd(a, 28, 6, 7, D * D * 2)
    srd_off(a, 36, 12, 13, WS_O, S * D * 2)
    srd_off(a, 40, 12, 13, WS_H, WS_HB - WS_H)
    for k in range(18):
        a('buffer_load_dwordx4 v[%d:%d], v%d, s[36:39], s34 offen offset:%d' % (X + 4 * k, X + 4 * k + 3, vT, (k % 4) * 1024), tag='x')
        if k % 4 == 3: a('s_add_u32 s34, s34, 4096')
    a('s_mul_i32 s34, s16, 768')
    a('s_mov_b32 s35, 0')
    a('s_mov_b32 exec_hi, 0x0000ffff')
    for q in range(18):
        a('s_mov_b32 m0, s34')
        a('buffer_load_dwordx4 v%d, s[28:31], s35 offen lds' % vD, tag='w')
        if q < 17:
            a('s_add_u32 s34, s34, %d' % (8 * 768))
            a('s_add_u32 s35, s35, %d' % (32 * 1152))
    a('s_mov_b32 exec_hi, -1')
    a('s_mul_i32 s33, s18, 192')
    a('s_mul_i32 s35, s20, 96')
    a('s_add_u32 s33, s33, s35')
    a('v_mul_u32_u24 v%d, 1152, v%d' % (vT, vROW))
    a('v_lshl_add_u32 v%d, v%d, 3, v%d' % (vT, vG, vT))
    for ti in range(3):
        a('buffer_load_dwordx2 v[%d:%d], v%d, s[24:27], s33 offen offset:%d' % (XR + 2 * ti, XR + 2 * ti + 1, vT, ti * 32))
    a('v_lshrrev_b32 v%d, 1, v%d' % (vT, vG))
    a('v_lshlrev_b32 v%d, 4, v%d' % (vT, vT))
    a('v_and_b32 v%d, 1, v%d' % (vT + 1, vG))
    a('v_lshl_add_u32 v%d, v%d, 2, v%d' % (vT, vT + 1, vT))
    a('v_lshrrev_b32 v%d, 2, v%d' % (vT + 2, vN))
    a('v_add_u32 v%d, v%d, v%d' % (vT, vT, vT + 2))
    a('v_mul_u32_u24 v%d, 192, v%d' % (vT, vT))
    a('v_and_b32 v%d, 3, v%d' % (vT + 2, vN))
    a('v_lshl_add_u32 v%d, v%d, 3, v%d' % (vT, vT + 2, vT))
    a('v_add_u32 v%d, s35, v%d' % (vT, vT))
    a('v_lshlrev_b32 v%d, 5, v%d' % (vT + 1, vT + 1))
    a('s_cmp_eq_u32 s20, 0')
    a('s_cselect_b32 s33, 1, -1')
    a('v_mul_lo_u32 v%d, v%d, s33' % (vT + 1, vT + 1))
    a('v_add_u32 v%d, v%d, v%d' % (vRB, vT, vT + 1))
    a('v_sub_u32 v%d, v%d, v%d' % (vRB + 1, vT, vT + 1))
    a('v_add_u32 v%d, %d, v%d' % (vRB + 2, 10 * 6144, vRB))
    a('v_add_u32 v%d, %d, v%d' % (vRB + 3, 10 * 6144, vRB + 1))
    a('v_mov_b32 v%d, 0x3f803f80' % ONE)
    a('s_waitcnt vmcnt(0)')
    a('s_barrier')
    steps = [(k, ti) for k in range(18) for ti in range(3)]
    NB = 6; PD = 5
    def reads(idx):
        k, ti = steps[idx]
        fr = FR + 4 * (idx % NB)
        base = vRB + (ti & 1) + (2 if k >= 10 else 0)
        off = (k if k < 10 else k - 10) * 6144 + ti * 32
        a('ds_read_b64_tr_b16 v[%d:%d], v%d offset:%d' % (fr, fr + 1, base, off))
        a('ds_read_b64_tr_b16 v[%d:%d], v%d offset:%d' % (fr + 2, fr + 3, base, off + 1536))
    for i in range(PD): reads(i)
    for idx, (k, ti) in enumerate(steps):
        fr = FR + 4 * (idx % NB)
        a(mfma16(ACC + 4 * ti, fr, X + 4 * k, '0' if k == 0 else None))
        if idx + PD < len(steps): reads(idx + PD)
    a('s_lshr_b32 s33, s23, 1')
    a('s_mul_i32 s33, s33, 36')
    a('s_mul_i32 s34, s18, 6')
    a('s_add_u32 s33, s33, s34')
    a('s_mul_i32 s34, s20, 3')
    a('s_add_u32 s33, s33, s34')
    a('s_lshl_b32 s33, s33, 10')
    a('v_and_b32 v%d, 31, v%d' % (vT, vROW))
    a('v_lshrrev_b32 v%d, 1, v%d' % (vT + 1, vG))
    a('v_lshl_add_u32 v%d, v%d, 5, v%d' % (vT, vT + 1, vT))
    a('v_lshlrev_b32 v%d, 4, v%d' % (vT, vT))
    a('v_and_b32 v%d, 1, v%d' % (vT + 1, vG))
    a('v_lshl_add_u32 v%d, v%d, 3, v%d' % (vD, vT + 1, vT))
    a('v_mov_b32 v%d, 0' % vS1)
    a('v_mov_b32 v%d, 0' % vS2)
    for ti in range(3):
        t0 = vT + 2
        a('v_lshlrev_b32 v%d, 16, v%d' % (t0, XR + 2 * ti))
        a('v_and_b32 v%d, 0xffff0000, v%d' % (t0 + 1, XR + 2 * ti))
        a('v_lshlrev_b32 v%d, 16, v%d' % (t0 + 2, XR + 2 * ti + 1))
        a('v_and_b32 v%d, 0xffff0000, v%d' % (t0 + 3, XR + 2 * ti + 1))
        for r in range(4):
            a('v_add_f32 v%d, v%d, v%d' % (t0 + r, t0 + r, ACC + 4 * ti + r))
        a('v_cvt_pk_bf16_f32 v%d, v%d, v%d' % (XR + 2 * ti, t0, t0 + 1))
        a('v_cvt_pk_bf16_f32 v%d, v%d, v%d' % (XR + 2 * ti + 1, t0 + 2, t0 + 3))
        a('buffer_store_dwordx2 v[%d:%d], v%d, s[40:43], s33 offen offset:%d' % (XR + 2 * ti, XR + 2 * ti + 1, vD, ti * 1024))
        for r in range(2):
            a('v_dot2_f32_bf16 v%d, v%d, v%d, v%d' % (vS1, XR + 2 * ti + r, ONE, vS1))
            a('v_dot2_f32_bf16 v%d, v%d, v%d, v%d' % (vS2, XR + 2 * ti + r, XR + 2 * ti + r, vS2))
    xlane_sum(a, vS1, vT)
    xlane_sum(a, vS2, vT)
    a('s_lshl_b32 s33, s18, 1')
    a('s_add_u32 s33, s33, s20')
    a('s_lshl_b32 s33, s33, 3')
    a('s_add_u32 s33, s33, 0x%x' % (WS_ST - WS_H))
    a('v_mul_u32_u24 v%d, 96, v%d' % (vT, vROW))
    a('v_cmp_eq_u32 vcc, 0, v%d' % vG)
    a('s_and_saveexec_b64 s[44:45], vcc')
    a('buffer_store_dwordx2 v[%d:%d], v%d, s[40:43], s33 offen' % (vS1, vS1 + 1, vT))
    a.label('K3_END')
    a('s_endpgm')
    return kernel_header(name) + a.finish(), kernel_desc(name, 152, 64), (256, 512, LDS_K3)
```

```python
import sys, importlib
sys.path.insert(0, 'gen')
HDR = open('sequential_preLN__grouped_kv_mqa__glu_gated_bilinear__prompt.s.ref').read().split('; Override launch geometry')[0]
def build(parts, path):
    out = HDR
    for t, d, (g, b, l), n in parts:
        out += '; @launch kernel=%s grid=(%d,1,1) block=(%d,1,1) lds=%d\n' % (n, g, b, l)
    out += '.amdgcn_target "amdgcn-amd-amdhsa--gfx950"\n.text\n'
    for t, d, _, n in parts: out += t
    out += '.section .rodata,"a"\n'
    for t, d, _, n in parts: out += d
    open(path, 'w').write(out)
if __name__ == '__main__':
    import k1, k2, k3, f1, f2
    parts = []
    t, d, g = k1.gen_k1(); parts.append((t, d, g, 'k1_kernel'))
    t, d, g = k2.gen_k2(); parts.append((t, d, g, 'k2_kernel'))
    t, d, g = k3.gen_k3(); parts.append((t, d, g, 'k3_kernel'))
    t, d, g = f1.gen_f1(); parts.append((t, d, g, 'f1_kernel'))
    t, d, g = f2.gen_f2(); parts.append((t, d, g, 'f2_kernel'))
    t, d, g = f2.gen_red(); parts.append((t, d, g, 'red_kernel'))
    build(parts, sys.argv[1] if len(sys.argv) > 1 else 'dev.s')
```

```python
import struct, math
def f32(x):
    return '0x%08x' % struct.unpack('<I', struct.pack('<f', x))[0]

S, D, H, DH, F = 2048, 576, 32, 18, 4608
WS_Q    = 0x0000000
WS_KV   = 0x0240000
KV_CHUNK = 40960
KV_VOFF = 18432
WS_O    = 0x0280000
WS_H    = 0x04C0000
WS_ST   = 0x0700000
WS_HB   = 0x0800000
WS_PART = 0x1A00000
WS_FLAG = 0x2C00000
WS_P1   = 0x4000000
WS_P2   = 0x4B00000
WS_P3   = 0x5040000
WS_CSP  = 0x5100000
WS_CT   = 0x5180000
WS_PEND = 0x5200000
P1_BYTES = 288 * 18 * 2 * 1024
P2_BYTES = 16 * 36 * 9 * 1024
WS_SIZE = 268435456
QSCALE = (DH ** -0.5) * math.log2(math.e)
EPS = 1e-5

def srd(a, lo, base_lo, base_hi, nbytes):
    a('s_mov_b32 s%d, s%d' % (lo, base_lo))
    a('s_mov_b32 s%d, s%d' % (lo + 1, base_hi))
    a('s_mov_b32 s%d, 0x%x' % (lo + 2, nbytes))
    a('s_mov_b32 s%d, 0x00020000' % (lo + 3))

def srd_off(a, lo, base_lo, base_hi, off, nbytes):
    a('s_add_u32 s%d, s%d, 0x%x' % (lo, base_lo, off))
    a('s_addc_u32 s%d, s%d, 0' % (lo + 1, base_hi))
    a('s_mov_b32 s%d, 0x%x' % (lo + 2, nbytes))
    a('s_mov_b32 s%d, 0x00020000' % (lo + 3))

def mfma16(d, a_, b_, c=None):
    cs = 'v[%d:%d]' % (d, d + 3) if c is None else (c if isinstance(c, str) else 'v[%d:%d]' % (c, c + 3))
    return 'v_mfma_f32_16x16x32_bf16 v[%d:%d], v[%d:%d], v[%d:%d], %s' % (d, d + 3, a_, a_ + 3, b_, b_ + 3, cs)
def mfma32(d, a_, b_, c=None):
    cs = 'v[%d:%d]' % (d, d + 15) if c is None else (c if isinstance(c, str) else 'v[%d:%d]' % (c, c + 15))
    return 'v_mfma_f32_32x32x16_bf16 v[%d:%d], v[%d:%d], v[%d:%d], %s' % (d, d + 15, a_, a_ + 3, b_, b_ + 3, cs)
def mfma32k8(d, a_, b_, c=None):
    cs = 'v[%d:%d]' % (d, d + 15) if c is None else (c if isinstance(c, str) else 'v[%d:%d]' % (c, c + 15))
    return 'v_mfma_f32_32x32x8_bf16 v[%d:%d], v[%d:%d], v[%d:%d], %s' % (d, d + 15, a_, a_ + 1, b_, b_ + 1, cs)

def xlane_sum(a, v, tmp):
    a('v_mov_b32 v%d, v%d' % (tmp, v))
    a('v_permlane16_swap_b32 v%d, v%d' % (v, tmp))
    a('v_add_f32 v%d, v%d, v%d' % (v, v, tmp))
    a('v_mov_b32 v%d, v%d' % (tmp, v))
    a('v_permlane32_swap_b32 v%d, v%d' % (v, tmp))
    a('v_add_f32 v%d, v%d, v%d' % (v, v, tmp))

STAMPS = False
WS_STAMP = 0x3000000
def stamp(a, i):
    if not STAMPS: return
    a('s_memtime s[%d:%d]' % (64 + 2 * i, 65 + 2 * i))
    a('s_waitcnt lgkmcnt(0)')
def stamp_rt(a, i):
    if not STAMPS: return
    a('s_memrealtime s[%d:%d]' % (64 + 2 * i, 65 + 2 * i))
    a('s_waitcnt lgkmcnt(0)')
def stamp_store(a, kidx, n, wave_sreg='s16', ws_lo=12, ws_hi=13):
    if not STAMPS: return
    a('s_memrealtime s[84:85]')
    a('s_waitcnt lgkmcnt(0)')
    a('s_lshl_b32 s90, s2, 3')
    a('s_add_u32 s90, s90, %s' % wave_sreg)
    a('s_lshl_b32 s90, s90, 6')
    a('s_add_u32 s90, s90, 0x%x' % (WS_STAMP + kidx * 0x20000))
    a('s_add_u32 s92, s%d, s90' % ws_lo)
    a('s_addc_u32 s93, s%d, 0' % ws_hi)
    a('s_mov_b64 s[94:95], exec')
    a('s_mov_b64 exec, 1')
    a('v_mov_b32 v250, 0')
    for i in range(n):
        a('v_mov_b32 v251, s%d' % (64 + 2 * i))
        a('global_store_dword v250, v251, s[92:93] offset:%d' % (4 * i))
    a('v_mov_b32 v251, s84')
    a('global_store_dword v250, v251, s[92:93] offset:60')
    a('v_mov_b32 v251, s82')
    a('global_store_dword v250, v251, s[92:93] offset:56')
    a('s_mov_b64 exec, s[94:95]')
```

```python
from asmgen import *
from common import *
LDS_F1 = 3 * 49152
X = 16
ACC = {'a': 160, 'b': 176}
FR = 192
NB = 8
vE = 224
vRA, vRB_, vDG, vDU, vHO = 240, 241, 242, 243, 244
vLANE, vT = 1, 2
CARRY = 3
NODMA = False
NOBAR = False
NOREAD = False
NOEPI = False

def dma_instrs(slot, sK):
    out = []
    for m in range(3):
        for mat in range(2):
            out.append(['s_add_u32 m0, s23, %d' % (slot * 49152 + mat * 24576 + m * 8192),
                        's_add_u32 s33, s%d, %d' % (sK, m * 64 * 9216),
                        ('buffer_load_dwordx4 v%d, s[%d:%d], s33 offen lds' % (vDU if mat else vDG, 28 if mat else 24, 31 if mat else 27), 'w%d' % slot)])
    return out

def epilogue(tile, sH):
    A = ACC[tile]
    ins = []
    if NOEPI: return ins
    for r in range(8):
        ins.append('v_mul_f32 v%d, v%d, v%d' % (vE + r, A + r, A + r + 8))
    for i in range(4):
        ins.append('v_cvt_pk_bf16_f32 v%d, v%d, v%d' % (vE + 8 + i, vE + 2 * i, vE + 2 * i + 1))
    ins.append('buffer_store_dwordx4 v[%d:%d], v%d, s[40:43], s%d offen' % (vE + 8, vE + 11, vHO, sH))
    return ins

def body(a, tiles, deferred):
    steps = [(sp, t, k) for sp in range(3) for t in tiles for k in range(12)]
    N = len(steps)
    per = N // 3
    bounds = {0: 0, per: 1, 2 * per: 2}
    synced = set()
    r = 0; m = 0
    side = []
    pend_dma = []
    def emit(ins):
        if isinstance(ins, tuple): a(ins[0], tag=ins[1])
        else: a(ins)
    def do_read(i):
        sp, t, k = steps[i]
        fr = FR + 4 * (i % NB)
        base = vRA if t == 'a' else vRB_
        off = k * 2048
        if NOREAD: return
        a('ds_read_b64_tr_b16 v[%d:%d], v%d offset:%d' % (fr, fr + 1, base, off))
        a('ds_read_b64_tr_b16 v[%d:%d], v%d offset:%d' % (fr + 2, fr + 3, base, off + 512))
    while m < N:
        progressed = False
        while r < N and r - m < NB - 1 + (1 if r == m else 0) and not (r in bounds and r not in synced):
            do_read(r); r += 1; progressed = True
            if r - m >= NB - 1: break
        if r < N and r in bounds and r not in synced and r - m <= (CARRY if r else 0):
            sp = bounds[r]
            assert not pend_dma
            a('s_waitcnt lgkmcnt(0)')
            a.wait_vm('w%d' % sp)
            if not NOBAR: a('s_barrier')
            d = 49152 if sp else -2 * 49152
            a('v_add_u32 v%d, %d, v%d' % (vRA, d, vRA))
            a('v_add_u32 v%d, %d, v%d' % (vRB_, d, vRB_))
            synced.add(r)
            if sp == 0:
                a('s_add_u32 s34, s21, %d' % (384 * 9216)); tgt = 2
            elif sp == 1:
                a('s_mov_b32 s34, s22'); tgt = 0
            else:
                a('s_add_u32 s34, s22, %d' % (192 * 9216)); tgt = 1
            dm = dma_instrs(tgt, 34) if not NODMA else []
            side_dma = [x for grp in dm for x in [grp]]
            pend_dma = list(side_dma)
            if sp == 0 and deferred:
                side = [[x] for x in epilogue('b', 45)]
            continue
        sp, t, k = steps[m]
        fr = FR + 4 * (m % NB)
        c0 = '0' if (sp == 0 and k == 0) else None
        a(mfma32(ACC[t], fr, X + 4 * (sp * 12 + k), c0))
        m += 1
        if pend_dma and (m % 2 == 1 or len(tiles) == 1):
            for x in pend_dma.pop(0): emit(x)
        if side and m >= 2:
            for _ in range(2):
                if side:
                    for x in side.pop(0): emit(x)
        if len(tiles) == 2 and steps[m - 1] == (2, 'a', 11):
            ea = [[x] for x in epilogue('a', 44)]
            delay_a = 2
            side_a = ea
        if len(tiles) == 2 and m - 1 > steps.index((2, 'a', 11)):
            delay_a -= 1
            if delay_a <= 0:
                for _ in range(2):
                    if side_a:
                        for x in side_a.pop(0): emit(x)
    assert not pend_dma and not side
    if len(tiles) == 2:
        for g in side_a:
            for x in g: emit(x)
    elif tiles == ['a']:
        for x in epilogue('a', 44): emit(x)

def gen_f1(name='f1_kernel'):
    a = Asm()
    stamp(a, 0); stamp_rt(a, 9)
    a('s_load_dwordx4 s[4:7], s[0:1], 48')
    a('s_load_dwordx2 s[12:13], s[0:1], 88')
    a('s_cmp_ge_u32 s2, 256')
    a('s_cbranch_scc1 F1_END')
    a('v_and_b32 v%d, 63, v0' % vLANE)
    a('v_lshrrev_b32 v%d, 6, v0' % vT)
    a('v_readfirstlane_b32 s16, v%d' % vT)
    a('s_and_b32 s17, s16, 3')
    a('s_lshr_b32 s18, s16, 2')
    a('s_lshr_b32 s19, s2, 4')
    a('s_and_b32 s20, s2, 7')
    a('s_lshl_b32 s20, s20, 1')
    a('s_bfe_u32 s33, s2, 0x10003')
    a('s_add_u32 s20, s20, s33')
    a('s_lshl_b32 s46, s19, 2')
    a('s_add_u32 s46, s46, s17')
    a('s_mul_i32 s34, s46, %d' % (36 * 1024))
    a('v_lshlrev_b32 v%d, 4, v%d' % (vT, vLANE))
    a('v_and_b32 v%d, 31, v%d' % (vT + 1, vLANE))
    a('v_lshrrev_b32 v%d, 5, v%d' % (vT + 2, vLANE))
    a('s_lshl_b32 s33, s46, 5')
    a('v_add_u32 v%d, s33, v%d' % (vT + 3, vT + 1))
    a('v_mul_u32_u24 v%d, 96, v%d' % (vT + 3, vT + 3))
    a('v_mul_u32_u24 v%d, 48, v%d' % (vT + 4, vT + 2))
    a('v_add_u32 v%d, v%d, v%d' % (vT + 3, vT + 3, vT + 4))
    a('v_lshrrev_b32 v%d, 3, v%d' % (vT + 4, vLANE))
    a('v_and_b32 v%d, 7, v%d' % (vT + 5, vLANE))
    a('v_bfe_u32 v%d, v%d, 1, 1' % (vT + 6, vT + 4))
    a('v_lshlrev_b32 v%d, 1, v%d' % (vT + 6, vT + 6))
    a('v_xor_b32 v%d, v%d, v%d' % (vT + 5, vT + 5, vT + 6))
    a('s_lshl_b32 s33, s16, 3')
    a('v_add_u32 v%d, s33, v%d' % (vT + 4, vT + 4))
    a('v_mul_u32_u24 v%d, 9216, v%d' % (vT + 4, vT + 4))
    a('v_lshl_add_u32 v%d, v%d, 4, v%d' % (vDG, vT + 5, vT + 4))
    a('v_xor_b32 v%d, 4, v%d' % (vT + 5, vT + 5))
    a('v_lshl_add_u32 v%d, v%d, 4, v%d' % (vDU, vT + 5, vT + 4))
    a('s_mul_i32 s21, s20, 576')
    a('s_and_b32 s33, s20, 1')
    a('s_lshl_b32 s33, s33, 6')
    a('s_sub_u32 s21, s21, s33')
    a('s_lshl_b32 s23, s16, 10')
    a('s_waitcnt lgkmcnt(0)')
    srd(a, 24, 4, 5, D * F * 2)
    srd(a, 28, 6, 7, D * F * 2)
    srd_off(a, 36, 12, 13, WS_H, WS_HB - WS_H)
    srd_off(a, 40, 12, 13, WS_HB, WS_FLAG - WS_HB)
    SB = vE
    a('s_mov_b32 s35, 0x%x' % (WS_ST - WS_H))
    for i in range(3):
        a('buffer_load_dwordx4 v[%d:%d], v%d, s[36:39], s35 offen offset:%d' % (SB + 4 * i, SB + 4 * i + 3, vT + 3, 16 * i))
    for k in range(36):
        a('buffer_load_dwordx4 v[%d:%d], v%d, s[36:39], s34 offen offset:%d' % (X + 4 * k, X + 4 * k + 3, vT, (k % 4) * 1024))
        if k % 4 == 3: a('s_add_u32 s34, s34, 4096')
    a('s_mov_b32 s34, s21')
    for grp in dma_instrs(0, 34):
        for x in grp:
            if isinstance(x, tuple): a(x[0], tag=x[1])
            else: a(x)
    a('s_add_u32 s34, s21, %d' % (192 * 9216))
    for grp in dma_instrs(1, 34):
        for x in grp:
            if isinstance(x, tuple): a(x[0], tag=x[1])
            else: a(x)
    a('v_lshrrev_b32 v%d, 4, v%d' % (vT + 4, vLANE))
    a('v_and_b32 v%d, 1, v%d' % (vT + 5, vT + 4))
    a('v_lshrrev_b32 v%d, 1, v%d' % (vT + 6, vT + 4))
    a('v_and_b32 v%d, 15, v%d' % (vT + 7, vLANE))
    a('v_lshrrev_b32 v%d, 2, v%d' % (vT + 8, vT + 7))
    a('v_lshl_add_u32 v%d, v%d, 3, v%d' % (vT + 8, vT + 6, vT + 8))
    a('v_lshlrev_b32 v%d, 7, v%d' % (vT + 8, vT + 8))
    a('v_mul_u32_u24 v%d, 24576, v%d' % (vT + 9, vT + 5))
    a('v_add_u32 v%d, v%d, v%d' % (vT + 8, vT + 8, vT + 9))
    a('v_and_b32 v%d, 3, v%d' % (vT + 9, vT + 7))
    a('v_lshl_add_u32 v%d, v%d, 3, v%d' % (vT + 8, vT + 9, vT + 8))
    a('v_bfe_u32 v%d, v%d, 3, 1' % (vT + 9, vT + 7))
    a('v_lshl_add_u32 v%d, v%d, 1, v%d' % (vT + 9, vT + 5, vT + 9))
    a('v_xor_b32 v%d, s18, v%d' % (vT + 10, vT + 9))
    a('v_lshl_add_u32 v%d, v%d, 5, v%d' % (vRA, vT + 10, vT + 8))
    a('v_xor_b32 v%d, 2, v%d' % (vT + 10, vT + 10))
    a('v_lshl_add_u32 v%d, v%d, 5, v%d' % (vRB_, vT + 10, vT + 8))
    a('v_add_u32 v%d, %d, v%d' % (vRA, 2 * 49152, vRA))
    a('v_add_u32 v%d, %d, v%d' % (vRB_, 2 * 49152, vRB_))
    a('v_bfe_u32 v%d, v%d, 4, 1' % (vT + 4, vLANE))
    a('v_lshlrev_b32 v%d, 10, v%d' % (vT + 4, vT + 4))
    a('s_lshl_b32 s33, s18, 1')
    a('v_add_u32 v%d, s33, v%d' % (vT + 5, vT + 2))
    a('v_lshlrev_b32 v%d, 4, v%d' % (vT + 5, vT + 5))
    a('v_and_b32 v%d, 15, v%d' % (vT + 6, vLANE))
    a('v_add_u32 v%d, v%d, v%d' % (vT + 5, vT + 5, vT + 6))
    a('v_lshl_add_u32 v%d, v%d, 4, v%d' % (vHO, vT + 5, vT + 4))
    stamp(a, 1)
    m_, q_ = vT + 4, vT + 5
    a('v_add_f32 v%d, v%d, v%d' % (m_, SB, SB + 2))
    a('v_add_f32 v%d, v%d, v%d' % (q_, SB + 1, SB + 3))
    for i in range(1, 3):
        a('v_add_f32 v%d, v%d, v%d' % (m_, m_, SB + 4 * i))
        a('v_add_f32 v%d, v%d, v%d' % (q_, q_, SB + 4 * i + 1))
        a('v_add_f32 v%d, v%d, v%d' % (m_, m_, SB + 4 * i + 2))
        a('v_add_f32 v%d, v%d, v%d' % (q_, q_, SB + 4 * i + 3))
    for v in (m_, q_):
        a('v_mov_b32 v%d, v%d' % (vT + 6, v))
        a('v_permlane32_swap_b32 v%d, v%d' % (v, vT + 6))
        a('v_add_f32 v%d, v%d, v%d' % (v, v, vT + 6))
    a('v_mul_f32 v%d, %s, v%d' % (m_, f32(1.0 / 576), m_))
    a('v_mul_f32 v%d, %s, v%d' % (q_, f32(1.0 / 576), q_))
    a('v_fma_f32 v%d, -v%d, v%d, v%d' % (q_, m_, m_, q_))
    a('v_max_f32 v%d, 0, v%d' % (q_, q_))
    a('v_add_f32 v%d, %s, v%d' % (q_, f32(EPS), q_))
    a('v_rsq_f32 v%d, v%d' % (q_, q_))
    a('v_mul_f32 v%d, v%d, v%d' % (m_, m_, q_))
    a('v_sub_f32 v%d, 0, v%d' % (m_, m_))
    for i in range(144):
        t0 = vE + 2 * (i % 4)
        a('v_lshlrev_b32 v%d, 16, v%d' % (t0, X + i))
        a('v_and_b32 v%d, 0xffff0000, v%d' % (t0 + 1, X + i))
        a('v_fma_f32 v%d, v%d, v%d, v%d' % (t0, t0, q_, m_))
        a('v_fma_f32 v%d, v%d, v%d, v%d' % (t0 + 1, t0 + 1, q_, m_))
        a('v_cvt_pk_bf16_f32 v%d, v%d, v%d' % (X + i, t0, t0 + 1))
    stamp(a, 2)
    a('s_mul_i32 s47, s46, %d' % (144 * 2048))
    a('s_lshl_b32 s33, s2, 3')
    a('s_add_u32 s33, s33, s16')
    a('s_lshl_b32 s33, s33, 12')
    a('s_add_u32 s45, s33, 0x%x' % (WS_PART - WS_HB))
    a('s_add_u32 s22, s21, 128')
    a('s_lshl_b32 s44, s21, 5')
    a('s_add_u32 s44, s44, s47')
    a('s_and_b32 s48, s20, 1')
    a('s_cmp_eq_u32 s48, 0')
    a('s_cbranch_scc1 F1_LOOP_INIT')
    a.opt_begin()
    body(a, ['b'], False)
    advance_(a)
    a.opt_end()
    a.label('F1_LOOP_INIT')
    a('s_mov_b32 s49, 0')
    a.loop_begin('F1_LOOP')
    body(a, ['a', 'b'], True)
    advance_(a)
    a('s_min_u32 s22, s22, %d' % (9216 - 128))
    a('s_add_u32 s49, s49, 1')
    a('s_cmp_lt_u32 s49, 4')
    a.loop_end('s_cbranch_scc1 F1_LOOP')
    a('s_cmp_eq_u32 s48, 0')
    a('s_cbranch_scc1 F1_HA')
    a.opt_begin()
    for x in epilogue('b', 45): a(x)
    stamp(a, 3)
    stamp_store(a, 3, 4)
    a('s_endpgm')
    a.opt_end()
    a.label('F1_HA')
    body(a, ['a'], True)
    stamp(a, 3)
    stamp_store(a, 3, 4)
    a.label('F1_END')
    a('s_endpgm')
    return kernel_header(name) + a.finish(), kernel_desc(name, 256, 102), (256, 512, LDS_F1)

def advance_(a):
    a('s_add_u32 s45, s44, 2048')
    a('s_add_u32 s44, s44, 4096')
    a('s_mov_b32 s21, s22')
    a('s_add_u32 s22, s22, 128')
```

```python
from asmgen import *
from common import *
import common
STG = 128 * 288
LDS_F2 = 4 * STG
ACC = 16
HFR = 88
FR = 136
NB = 6
vDM = 160
vRB, vHO = 165, 166
vLANE, vT = 1, 2
CARRY = 2
NSTG = 9

def main_variant(a, pp):
    nd = 5 if pp == 0 else 4
    def dma(s):
        out = []
        slot = s % 4
        for m in range(nd):
            out.append(['s_add_u32 m0, s23, %d' % (slot * STG + m * 8192),
                        's_add_u32 s33, s22, %d' % (s * 128 * 1152),
                        ('buffer_load_dwordx4 v%d, s[24:27], s33 offen lds' % (vDM + m), 'w%d' % s)])
        return out
    def hloads(s):
        out = []
        st = HFR + 16 * (s % 3)
        for m in range(2):
            for t in range(2):
                k = 4 * s + pp + 2 * m
                out.append(['s_add_u32 s34, s21, %d' % (k * 2048),
                            'buffer_load_dwordx4 v[%d:%d], v%d, s[36:39], s34 offen offset:%d' % (st + 8 * m + 4 * t, st + 8 * m + 4 * t + 3, vHO, t * 1024)])
        return out
    def emit(x):
        if isinstance(x, tuple): a(x[0], tag=x[1])
        else: a(x)
    for s in range(2):
        for g in hloads(s):
            for x in g: emit(x)
        for g in dma(s):
            for x in g: emit(x)
    steps = [(s, m, dt) for s in range(NSTG) for m in range(2) for dt in range(9)]
    N = len(steps); per = 18
    synced = set(); r = 0; mi = 0
    pend = []
    def do_read(i):
        s, m, dt = steps[i]
        fr = FR + 4 * (i % NB)
        off = m * 18432 + dt * 32
        a('ds_read_b64_tr_b16 v[%d:%d], v%d offset:%d' % (fr, fr + 1, vRB, off))
        a('ds_read_b64_tr_b16 v[%d:%d], v%d offset:%d' % (fr + 2, fr + 3, vRB, off + 2304))
    while mi < N:
        while r < N and r - mi < NB - 1 and not (r % per == 0 and r not in synced):
            do_read(r); r += 1
        if r < N and r % per == 0 and r not in synced and r - mi <= (CARRY if r else 0):
            s = r // per
            a.wait_vm('w%d' % s)
            a('s_barrier')
            if s > 0:
                d = STG if s % 4 else -3 * STG
                a('v_add_u32 v%d, %d, v%d' % (vRB, d, vRB))
            synced.add(r)
            pend = []
            if s + 2 < NSTG:
                pend = hloads(s + 2) + dma(s + 2)
            continue
        s, m, dt = steps[mi]
        fr = FR + 4 * (mi % NB)
        st = HFR + 16 * (s % 3) + 8 * m
        for t in range(2):
            c0 = '0' if (s == 0 and m == 0) else None
            a(mfma16(ACC + 4 * (dt * 2 + t), fr, st + 4 * t, c0))
        mi += 1
        if pend and mi % per >= CARRY + 1 or (pend and mi % per == 0):
            for x in pend.pop(0): emit(x)
    assert not pend

def gen_f2(name='f2_kernel'):
    a = Asm()
    stamp(a, 0); stamp_rt(a, 9)
    a('s_load_dwordx2 s[4:5], s[0:1], 64')
    a('s_load_dwordx2 s[12:13], s[0:1], 88')
    a('s_cmp_ge_u32 s2, 256')
    a('s_cbranch_scc1 F2_END')
    a('v_and_b32 v%d, 63, v0' % vLANE)
    a('v_lshrrev_b32 v%d, 6, v0' % vT)
    a('v_readfirstlane_b32 s16, v%d' % vT)
    a('s_and_b32 s17, s16, 3')
    a('s_lshr_b32 s18, s16, 2')
    a('s_and_b32 s33, s2, 7')
    a('s_lshr_b32 s34, s2, 3')
    a('s_and_b32 s19, s33, 3')
    a('s_lshr_b32 s33, s33, 2')
    a('s_lshl_b32 s33, s33, 3')
    a('s_lshr_b32 s20, s34, 2')
    a('s_add_u32 s20, s20, s33')
    a('s_and_b32 s35, s34, 3')
    a('s_lshl_b32 s21, s20, 2')
    a('s_add_u32 s21, s21, s17')
    a('s_mul_i32 s21, s21, 144')
    a('s_mul_i32 s33, s19, 36')
    a('s_add_u32 s21, s21, s33')
    a('s_lshl_b32 s21, s21, 11')
    a('s_mul_i32 s22, s19, %d' % (1152 * 1152))
    a('s_mul_i32 s33, s35, 288')
    a('s_add_u32 s22, s22, s33')
    a('s_lshl_b32 s23, s16, 10')
    a('v_lshlrev_b32 v%d, 4, v%d' % (vHO, vLANE))
    a('s_lshl_b32 s33, s16, 6')
    a('v_add_u32 v%d, s33, v%d' % (vT, vLANE))
    for m in range(5):
        a('v_add_u32 v%d, %d, v%d' % (vT + 1, 512 * m, vT))
        a('v_mul_u32_u24 v%d, 3641, v%d' % (vT + 2, vT + 1))
        a('v_lshrrev_b32 v%d, 16, v%d' % (vT + 2, vT + 2))
        a('v_mul_u32_u24 v%d, 18, v%d' % (vT + 3, vT + 2))
        a('v_sub_u32 v%d, v%d, v%d' % (vT + 3, vT + 1, vT + 3))
        a('v_mul_u32_u24 v%d, 1152, v%d' % (vT + 2, vT + 2))
        a('v_lshl_add_u32 v%d, v%d, 4, v%d' % (vDM + m, vT + 3, vT + 2))
    a('v_lshrrev_b32 v%d, 4, v%d' % (vT, vLANE))
    a('v_lshrrev_b32 v%d, 1, v%d' % (vT + 1, vT))
    a('v_lshlrev_b32 v%d, 4, v%d' % (vT + 1, vT + 1))
    a('v_and_b32 v%d, 1, v%d' % (vT + 2, vT))
    a('v_lshl_add_u32 v%d, v%d, 2, v%d' % (vT + 1, vT + 2, vT + 1))
    a('v_bfe_u32 v%d, v%d, 2, 2' % (vT + 2, vLANE))
    a('v_add_u32 v%d, v%d, v%d' % (vT + 1, vT + 1, vT + 2))
    a('s_lshl_b32 s33, s18, 5')
    a('v_add_u32 v%d, s33, v%d' % (vT + 1, vT + 1))
    a('v_mul_u32_u24 v%d, 288, v%d' % (vT + 1, vT + 1))
    a('v_and_b32 v%d, 3, v%d' % (vT + 2, vLANE))
    a('v_lshl_add_u32 v%d, v%d, 3, v%d' % (vRB, vT + 2, vT + 1))
    a('s_waitcnt lgkmcnt(0)')
    srd(a, 24, 4, 5, F * D * 2)
    srd_off(a, 36, 12, 13, WS_HB, WS_PART - WS_HB)
    srd_off(a, 40, 12, 13, WS_PART, WS_FLAG - WS_PART)
    a('s_cmp_lg_u32 s18, 0')
    a('s_cbranch_scc1 F2_P1')
    t0 = a.finish()
    a = Asm()
    stamp(a, 1)
    main_variant(a, 0)
    stamp(a, 2)
    a('s_barrier')
    a('s_barrier')
    a('s_mul_i32 s33, s17, 18432')
    a('v_add_u32 v%d, s33, v%d' % (vT, vHO))
    a('s_lshl_b32 s34, s2, 2')
    a('s_add_u32 s34, s34, s17')
    a('s_mul_i32 s34, s34, 18432')
    for i in range(18):
        tb = HFR + 4 * (i % 8)
        a('ds_read_b128 v[%d:%d], v%d offset:%d' % (tb, tb + 3, vT, i * 1024))
        for r in range(4):
            a('v_add_f32 v%d, v%d, v%d' % (ACC + 4 * i + r, ACC + 4 * i + r, tb + r))
        a('buffer_store_dwordx4 v[%d:%d], v%d, s[40:43], s34 offen offset:%d' % (ACC + 4 * i, ACC + 4 * i + 3, vHO, (i % 4) * 1024))
        if i % 4 == 3: a('s_add_u32 s34, s34, 4096')
    stamp(a, 3)
    stamp_store(a, 4, 4)
    a('s_endpgm')
    t1 = a.finish()
    a = Asm()
    a.label('F2_P1')
    main_variant(a, 1)
    a('s_barrier')
    a('s_mul_i32 s33, s17, 18432')
    a('v_add_u32 v%d, s33, v%d' % (vT, vHO))
    for i in range(18):
        a('ds_write_b128 v%d, v[%d:%d] offset:%d' % (vT, ACC + 4 * i, ACC + 4 * i + 3, i * 1024))
    a('s_waitcnt lgkmcnt(0)')
    a('s_barrier')
    a.label('F2_END')
    a('s_endpgm')
    t2 = a.finish()
    return kernel_header(name) + t0 + t1 + t2, kernel_desc(name, 256 if common.STAMPS else 176, 102), (256, 512, LDS_F2)

def gen_red(name='red_kernel'):
    a = Asm()
    a('s_load_dwordx2 s[4:5], s[0:1], 72')
    a('s_load_dwordx2 s[12:13], s[0:1], 88')
    a('s_cmp_ge_u32 s2, 576')
    a('s_cbranch_scc1 RED_END')
    a('v_and_b32 v1, 63, v0')
    a('v_lshrrev_b32 v2, 6, v0')
    a('v_readfirstlane_b32 s16, v2')
    a('s_lshl_b32 s17, s2, 3')
    a('s_add_u32 s17, s17, s16')
    a('s_mul_hi_u32 s18, s17, 0x%x' % ((2 ** 32 + 17) // 18))
    a('s_mul_i32 s19, s18, 18')
    a('s_sub_u32 s19, s17, s19')
    a('s_and_b32 s20, s18, 3')
    a('s_bfe_u32 s21, s18, 0x20002')
    a('s_lshr_b32 s22, s18, 4')
    a('s_lshr_b32 s23, s19, 1')
    a('s_and_b32 s33, s19, 1')
    a('s_waitcnt lgkmcnt(0)')
    srd(a, 24, 4, 5, S * D * 2)
    srd_off(a, 36, 12, 13, WS_H, S * D * 2)
    srd_off(a, 40, 12, 13, WS_PART, WS_FLAG - WS_PART)
    a('v_lshlrev_b32 v3, 4, v1')
    a('s_lshr_b32 s34, s22, 3')
    a('s_lshl_b32 s34, s34, 2')
    a('s_and_b32 s35, s22, 7')
    a('s_lshl_b32 s35, s35, 2')
    a('s_add_u32 s35, s35, s21')
    a('s_lshl_b32 s35, s35, 3')
    a('s_add_u32 s34, s34, s35')
    a('s_lshl_b32 s34, s34, 2')
    a('s_add_u32 s34, s34, s20')
    a('s_mul_i32 s34, s34, 18')
    a('s_add_u32 s34, s34, s19')
    a('s_lshl_b32 s34, s34, 10')
    for s in range(4):
        a('buffer_load_dwordx4 v[%d:%d], v3, s[40:43], s34 offen' % (8 + 4 * s, 11 + 4 * s))
        if s < 3: a('s_add_u32 s34, s34, %d' % (4 * 18432))
    a('s_lshl_b32 s44, s22, 2')
    a('s_add_u32 s44, s44, s20')
    a('s_mul_i32 s45, s44, 36')
    a('s_mul_i32 s46, s21, 9')
    a('s_add_u32 s45, s45, s46')
    a('s_add_u32 s45, s45, s23')
    a('s_lshl_b32 s45, s45, 10')
    a('v_and_b32 v4, 15, v1')
    a('v_lshrrev_b32 v5, 4, v1')
    a('s_lshl_b32 s46, s33, 4')
    a('v_add_u32 v6, s46, v4')
    a('v_lshrrev_b32 v7, 1, v5')
    a('v_lshl_add_u32 v7, v7, 5, v6')
    a('v_lshlrev_b32 v7, 4, v7')
    a('v_and_b32 v24, 1, v5')
    a('v_lshl_add_u32 v7, v24, 3, v7')
    a('buffer_load_dwordx2 v[26:27], v7, s[36:39], s45 offen')
    a('s_lshl_b32 s46, s44, 5')
    a('v_add_u32 v6, s46, v6')
    a('v_mul_u32_u24 v6, 1152, v6')
    a('v_lshl_add_u32 v6, v5, 3, v6')
    a('s_mul_i32 s46, s21, 288')
    a('s_lshl_b32 s47, s23, 5')
    a('s_add_u32 s46, s46, s47')
    for r in range(4):
        a('v_add_f32 v%d, v%d, v%d' % (8 + r, 8 + r, 12 + r))
        a('v_add_f32 v%d, v%d, v%d' % (16 + r, 16 + r, 20 + r))
    a('v_lshlrev_b32 v28, 16, v26')
    a('v_and_b32 v29, 0xffff0000, v26')
    a('v_lshlrev_b32 v30, 16, v27')
    a('v_and_b32 v31, 0xffff0000, v27')
    for r in range(4):
        a('v_add_f32 v%d, v%d, v%d' % (8 + r, 8 + r, 16 + r))
        a('v_add_f32 v%d, v%d, v%d' % (8 + r, 8 + r, 28 + r))
    a('v_cvt_pk_bf16_f32 v8, v8, v9')
    a('v_cvt_pk_bf16_f32 v9, v10, v11')
    a('buffer_store_dwordx2 v[8:9], v6, s[24:27], s46 offen')
    a.label('RED_END')
    a('s_endpgm')
    return kernel_header(name) + a.finish(), kernel_desc(name, 32, 64), (576, 512, 0)
```

```python
from asmgen import *
from common import *
import common

LDS_K1 = 92160
X = 32
ONES = 104
FR = 108
ACC = 132
CS = 144
SUM = 156
SUMR = 160
vLANE, vG, vN = 1, 2, 3
vXOFF = 4
vA = 6
vSTR = 8
vT0, vT1, vT2, vT3, vT4, vT5 = 10, 11, 12, 13, 14, 15
vMEAN, vRSTD, vSC = 16, 17, 18
vSQ = 20
vRB0, vRB1 = 24, 25
vSOFF = 26
vROW = 27
vMR = 164
vRR = 168

def gen_main_block(tiles, vform, name):
    a = Asm()
    a.label(name)
    nt = len(tiles)
    steps = [(k, ti) for k in range(18) for ti in range(nt)]
    NB = 6
    def reads(idx):
        k, ti = steps[idx]
        t = tiles[ti]
        fr = FR + 4 * (idx % NB)
        base = vRB0 if k < 12 else vRB1
        off = (k if k < 12 else k - 12) * 5120 + t * 32
        a('ds_read_b64_tr_b16 v[%d:%d], v%d offset:%d' % (fr, fr + 1, base, off))
        a('ds_read_b64_tr_b16 v[%d:%d], v%d offset:%d' % (fr + 2, fr + 3, base, off + 1280))
    PD = NB - 1
    for i in range(min(PD, len(steps))): reads(i)
    for idx, (k, ti) in enumerate(steps):
        fr = FR + 4 * (idx % NB)
        c0 = '0' if k == 0 else None
        if vform:
            a(mfma16(ACC + 4 * ti, X + 4 * k, fr, c0))
            a(mfma16(CS + 4 * ti, ONES, fr, c0))
        else:
            a(mfma16(ACC + 4 * ti, fr, X + 4 * k, c0))
            a(mfma16(CS + 4 * ti, fr, ONES, c0))
        if idx + PD < len(steps): reads(idx + PD)
    return a

def epi_T(a, ti, scale_reg):
    for r in range(4):
        a('v_fma_f32 v%d, -v%d, v%d, v%d' % (vT2 + r, vMEAN, CS + 4 * ti + r, ACC + 4 * ti + r))
    for r in range(4):
        a('v_mul_f32 v%d, v%d, v%d' % (vT2 + r, vT2 + r, scale_reg))
    a('v_cvt_pk_bf16_f32 v%d, v%d, v%d' % (vT0, vT2, vT2 + 1))
    a('v_cvt_pk_bf16_f32 v%d, v%d, v%d' % (vT0 + 1, vT2 + 2, vT2 + 3))

def gen_k1(name='k1_kernel'):
    a = Asm()
    stamp(a, 0); stamp_rt(a, 9)
    a('s_load_dwordx4 s[4:7], s[0:1], 0')
    a('s_load_dwordx4 s[8:11], s[0:1], 16')
    a('s_load_dwordx2 s[12:13], s[0:1], 88')
    a('s_cmp_ge_u32 s2, 256')
    a('s_cbranch_scc1 K1_END')
    a('v_and_b32 v%d, 63, v0' % vLANE)
    a('v_lshrrev_b32 v%d, 6, v0' % vT0)
    a('v_readfirstlane_b32 s16, v%d' % vT0)
    a('s_and_b32 s19, s16, 3')
    a('s_lshr_b32 s20, s16, 2')
    a('s_and_b32 s21, s2, 7')
    a('s_lshr_b32 s22, s2, 3')
    a('s_and_b32 s22, s22, 3')
    a('s_lshl_b32 s22, s22, 3')
    a('s_add_u32 s17, s21, s22')
    a('s_lshr_b32 s18, s2, 5')
    a('v_and_b32 v%d, 15, v%d' % (vN, vLANE))
    a('v_lshrrev_b32 v%d, 4, v%d' % (vG, vLANE))
    a('s_lshl_b32 s23, s17, 6')
    a('s_lshl_b32 s33, s19, 4')
    a('s_add_u32 s23, s23, s33')
    a('v_add_u32 v%d, s23, v%d' % (vROW, vN))
    a('v_mul_u32_u24 v%d, 1152, v%d' % (vXOFF, vROW))
    a('v_lshl_add_u32 v%d, v%d, 4, v%d' % (vXOFF, vG, vXOFF))
    a('v_mul_u32_u24 v%d, 6554, v%d' % (vT0, vLANE))
    a('v_lshrrev_b32 v%d, 16, v%d' % (vT0, vT0))
    a('v_mul_u32_u24 v%d, 10, v%d' % (vT1, vT0))
    a('v_sub_u32 v%d, v%d, v%d' % (vT1, vLANE, vT1))
    a('s_mul_i32 s33, s16, 6')
    a('v_add_u32 v%d, s33, v%d' % (vT0, vT0))
    a('v_and_b32 v%d, 0x33, v%d' % (vT2, vT0))
    a('v_and_b32 v%d, 4, v%d' % (vT3, vT0))
    a('v_lshl_or_b32 v%d, v%d, 1, v%d' % (vT2, vT3, vT2))
    a('v_and_b32 v%d, 8, v%d' % (vT3, vT0))
    a('v_lshrrev_b32 v%d, 1, v%d' % (vT3, vT3))
    a('v_or_b32 v%d, v%d, v%d' % (vT2, vT2, vT3))
    a('s_waitcnt lgkmcnt(0)')
    srd(a, 24, 4, 5, S * D * 2)
    srd(a, 28, 12, 13, WS_O)
    for k in range(18):
        a('buffer_load_dwordx4 v[%d:%d], v%d, s[24:27], 0 offen offset:%d' % (X + 4 * k, X + 4 * k + 3, vXOFF, 64 * k), tag='x')
    a('s_mul_i32 s33, s18, 160')
    a('v_mul_u32_u24 v%d, 1152, v%d' % (vT3, vT2))
    a('v_lshl_add_u32 v%d, v%d, 4, v%d' % (vT3, vT1, vT3))
    a('v_add_u32 v%d, s33, v%d' % (vT3, vT3))
    a('v_mov_b32 v%d, s6' % vA)
    a('v_mov_b32 v%d, s7' % (vA + 1))
    a('v_mov_b32 v%d, %d' % (vSTR, 48 * 1152))
    a('s_cmp_lg_u32 s18, 7')
    a('s_cbranch_scc1 K1_NOKV')
    a.opt_begin()
    a('v_lshrrev_b32 v%d, 1, v%d' % (vT4, vT1))
    a('v_and_b32 v%d, 1, v%d' % (vT5, vT1))
    a('v_lshlrev_b32 v%d, 4, v%d' % (vT5, vT5))
    a('v_and_b32 v%d, 1, v%d' % (vT0, vT4))
    a('v_cmp_eq_u32 vcc, 1, v%d' % vT0)
    a('v_cndmask_b32 v%d, 20, v%d, vcc' % (vT5, vT5))
    a('v_mul_u32_u24 v%d, 36, v%d' % (vT0, vT2))
    a('v_add_u32 v%d, v%d, v%d' % (vT5, vT5, vT0))
    a('v_cmp_le_u32 vcc, 1, v%d' % vT4)
    a('v_cndmask_b32 v%d, v%d, v%d, vcc' % (vT3, vT3, vT5))
    a('v_mov_b32 v%d, %d' % (vT0, 48 * 36))
    a('v_cndmask_b32 v%d, v%d, v%d, vcc' % (vSTR, vSTR, vT0))
    a('v_mov_b32 v%d, s8' % vT0)
    a('v_cndmask_b32 v%d, v%d, v%d, vcc' % (vA, vA, vT0))
    a('v_mov_b32 v%d, s9' % vT0)
    a('v_cndmask_b32 v%d, v%d, v%d, vcc' % (vA + 1, vA + 1, vT0))
    a('v_cmp_le_u32 vcc, 3, v%d' % vT4)
    a('v_mov_b32 v%d, s10' % vT0)
    a('v_cndmask_b32 v%d, v%d, v%d, vcc' % (vA, vA, vT0))
    a('v_mov_b32 v%d, s11' % vT0)
    a('v_cndmask_b32 v%d, v%d, v%d, vcc' % (vA + 1, vA + 1, vT0))
    a.opt_end()
    a.label('K1_NOKV')
    a('v_add_co_u32 v%d, vcc, v%d, v%d' % (vA, vA, vT3))
    a('v_addc_co_u32 v%d, vcc, 0, v%d, vcc' % (vA + 1, vA + 1))
    a('s_mul_i32 s34, s16, 960')
    a('s_mov_b32 exec_hi, 0x0fffffff')
    for q in range(12):
        a('s_mov_b32 m0, s34')
        a('global_load_lds_dwordx4 v[%d:%d], off' % (vA, vA + 1), tag='w')
        if q < 11:
            a('v_add_co_u32 v%d, vcc, v%d, v%d' % (vA, vA, vSTR))
            a('v_addc_co_u32 v%d, vcc, 0, v%d, vcc' % (vA + 1, vA + 1))
            a('s_add_u32 s34, s34, %d' % (8 * 960))
    a('s_mov_b32 exec_hi, -1')
    for r in range(4):
        a('v_mov_b32 v%d, 0x3f803f80' % (ONES + r))
    a('v_lshrrev_b32 v%d, 1, v%d' % (vT0, vG))
    a('v_lshlrev_b32 v%d, 4, v%d' % (vT0, vT0))
    a('v_and_b32 v%d, 1, v%d' % (vT1, vG))
    a('v_lshl_add_u32 v%d, v%d, 2, v%d' % (vT0, vT1, vT0))
    a('v_lshrrev_b32 v%d, 2, v%d' % (vT1, vN))
    a('v_add_u32 v%d, v%d, v%d' % (vT0, vT0, vT1))
    a('v_mul_u32_u24 v%d, 160, v%d' % (vT0, vT0))
    a('v_and_b32 v%d, 3, v%d' % (vT1, vN))
    a('v_lshl_add_u32 v%d, v%d, 3, v%d' % (vRB0, vT1, vT0))
    a('v_add_u32 v%d, %d, v%d' % (vRB1, 12 * 5120, vRB0))
    for r in range(4):
        a('v_mov_b32 v%d, 0' % (vSQ + r))
    for k in range(18):
        a(mfma16(SUM, ONES, X + 4 * k, '0' if k == 0 else None))
        a(mfma16(SUMR, X + 4 * k, ONES, '0' if k == 0 else None))
        for r in range(4):
            a('v_dot2_f32_bf16 v%d, v%d, v%d, v%d' % (vSQ + r, X + 4 * k + r, X + 4 * k + r, vSQ + r))
    a('v_add_f32 v%d, v%d, v%d' % (vSQ, vSQ, vSQ + 1))
    a('v_add_f32 v%d, v%d, v%d' % (vSQ + 2, vSQ + 2, vSQ + 3))
    a('v_add_f32 v%d, v%d, v%d' % (vSQ, vSQ, vSQ + 2))
    xlane_sum(a, vSQ, vT0)
    a('v_mul_f32 v%d, %s, v%d' % (vMEAN, f32(1.0 / 576), SUM))
    a('v_mul_f32 v%d, %s, v%d' % (vSQ, f32(1.0 / 576), vSQ))
    a('v_fma_f32 v%d, -v%d, v%d, v%d' % (vSQ, vMEAN, vMEAN, vSQ))
    a('v_max_f32 v%d, 0, v%d' % (vSQ, vSQ))
    a('v_add_f32 v%d, %s, v%d' % (vSQ, f32(EPS), vSQ))
    a('v_rsq_f32 v%d, v%d' % (vRSTD, vSQ))
    a('v_mul_f32 v%d, %s, v%d' % (vSC, f32(QSCALE), vRSTD))
    a('s_mul_i32 s33, s18, 160')
    a('v_mul_u32_u24 v%d, 1152, v%d' % (vSOFF, vROW))
    a('v_lshl_add_u32 v%d, v%d, 3, v%d' % (vSOFF, vG, vSOFF))
    a('v_add_u32 v%d, s33, v%d' % (vSOFF, vSOFF))
    stamp(a, 1)
    a('s_waitcnt vmcnt(0) lgkmcnt(0)')
    a('s_barrier')
    stamp(a, 2)
    a('s_cmp_lg_u32 s20, 0')
    a('s_cbranch_scc1 K1_HF1')
    txt = a.finish()

    b = gen_main_block([0, 1, 2], False, 'K1_A')
    b('s_cmp_eq_u32 s18, 7')
    b('s_cbranch_scc1 K1_A_KV')
    txtA = b.finish()
    b = Asm()
    b('s_nop 7')
    for ti in range(3):
        epi_T(b, ti, vSC)
        b('buffer_store_dwordx2 v[%d:%d], v%d, s[28:31], 0 offen offset:%d' % (vT0, vT0 + 1, vSOFF, ti * 32))
        b('s_nop 0')
    stamp(b, 3)
    stamp_store(b, 0, 4)
    b('s_endpgm')
    txtA += b.finish()
    b = Asm()
    b.label('K1_A_KV')
    b('s_nop 7')
    epi_T(b, 0, vSC)
    b('buffer_store_dwordx2 v[%d:%d], v%d, s[28:31], 0 offen' % (vT0, vT0 + 1, vSOFF))
    kb = 28
    b('v_lshrrev_b32 v%d, 9, v%d' % (kb, vROW))
    b('v_mul_u32_u24 v%d, %d, v%d' % (kb, KV_CHUNK, kb))
    b('v_bfe_u32 v%d, v%d, 5, 4' % (kb + 1, vROW))
    b('v_mul_u32_u24 v%d, 1152, v%d' % (kb + 1, kb + 1))
    b('v_add_u32 v%d, v%d, v%d' % (kb, kb, kb + 1))
    b('v_add_u32 v%d, 0x%x, v%d' % (kb, WS_KV, kb))
    b('v_and_b32 v%d, 31, v%d' % (kb + 1, vROW))
    b('v_lshrrev_b32 v%d, 1, v%d' % (kb + 2, vG))
    b('v_lshl_add_u32 v%d, v%d, 5, v%d' % (kb + 2, kb + 2, kb + 1))
    b('v_lshl_add_u32 v%d, v%d, 4, v%d' % (kb + 2, kb + 2, kb))
    b('v_and_b32 v%d, 1, v%d' % (kb + 3, vG))
    b('v_lshl_add_u32 v%d, v%d, 3, v%d' % (kb + 2, kb + 3, kb + 2))
    epi_T(b, 1, vRSTD)
    b('buffer_store_dwordx2 v[%d:%d], v%d, s[28:31], 0 offen' % (vT0, vT0 + 1, kb + 2))
    epi_T(b, 2, vRSTD)
    b('v_lshl_add_u32 v%d, v%d, 2, v%d' % (kb + 2, kb + 1, kb))
    b('v_cmp_eq_u32 vcc, 1, v%d' % vG)
    b('s_and_saveexec_b64 s[36:37], vcc')
    b('buffer_store_dword v%d, v%d, s[28:31], 0 offen offset:1024' % (vT0 + 1, kb + 2))
    b('s_endpgm')
    txtA += b.finish()

    b = Asm()
    b.label('K1_HF1')
    b('s_cmp_eq_u32 s18, 7')
    b('s_cbranch_scc1 K1_BV')
    txtB = b.finish()
    b = gen_main_block([3, 4], False, 'K1_B')
    b('s_nop 7')
    for ti in range(2):
        epi_T(b, ti, vSC)
        b('buffer_store_dwordx2 v[%d:%d], v%d, s[28:31], 0 offen offset:%d' % (vT0, vT0 + 1, vSOFF, (3 + ti) * 32))
        b('s_nop 0')
    b('s_endpgm')
    txtB += b.finish()
    b = gen_main_block([3, 4], True, 'K1_BV')
    b('v_lshlrev_b32 v%d, 4, v%d' % (vT0, vG))
    for r in range(4):
        b('v_add_u32 v%d, %d, v%d' % (vT1, 4 * r, vT0))
        b('ds_bpermute_b32 v%d, v%d, v%d' % (vRR + r, vT1, vRSTD))
    for r in range(4):
        b('v_mul_f32 v%d, %s, v%d' % (vMR + r, f32(1.0 / 576), SUMR + r))
    b('s_lshr_b32 s33, s23, 4')
    b('s_lshr_b32 s34, s33, 5')
    b('s_mul_i32 s34, s34, %d' % KV_CHUNK)
    b('s_and_b32 s33, s33, 31')
    b('s_mul_i32 s33, s33, 608')
    b('s_add_u32 s33, s33, s34')
    b('s_add_u32 s33, s33, 0x%x' % (WS_KV + KV_VOFF))
    vb = 28
    b('v_and_b32 v%d, 1, v%d' % (vb, vG))
    b('v_mul_u32_u24 v%d, 19, v%d' % (vb, vb))
    b('v_add_u32 v%d, v%d, v%d' % (vb, vb, vN))
    b('v_lshlrev_b32 v%d, 4, v%d' % (vb, vb))
    b('v_lshrrev_b32 v%d, 1, v%d' % (vb + 1, vG))
    b('v_lshl_add_u32 v%d, v%d, 3, v%d' % (vb, vb + 1, vb))
    b('v_add_u32 v%d, s33, v%d' % (vb, vb))
    def epi_V(ti):
        for r in range(4):
            b('v_fma_f32 v%d, -v%d, v%d, v%d' % (vT2 + r, vMR + r, CS + 4 * ti + r, ACC + 4 * ti + r))
        for r in range(4):
            b('v_mul_f32 v%d, v%d, v%d' % (vT2 + r, vT2 + r, vRR + r))
        b('v_cvt_pk_bf16_f32 v%d, v%d, v%d' % (vT0, vT2, vT2 + 1))
        b('v_cvt_pk_bf16_f32 v%d, v%d, v%d' % (vT0 + 1, vT2 + 2, vT2 + 3))
    epi_V(0)
    b('buffer_store_dwordx2 v[%d:%d], v%d, s[28:31], 0 offen' % (vT0, vT0 + 1, vb))
    b('s_nop 0')
    epi_V(1)
    b('v_cmp_eq_u32 vcc, 8, v%d' % vN)
    b('v_mov_b32 v%d, 0x3f803f80' % vT2)
    b('v_cndmask_b32 v%d, v%d, v%d, vcc' % (vT0, vT0, vT2))
    b('v_cndmask_b32 v%d, v%d, v%d, vcc' % (vT0 + 1, vT0 + 1, vT2))
    b('v_add_u32 v%d, 160, v%d' % (vb, vb))
    b('v_add_u32 v%d, -6, v%d' % (vT2, vN))
    b('v_cmp_gt_u32 vcc, 3, v%d' % vT2)
    b('s_and_saveexec_b64 s[36:37], vcc')
    b('buffer_store_dwordx2 v[%d:%d], v%d, s[28:31], 0 offen' % (vT0, vT0 + 1, vb))
    b('s_endpgm')
    txtB += b.finish()
    end = 'K1_END:\n  s_endpgm\n'
    return kernel_header(name) + txt + txtA + txtB + end, kernel_desc(name, 256 if common.STAMPS else 176, 102), (256, 512, LDS_K1)
```

```python
from asmgen import *
from common import *
import common

LDS_K2 = 4 * KV_CHUNK
Q1, Q2 = 8, 12
SB = [16, 32]
P = 48
O = 56
K1B = [72, 76]
K2B = [80, 82]
VB = [84, 92]
vK1A, vK2A, vVA = 100, 101, 102
vLANE, vHI, vQ = 1, 2, 3
vT = 104
vOOFF = 4
vM, vMX, vAL = 112, 113, 114
vPF = 116
PREFETCH = True

def kreads(a, tile15, buf):
    a('ds_read_b128 v[%d:%d], v%d offset:%d' % (K1B[buf], K1B[buf] + 3, vK1A, tile15 * 1152))
    a('ds_read_b32 v%d, v%d offset:%d' % (K2B[buf], vK2A, tile15 * 1152))
def vreads(a, tile15, buf):
    a('ds_read_b128 v[%d:%d], v%d offset:%d' % (VB[buf], VB[buf] + 3, vVA, tile15 * 1216))
    a('ds_read_b128 v[%d:%d], v%d offset:%d' % (VB[buf] + 4, VB[buf] + 7, vVA, tile15 * 1216 + 608))

SCHED = 1
NOLDS = False
def tile_body(a, tl, cur, nxt, Sc, Sn):
    E = lambda r: a('v_exp_f32 v%d, v%d' % (Sc + r, Sc + r))
    C = lambda i: a('v_cvt_pk_bf16_f32 v%d, v%d, v%d' % (P + i, Sc + 2 * i, Sc + 2 * i + 1))
    def KR():
        if not NOLDS: kreads(a, (tl + 2) & 15, cur)
    def VR():
        if not NOLDS: vreads(a, (tl + 1) & 15, nxt)
    if SCHED == 0:
        a(mfma32k8(Sn, K2B[nxt], Q2, '0'))
        for r in range(0, 4): E(r)
        a(mfma32(Sn, K1B[nxt], Q1))
        E(4); E(5); KR(); VR(); C(0); E(6); E(7); C(1); C(2); E(8); E(9); C(3); E(10); E(11)
        a(mfma32(O, VB[cur], P))
        E(12); E(13); C(4); E(14); E(15); C(5); C(6); C(7)
        a(mfma32(O, VB[cur] + 4, P + 4))
    elif SCHED == 1:
        a(mfma32k8(Sn, K2B[nxt], Q2, '0'))
        E(0); E(1); E(2); E(3)
        C(0)
        a(mfma32(Sn, K1B[nxt], Q1))
        KR()
        E(4); E(5); C(1); E(6); E(7)
        C(2); E(8); C(3); E(9)
        a(mfma32(O, VB[cur], P))
        E(10); E(11); C(4); E(12); E(13)
        C(5); E(14); E(15)
        C(6); VR(); C(7)
        a(mfma32(O, VB[cur] + 4, P + 4))
    elif SCHED == 2:
        E(0); E(1)
        a(mfma32k8(Sn, K2B[nxt], Q2, '0'))
        E(2); E(3); C(0); E(4); E(5); C(1)
        a(mfma32(Sn, K1B[nxt], Q1))
        KR()
        E(6); E(7); C(2); E(8); C(3); E(9)
        a(mfma32(O, VB[cur], P))
        E(10); E(11); C(4); E(12); E(13); C(5); E(14); E(15)
        VR()
        C(6); C(7)
        a(mfma32(O, VB[cur] + 4, P + 4))

def gen_k2(name='k2_kernel'):
    a = Asm()
    stamp(a, 0); stamp_rt(a, 9)
    a('s_load_dwordx2 s[12:13], s[0:1], 88')
    a('s_cmp_ge_u32 s2, 256')
    a('s_cbranch_scc1 K2_END')
    a('v_and_b32 v%d, 63, v0' % vLANE)
    a('v_lshrrev_b32 v%d, 6, v0' % vT)
    a('v_readfirstlane_b32 s16, v%d' % vT)
    if PREFETCH:
        a('s_lshl_b32 s50, s2, 3')
        a('s_add_u32 s50, s50, s16')
        a('s_mul_hi_u32 s51, s50, 0x%x' % ((2 ** 32 + 647) // 648))
        a('s_mul_i32 s52, s51, 648')
        a('s_sub_u32 s52, s50, s52')
        a('s_lshl_b32 s53, s51, 3')
        a('s_add_u32 s53, s53, 48')
        a('s_cmp_eq_u32 s51, 3')
        a('s_cselect_b32 s53, 32, s53')
        a('s_load_dwordx2 s[56:57], s[0:1], s53')
        a('s_lshl_b32 s52, s52, 13')
        a('v_lshlrev_b32 v%d, 7, v%d' % (vPF, vLANE))
        a('v_add_u32 v%d, s52, v%d' % (vPF, vPF))
    a('v_and_b32 v%d, 31, v%d' % (vQ, vLANE))
    a('v_lshrrev_b32 v%d, 5, v%d' % (vHI, vLANE))
    a('s_lshl_b32 s17, s2, 3')
    a('s_add_u32 s17, s17, s16')
    a('s_mul_i32 s18, s17, 1152')
    a('v_mul_u32_u24 v%d, 36, v%d' % (vOOFF, vQ))
    a('v_add_u32 v%d, s18, v%d' % (vOOFF, vOOFF))
    a('v_lshl_add_u32 v%d, v%d, 4, v%d' % (vT, vHI, vOOFF))
    a('v_lshlrev_b32 v%d, 4, v0' % (vT + 1))
    a('s_waitcnt lgkmcnt(0)')
    srd(a, 24, 12, 13, WS_KV)
    srd_off(a, 28, 12, 13, WS_KV, 4 * KV_CHUNK)
    srd_off(a, 32, 12, 13, WS_O, S * D * 2)
    if PREFETCH:
        a('s_mov_b32 s58, %d' % (D * F * 2))
        a('s_cmp_eq_u32 s51, 3')
        a('s_cselect_b32 s58, %d, s58' % (D * D * 2))
        a('s_mov_b32 s59, 0x00020000')
    a('buffer_load_dwordx4 v[%d:%d], v%d, s[24:27], 0 offen' % (Q1, Q1 + 3, vT))
    a('buffer_load_dword v%d, v%d, s[24:27], 0 offen offset:32' % (Q2, vOOFF))
    a('s_lshl_b32 s19, s16, 10')
    for c in range(4):
        for i in range(5):
            off = c * KV_CHUNK + i * 8192
            a('s_add_u32 m0, s19, %d' % off)
            a('s_mov_b32 s20, %d' % off)
            a('buffer_load_dwordx4 v%d, s[28:31], s20 offen lds' % (vT + 1), tag='kv%d' % c)
    a('v_lshlrev_b32 v%d, 4, v%d' % (vK1A, vLANE))
    a('v_lshlrev_b32 v%d, 2, v%d' % (vK2A, vQ))
    a('v_add_u32 v%d, 1024, v%d' % (vK2A, vK2A))
    a('v_mov_b32 v%d, v%d' % (vT + 2, vQ))
    a('v_cmp_lt_u32 vcc, 18, v%d' % vQ)
    a('v_cndmask_b32 v%d, v%d, 4, vcc' % (vT + 2, vT + 2))
    a('v_add_u32 v%d, -20, v%d' % (vT + 3, vQ))
    a('v_cmp_gt_u32 vcc, 8, v%d' % (vT + 3))
    a('v_cndmask_b32 v%d, v%d, 0, vcc' % (vT + 2, vT + 2))
    a('v_mul_u32_u24 v%d, 19, v%d' % (vT + 3, vHI))
    a('v_add_u32 v%d, v%d, v%d' % (vT + 2, vT + 2, vT + 3))
    a('v_lshlrev_b32 v%d, 4, v%d' % (vVA, vT + 2))
    a('v_add_u32 v%d, %d, v%d' % (vVA, KV_VOFF, vVA))
    for b in range(2):
        a('v_mov_b32 v%d, 0' % (K2B[b] + 1))
    for r in range(16):
        a('v_mov_b32 v%d, 0' % (O + r))
    a('v_mov_b32 v%d, 0' % (Q2 + 1))
    a('v_cmp_eq_u32 vcc, 0, v%d' % vHI)
    a('v_cndmask_b32 v%d, 0, v%d, vcc' % (Q2, Q2))
    a.wait_vm('kv0')
    a('s_barrier')
    stamp(a, 1)
    kreads(a, 0, 0)
    kreads(a, 1, 1)
    vreads(a, 0, 0)
    a(mfma32k8(SB[0], K2B[0], Q2, '0'))
    a(mfma32(SB[0], K1B[0], Q1))
    a('s_mov_b32 s21, 0')
    a('s_mov_b32 s23, %d' % (-3 * KV_CHUNK))
    a('s_mov_b32 s42, %d' % KV_CHUNK)
    a('s_nop 9')
    a.loop_begin('K2_LOOP')
    a('s_cmp_eq_u32 s21, 3')
    a('s_cselect_b32 s22, s23, s42')
    for tl in range(16):
        cur = tl & 1; nxt = cur ^ 1
        Sc = SB[cur]; Sn = SB[nxt]
        if tl == 14:
            a('s_cmp_lg_u32 s21, 0')
            a('s_cbranch_scc1 K2_NOBAR')
            a.opt_begin()
            a('s_waitcnt vmcnt(0)')
            a('s_barrier')
            if PREFETCH:
                a('buffer_load_dword v%d, v%d, s[56:59], 0 offen' % (vPF + 1, vPF))
            a.opt_end()
            a.label('K2_NOBAR')
            a('v_add_u32 v%d, s22, v%d' % (vK1A, vK1A))
            a('v_add_u32 v%d, s22, v%d' % (vK2A, vK2A))
        if tl == 15:
            a('v_add_u32 v%d, s22, v%d' % (vVA, vVA))
        tile_body(a, tl, cur, nxt, Sc, Sn)
    a('s_add_u32 s21, s21, 1')
    a('s_cmp_lt_u32 s21, 4')
    a.loop_end('s_cbranch_scc1 K2_LOOP')
    stamp(a, 2)
    a('v_mov_b32 v%d, v%d' % (vT, O + 10))
    a('v_mov_b32 v%d, v%d' % (vT + 1, O + 10))
    a('v_permlane32_swap_b32 v%d, v%d' % (vT, vT + 1))
    a('v_max3_f32 v%d, |v%d|, |v%d|, |v%d|' % (vT + 2, O, O + 1, O + 2))
    a('v_max3_f32 v%d, |v%d|, |v%d|, v%d' % (vT + 2, O + 3, O + 4, vT + 2))
    a('v_max3_f32 v%d, |v%d|, |v%d|, v%d' % (vT + 2, O + 5, O + 6, vT + 2))
    a('v_max3_f32 v%d, |v%d|, |v%d|, v%d' % (vT + 2, O + 7, O + 8, vT + 2))
    a('v_max_f32 v%d, |v%d|, v%d' % (vT + 2, O + 9, vT + 2))
    a('v_cmp_lt_f32 vcc, %s, v%d' % (f32(2.0 ** -60), vT))
    a('s_mov_b32 s38, %s' % f32(2.0 ** 60))
    a('s_mov_b32 s39, %s' % f32(2.0 ** 120))
    a('v_cmp_gt_f32 s[36:37], s38, v%d' % vT)
    a('v_cmp_gt_f32 s[40:41], s39, v%d' % (vT + 2))
    a('s_and_b64 s[36:37], s[36:37], vcc')
    a('s_and_b64 s[36:37], s[36:37], s[40:41]')
    a('s_cmp_eq_u64 s[36:37], -1')
    a('s_cbranch_scc0 K2_SLOW')
    t1 = a.finish()

    a = Asm()
    a.label('K2_FIN')
    a('v_rcp_f32 v%d, v%d' % (vT, vT))
    for r in range(10):
        a('v_mul_f32 v%d, v%d, v%d' % (O + r, O + r, vT))
    for i in range(5):
        a('v_cvt_pk_bf16_f32 v%d, v%d, v%d' % (P + i, O + 2 * i, O + 2 * i + 1))
    a('s_lshr_b32 s22, s16, 1')
    a('s_mul_i32 s22, s22, %d' % KV_CHUNK)
    a('s_and_b32 s23, s16, 1')
    a('s_mul_i32 s23, s23, 1168')
    a('s_add_u32 s22, s22, s23')
    a('s_add_u32 s22, s22, %d' % (KV_CHUNK - 3072))
    a('v_mul_u32_u24 v%d, 36, v%d' % (vT + 1, vQ))
    a('v_add_u32 v%d, s22, v%d' % (vT + 1, vT + 1))
    a('v_lshl_add_u32 v%d, v%d, 3, v%d' % (vT + 2, vHI, vT + 1))
    a('ds_write2_b32 v%d, v%d, v%d offset0:0 offset1:1' % (vT + 2, P, P + 1))
    a('ds_write2_b32 v%d, v%d, v%d offset0:4 offset1:5' % (vT + 2, P + 2, P + 3))
    a('s_mov_b32 exec_hi, 0')
    a('ds_write_b32 v%d, v%d offset:32' % (vT + 1, P + 4))
    a('s_mov_b32 exec_hi, -1')
    a('s_waitcnt lgkmcnt(0)')
    a('s_barrier')
    def out_units(ireg):
        a('v_and_b32 v%d, 7, v%d' % (vT + 3, vLANE))
        a('v_bfe_u32 v%d, v%d, 3, 2' % (vT + 4, vLANE))
        a('v_lshrrev_b32 v%d, 5, v%d' % (vT + 5, vLANE))
        a('s_lshl_b32 s23, %s, 1' % ireg)
        a('v_add_u32 v%d, s23, v%d' % (vT + 5, vT + 5))
        a('v_lshrrev_b32 v%d, 1, v%d' % (vT + 6, vT + 3))
        a('v_mul_u32_u24 v%d, %d, v%d' % (vT + 6, KV_CHUNK, vT + 6))
        a('v_and_b32 v%d, 1, v%d' % (vT + 7, vT + 3))
        a('v_mul_u32_u24 v%d, 1168, v%d' % (vT + 7, vT + 7))
        a('v_add3_u32 v%d, v%d, v%d, s47' % (vT + 6, vT + 6, vT + 7))
        a('v_lshl_add_u32 v%d, v%d, 6, v%d' % (vT + 6, vT + 5, vT + 6))
        a('v_lshl_add_u32 v%d, v%d, 4, v%d' % (vT + 6, vT + 4, vT + 6))
        a('ds_read_b128 v[%d:%d], v%d' % (P, P + 3, vT + 6))
        a('v_lshlrev_b32 v%d, 10, v%d' % (vT + 7, vT + 5))
        a('v_lshl_add_u32 v%d, v%d, 8, v%d' % (vT + 7, vT + 4, vT + 7))
        a('v_lshl_add_u32 v%d, v%d, 4, v%d' % (vT + 7, vT + 3, vT + 7))
        a('buffer_store_dwordx4 v[%d:%d], v%d, s[32:35], s48 offen' % (P, P + 3, vT + 7))
    a('s_mov_b32 s47, %d' % (KV_CHUNK - 3072))
    a('s_lshr_b32 s48, s2, 1')
    a('s_mul_i32 s48, s48, 18432')
    a('s_and_b32 s49, s2, 1')
    a('s_lshl_b32 s49, s49, 7')
    a('s_add_u32 s48, s48, s49')
    out_units('s16')
    a('s_cmp_lg_u32 s16, 0')
    a('s_cbranch_scc1 K2_DONE')
    a('s_mov_b32 s50, 8')
    out_units('s50')
    a.label('K2_DONE')
    stamp(a, 3)
    stamp_store(a, 1, 4)
    a('s_endpgm')
    t2 = a.finish()

    a = Asm()
    a.label('K2_SLOW')
    a('v_lshlrev_b32 v%d, 4, v%d' % (vK1A, vLANE))
    a('v_lshlrev_b32 v%d, 2, v%d' % (vK2A, vQ))
    a('v_add_u32 v%d, 1024, v%d' % (vK2A, vK2A))
    for r in range(16):
        a('v_mov_b32 v%d, 0' % (O + r))
    a('v_mov_b32 v%d, %s' % (vM, f32(-3.0e38)))
    a('s_mov_b32 s43, %d' % (KV_CHUNK - 15 * 1152))
    a('s_mov_b32 s44, 1152')
    a('s_mov_b32 s45, %d' % (KV_CHUNK - 15 * 1216))
    a('s_mov_b32 s46, 1216')
    a('s_mov_b32 s21, 0')
    Sc = SB[0]
    a.loop_begin('K2_SLOOP')
    kreads(a, 0, 0)
    vreads(a, 0, 0)
    a(mfma32k8(Sc, K2B[0], Q2, '0'))
    a(mfma32(Sc, K1B[0], Q1))
    a('v_max3_f32 v%d, v%d, v%d, v%d' % (vMX, Sc, Sc + 1, Sc + 2))
    for r in range(3, 15, 2):
        a('v_max3_f32 v%d, v%d, v%d, v%d' % (vMX, Sc + r, Sc + r + 1, vMX))
    a('v_max_f32 v%d, v%d, v%d' % (vMX, Sc + 15, vMX))
    a('v_mov_b32 v%d, v%d' % (vAL, vMX))
    a('v_permlane32_swap_b32 v%d, v%d' % (vMX, vAL))
    a('v_max3_f32 v%d, v%d, v%d, v%d' % (vMX, vMX, vAL, vM))
    a('v_sub_f32 v%d, v%d, v%d' % (vAL, vM, vMX))
    a('v_exp_f32 v%d, v%d' % (vAL, vAL))
    a('v_mov_b32 v%d, v%d' % (vM, vMX))
    for r in range(16):
        a('v_sub_f32 v%d, v%d, v%d' % (Sc + r, Sc + r, vM))
    for r in range(16):
        a('v_exp_f32 v%d, v%d' % (Sc + r, Sc + r))
    for r in range(16):
        a('v_mul_f32 v%d, v%d, v%d' % (O + r, O + r, vAL))
    for i in range(8):
        a('v_cvt_pk_bf16_f32 v%d, v%d, v%d' % (P + i, Sc + 2 * i, Sc + 2 * i + 1))
    a(mfma32(O, VB[0], P))
    a(mfma32(O, VB[0] + 4, P + 4))
    a('s_add_u32 s21, s21, 1')
    a('s_and_b32 s22, s21, 15')
    a('s_cmp_eq_u32 s22, 0')
    a('s_cselect_b32 s22, s43, s44')
    a('s_cselect_b32 s23, s45, s46')
    a('v_add_u32 v%d, s22, v%d' % (vK1A, vK1A))
    a('v_add_u32 v%d, s22, v%d' % (vK2A, vK2A))
    a('v_add_u32 v%d, s23, v%d' % (vVA, vVA))
    a('s_cmp_lt_u32 s21, 64')
    a.loop_end('s_cbranch_scc1 K2_SLOOP')
    a('v_mov_b32 v%d, v%d' % (vT, O + 10))
    a('v_mov_b32 v%d, v%d' % (vT + 1, O + 10))
    a('v_permlane32_swap_b32 v%d, v%d' % (vT, vT + 1))
    a('s_nop 1')
    a('s_branch K2_FIN')
    t3 = a.finish()
    end = 'K2_END:\n  s_endpgm\n'
    return kernel_header(name) + t1 + t2 + t3 + end, kernel_desc(name, 256 if common.STAMPS else 128, 102), (256, 512, LDS_K2)
```

```python
from asmgen import *
from common import *
import common
LDS_K3 = 576 * 192
X = 32
FR = 108
ACC = 132
XR = 144
vLANE, vG, vN, vROW = 1, 2, 3, 4
vT = 10
vRB = 24
vD = 6
vS1, vS2 = 28, 29
ONE = 30

def gen_k3(name='k3_kernel'):
    a = Asm()
    stamp(a, 0); stamp_rt(a, 9)
    a('s_load_dwordx2 s[4:5], s[0:1], 0')
    a('s_load_dwordx2 s[6:7], s[0:1], 32')
    a('s_load_dwordx2 s[12:13], s[0:1], 88')
    a('s_cmp_ge_u32 s2, 192')
    a('s_cbranch_scc1 K3_END')
    a('v_and_b32 v%d, 63, v0' % vLANE)
    a('v_lshrrev_b32 v%d, 6, v0' % vT)
    a('v_readfirstlane_b32 s16, v%d' % vT)
    a('s_and_b32 s19, s16, 3')
    a('s_lshr_b32 s20, s16, 2')
    a('s_and_b32 s21, s2, 7')
    a('s_lshr_b32 s22, s2, 3')
    a('s_and_b32 s22, s22, 3')
    a('s_lshl_b32 s22, s22, 3')
    a('s_add_u32 s17, s21, s22')
    a('s_lshr_b32 s18, s2, 5')
    a('v_and_b32 v%d, 15, v%d' % (vN, vLANE))
    a('v_lshrrev_b32 v%d, 4, v%d' % (vG, vLANE))
    a('s_lshl_b32 s23, s17, 2')
    a('s_add_u32 s23, s23, s19')
    a('s_lshl_b32 s33, s23, 4')
    a('v_add_u32 v%d, s33, v%d' % (vROW, vN))
    a('v_lshlrev_b32 v%d, 4, v%d' % (vT, vLANE))
    a('s_mul_i32 s34, s23, 18432')
    a('v_mul_u32_u24 v%d, 5462, v%d' % (vT + 1, vLANE))
    a('v_lshrrev_b32 v%d, 16, v%d' % (vT + 1, vT + 1))
    a('v_mul_u32_u24 v%d, 12, v%d' % (vT + 2, vT + 1))
    a('v_sub_u32 v%d, v%d, v%d' % (vT + 2, vLANE, vT + 2))
    a('s_lshl_b32 s33, s16, 2')
    a('v_add_u32 v%d, s33, v%d' % (vT + 1, vT + 1))
    a('v_and_b32 v%d, 0x33, v%d' % (vT + 3, vT + 1))
    a('v_and_b32 v%d, 4, v%d' % (vT + 4, vT + 1))
    a('v_lshl_or_b32 v%d, v%d, 1, v%d' % (vT + 3, vT + 4, vT + 3))
    a('v_and_b32 v%d, 8, v%d' % (vT + 4, vT + 1))
    a('v_lshrrev_b32 v%d, 1, v%d' % (vT + 4, vT + 4))
    a('v_or_b32 v%d, v%d, v%d' % (vT + 3, vT + 3, vT + 4))
    a('s_and_b32 s33, s16, 1')
    a('s_lshl_b32 s33, s33, 1')
    a('v_xor_b32 v%d, s33, v%d' % (vT + 2, vT + 2))
    a('v_mul_u32_u24 v%d, 1152, v%d' % (vT + 3, vT + 3))
    a('v_lshl_add_u32 v%d, v%d, 4, v%d' % (vD, vT + 2, vT + 3))
    a('s_mul_i32 s33, s18, 192')
    a('v_add_u32 v%d, s33, v%d' % (vD, vD))
    a('s_waitcnt lgkmcnt(0)')
    srd(a, 24, 4, 5, S * D * 2)
    srd(a, 28, 6, 7, D * D * 2)
    srd_off(a, 36, 12, 13, WS_O, S * D * 2)
    srd_off(a, 40, 12, 13, WS_H, WS_HB - WS_H)
    for k in range(18):
        a('buffer_load_dwordx4 v[%d:%d], v%d, s[36:39], s34 offen offset:%d' % (X + 4 * k, X + 4 * k + 3, vT, (k % 4) * 1024), tag='x')
        if k % 4 == 3: a('s_add_u32 s34, s34, 4096')
    a('s_mul_i32 s34, s16, 768')
    a('s_mov_b32 s35, 0')
    a('s_mov_b32 exec_hi, 0x0000ffff')
    for q in range(18):
        a('s_mov_b32 m0, s34')
        a('buffer_load_dwordx4 v%d, s[28:31], s35 offen lds' % vD, tag='w')
        if q < 17:
            a('s_add_u32 s34, s34, %d' % (8 * 768))
            a('s_add_u32 s35, s35, %d' % (32 * 1152))
    a('s_mov_b32 exec_hi, -1')
    a('s_mul_i32 s33, s18, 192')
    a('s_mul_i32 s35, s20, 96')
    a('s_add_u32 s33, s33, s35')
    a('v_mul_u32_u24 v%d, 1152, v%d' % (vT, vROW))
    a('v_lshl_add_u32 v%d, v%d, 3, v%d' % (vT, vG, vT))
    for ti in range(3):
        a('buffer_load_dwordx2 v[%d:%d], v%d, s[24:27], s33 offen offset:%d' % (XR + 2 * ti, XR + 2 * ti + 1, vT, ti * 32))
    a('v_lshrrev_b32 v%d, 1, v%d' % (vT, vG))
    a('v_lshlrev_b32 v%d, 4, v%d' % (vT, vT))
    a('v_and_b32 v%d, 1, v%d' % (vT + 1, vG))
    a('v_lshl_add_u32 v%d, v%d, 2, v%d' % (vT, vT + 1, vT))
    a('v_lshrrev_b32 v%d, 2, v%d' % (vT + 2, vN))
    a('v_add_u32 v%d, v%d, v%d' % (vT, vT, vT + 2))
    a('v_mul_u32_u24 v%d, 192, v%d' % (vT, vT))
    a('v_and_b32 v%d, 3, v%d' % (vT + 2, vN))
    a('v_lshl_add_u32 v%d, v%d, 3, v%d' % (vT, vT + 2, vT))
    a('v_add_u32 v%d, s35, v%d' % (vT, vT))
    a('v_lshlrev_b32 v%d, 5, v%d' % (vT + 1, vT + 1))
    a('s_cmp_eq_u32 s20, 0')
    a('s_cselect_b32 s33, 1, -1')
    a('v_mul_lo_u32 v%d, v%d, s33' % (vT + 1, vT + 1))
    a('v_add_u32 v%d, v%d, v%d' % (vRB, vT, vT + 1))
    a('v_sub_u32 v%d, v%d, v%d' % (vRB + 1, vT, vT + 1))
    a('v_add_u32 v%d, %d, v%d' % (vRB + 2, 10 * 6144, vRB))
    a('v_add_u32 v%d, %d, v%d' % (vRB + 3, 10 * 6144, vRB + 1))
    a('v_mov_b32 v%d, 0x3f803f80' % ONE)
    a('s_waitcnt vmcnt(0)')
    a('s_barrier')
    stamp(a, 1)
    steps = [(k, ti) for k in range(18) for ti in range(3)]
    NB = 6; PD = 5
    def reads(idx):
        k, ti = steps[idx]
        fr = FR + 4 * (idx % NB)
        base = vRB + (ti & 1) + (2 if k >= 10 else 0)
        off = (k if k < 10 else k - 10) * 6144 + ti * 32
        a('ds_read_b64_tr_b16 v[%d:%d], v%d offset:%d' % (fr, fr + 1, base, off))
        a('ds_read_b64_tr_b16 v[%d:%d], v%d offset:%d' % (fr + 2, fr + 3, base, off + 1536))
    for i in range(PD): reads(i)
    for idx, (k, ti) in enumerate(steps):
        fr = FR + 4 * (idx % NB)
        a(mfma16(ACC + 4 * ti, fr, X + 4 * k, '0' if k == 0 else None))
        if idx + PD < len(steps): reads(idx + PD)
    stamp(a, 2)
    a('s_lshr_b32 s33, s23, 1')
    a('s_mul_i32 s33, s33, 36')
    a('s_mul_i32 s34, s18, 6')
    a('s_add_u32 s33, s33, s34')
    a('s_mul_i32 s34, s20, 3')
    a('s_add_u32 s33, s33, s34')
    a('s_lshl_b32 s33, s33, 10')
    a('v_and_b32 v%d, 31, v%d' % (vT, vROW))
    a('v_lshrrev_b32 v%d, 1, v%d' % (vT + 1, vG))
    a('v_lshl_add_u32 v%d, v%d, 5, v%d' % (vT, vT + 1, vT))
    a('v_lshlrev_b32 v%d, 4, v%d' % (vT, vT))
    a('v_and_b32 v%d, 1, v%d' % (vT + 1, vG))
    a('v_lshl_add_u32 v%d, v%d, 3, v%d' % (vD, vT + 1, vT))
    a('v_mov_b32 v%d, 0' % vS1)
    a('v_mov_b32 v%d, 0' % vS2)
    for ti in range(3):
        t0 = vT + 2
        a('v_lshlrev_b32 v%d, 16, v%d' % (t0, XR + 2 * ti))
        a('v_and_b32 v%d, 0xffff0000, v%d' % (t0 + 1, XR + 2 * ti))
        a('v_lshlrev_b32 v%d, 16, v%d' % (t0 + 2, XR + 2 * ti + 1))
        a('v_and_b32 v%d, 0xffff0000, v%d' % (t0 + 3, XR + 2 * ti + 1))
        for r in range(4):
            a('v_add_f32 v%d, v%d, v%d' % (t0 + r, t0 + r, ACC + 4 * ti + r))
        a('v_cvt_pk_bf16_f32 v%d, v%d, v%d' % (XR + 2 * ti, t0, t0 + 1))
        a('v_cvt_pk_bf16_f32 v%d, v%d, v%d' % (XR + 2 * ti + 1, t0 + 2, t0 + 3))
        a('buffer_store_dwordx2 v[%d:%d], v%d, s[40:43], s33 offen offset:%d' % (XR + 2 * ti, XR + 2 * ti + 1, vD, ti * 1024))
        for r in range(2):
            a('v_dot2_f32_bf16 v%d, v%d, v%d, v%d' % (vS1, XR + 2 * ti + r, ONE, vS1))
            a('v_dot2_f32_bf16 v%d, v%d, v%d, v%d' % (vS2, XR + 2 * ti + r, XR + 2 * ti + r, vS2))
    xlane_sum(a, vS1, vT)
    xlane_sum(a, vS2, vT)
    a('s_lshl_b32 s33, s18, 1')
    a('s_add_u32 s33, s33, s20')
    a('s_lshl_b32 s33, s33, 3')
    a('s_add_u32 s33, s33, 0x%x' % (WS_ST - WS_H))
    a('v_mul_u32_u24 v%d, 96, v%d' % (vT, vROW))
    stamp(a, 3)
    stamp_store(a, 2, 4)
    a('v_cmp_eq_u32 vcc, 0, v%d' % vG)
    a('s_and_saveexec_b64 s[44:45], vcc')
    a('buffer_store_dwordx2 v[%d:%d], v%d, s[40:43], s33 offen' % (vS1, vS1 + 1, vT))
    a.label('K3_END')
    a('s_endpgm')
    return kernel_header(name) + a.finish(), kernel_desc(name, 256 if common.STAMPS else 152, 102), (256, 512, LDS_K3)
```

```python
import sys, importlib
sys.path.insert(0, 'gen')
HDR = open('sequential_preLN__grouped_kv_mqa__glu_gated_bilinear__prompt.s.ref').read().split('; Override launch geometry')[0]
def build(parts, path):
    out = HDR
    for t, d, (g, b, l), n in parts:
        out += '; @launch kernel=%s grid=(%d,1,1) block=(%d,1,1) lds=%d\n' % (n, g, b, l)
    out += '.amdgcn_target "amdgcn-amd-amdhsa--gfx950"\n.text\n'
    for t, d, _, n in parts: out += t
    out += '.section .rodata,"a"\n'
    for t, d, _, n in parts: out += d
    open(path, 'w').write(out)
if __name__ == '__main__':
    import common
    if '--stamps' in sys.argv:
        common.STAMPS = True; sys.argv.remove('--stamps')
    import k1b as k1, k2, k3b as k3, f1a as f1, f2a as f2
    for arg in list(sys.argv):
        if '=' in arg and '.' in arg.split('=')[0]:
            mod, rest = arg.split('.', 1); var, val = rest.split('=')
            mod = {"k1": "k1b", "k3": "k3b", "f1": "f1a", "f2": "f2a"}.get(mod, mod); setattr(sys.modules[mod], var, eval(val)); sys.argv.remove(arg)
    parts = []
    t, d, g = k1.gen_k1(); parts.append((t, d, g, 'k1_kernel'))
    t, d, g = k2.gen_k2(); parts.append((t, d, g, 'k2_kernel'))
    t, d, g = k3.gen_k3(); parts.append((t, d, g, 'k3_kernel'))
    t, d, g = f1.gen_f1(); parts.append((t, d, g, 'f1_kernel'))
    t, d, g = f2.gen_f2(); parts.append((t, d, g, 'f2_kernel'))
    if not f2.FUSE:
        t, d, g = f2.gen_red(); parts.append((t, d, g, 'red_kernel'))
    build(parts, sys.argv[1] if len(sys.argv) > 1 else 'dev.s')
```

```python
from asmgen import *
from common import *
import common
STG = 36864
CT_LDS = 4 * STG
REC_LDS = CT_LDS + 3072
LDS_F1 = REC_LDS + 8192
X = 16
ACC = 160
FR = 192
NB = 12
L = 10
CSR = 240
REC = 248
vL16, vNMU, vRB0, vRB1, vCTA, vT, vRW = 1, 2, 4, 5, 6, 7, 12
NSTEP = 36
P1_SIZE = WS_PEND - WS_P1
NOW = False
NOEPI = False
NOCS = False
NOBAR = False
PRIO = 0
HMOD = 'sc1'
TOUCHP2 = False
XPRE = 8
W1LATE = False
DIRECT = 4
STPOS = 16
SLOTB = True
NOREC = False
NOWR = False
NOST = False
NORD = False
PACE = 0
MAPR = 8

def emit(a, x):
    if callable(x): x()
    elif isinstance(x, tuple): a(x[0], tag=x[1])
    else: a(x)

def cost(x):
    if isinstance(x, list): return sum(cost(y) for y in x)
    t = x[0] if isinstance(x, tuple) else x
    return 2 if t.startswith('ds_') else 1

class Side:
    def __init__(self): self.q = []
    def add(self, items, start):
        for x in items: self.q.append((start, x))
    def step(self, a, i, cap):
        while self.q and self.q[0][0] <= i and cost(self.q[0][1]) <= cap:
            _, x = self.q.pop(0)
            cap -= cost(x)
            for y in (x if isinstance(x, list) else [x]): emit(a, y)
    def flush(self, a):
        for _, x in self.q:
            for y in (x if isinstance(x, list) else [x]): emit(a, y)
        self.q = []

def xreg(k, tt): return X + 4 * (2 * k + tt)

def dma_groups(tag):
    out = []
    for grp in range(3):
        n = 4 if grp < 2 else 1
        for q in range(n):
            g = []
            if q == 0:
                g.append('s_add_u32 m0, s33, %d' % (grp * 4096))
                g.append('s_add_u32 s34, s21, %d' % (grp * 4096))
            g.append(('buffer_load_dwordx4 v%d, s[24:27], s34 offen offset:%d lds' % (vL16, q * 1024), tag))
            if PACE and tag != 'p0':
                for _ in range(PACE): g.append('s_nop 15')
            out.append(g)
    return out

def epilogue(e, half):
    A = ACC + 16 * e
    ins = []
    for tt in range(2):
        G = A + 4 * tt; U = A + 8 + 4 * tt
        for r in range(4): ins.append('v_fmac_f32 v%d, v%d, v%d' % (G + r, vNMU + tt, CSR + r))
        for r in range(4): ins.append('v_fmac_f32 v%d, v%d, v%d' % (U + r, vNMU + tt, CSR + 4 + r))
        for r in range(4): ins.append('v_mul_f32 v%d, v%d, v%d' % (G + r, G + r, U + r))
        for i in range(2): ins.append('v_cvt_pk_bf16_f32 v%d, v%d, v%d' % (REC + 4 * tt + 2 * half + i, G + 2 * i, G + 2 * i + 1))
    return ins

def csreads(off):
    return [('ds_read_b128 v[%d:%d], v%d offset:%d' % (CSR + 4 * m, CSR + 4 * m + 3, vCTA, off + 64 * m), 'cs') for m in range(2)]

def read(a, par, i):
    fr = FR + 4 * (i % NB)
    a('ds_read_b128 v[%d:%d], v%d offset:%d' % (fr, fr + 3, vRB1 if par else vRB0, i * 1024), tag='r%d' % (i % NB))

def nmu_code():
    ins = []
    for tt, b in ((0, ACC + 16), (1, ACC + 22)):
        v = vNMU + tt
        ins.append('v_add_f32 v%d, v%d, v%d' % (v, b, b + 2))
        ins.append('v_add_f32 v%d, v%d, v%d' % (v, v, b + 4))
        ins.append('v_mov_b32 v%d, v%d' % (vT, v))
        ins.append('s_nop 1')
        ins.append('v_permlane16_swap_b32 v%d, v%d' % (v, vT))
        ins.append('v_add_f32 v%d, v%d, v%d' % (v, v, vT))
        ins.append('v_mov_b32 v%d, v%d' % (vT, v))
        ins.append('s_nop 1')
        ins.append('v_permlane32_swap_b32 v%d, v%d' % (v, vT))
        ins.append('v_add_f32 v%d, v%d, v%d' % (v, v, vT))
        ins.append('v_mul_f32 v%d, %s, v%d' % (v, f32(-1.0 / 576), v))
    return ins

def stage(a, par, peeled):
    A = ACC + 16 * par
    side = Side()
    first = peeled and par == 0
    barpos = NSTEP - L
    if not first:
        ep0 = epilogue(1 - par, 1 - par)
        half = 1 - par
        ep = []
        for tt in range(2):
            blk = ep0[14 * tt:14 * tt + 14]
            ep += blk
            if not NOREC and not NOWR:
                for i in range(2):
                    ep.append(('ds_write_b32 v%d, v%d offset:%d' % (vRW, REC + 4 * tt + 2 * half + i, ((half * 2 + tt) * 2 + i) * 256), 'rec'))
        if DIRECT:
            ep = list(ep0)
        if NOEPI: ep = [x for x in ep if isinstance(x, tuple)]
        side.add(ep, 1)
        if DIRECT and par == 0:
            st = [('buffer_store_dwordx4 v[%d:%d], v%d, s[40:43], s44 offen offset:%d %s' % (REC + 4 * tt, REC + 4 * tt + 3, vL16, tt * 1024, HMOD), 'ds_') for tt in range(2)]
            side.add([['s_nop 0', st[0][0]]], STPOS)
            side.add([['s_nop 0', st[1][0]]], STPOS + 2)
            side.add(['s_add_u32 s44, s44, 2048'], STPOS + 2)
    else:
        xq = list(XLATE)
        side.add(nmu_code(), 28)
    for i in range(NSTEP):
        k, mat = i >> 1, i & 1
        fr = FR + 4 * (i % NB)
        if i == barpos:
            if not first and not NOREC and not NOWR and not DIRECT:
                assert not side.q, 'record write must precede the barrier'
                a.wait_lgkm('rec')
            a('s_barrier')
            if par == 1:
                side.add(['s_xor_b32 s22, s22, %d' % (2 * STG)], i)
        a(mfma16(A + 8 * mat, fr, xreg(k, 0), '0' if k == 0 else None))
        cap = 2
        if i == barpos and par == 1:
            a('s_xor_b32 s22, s22, %d' % (2 * STG)); side.q.pop(0)
            a('v_add_u32 v%d, s22, v%d' % (vRB0, vL16))
            side.add(['v_add_u32 v%d, %d, v%d' % (vRB1, STG, vRB0), 'v_add_u32 v%d, 256, v%d' % (vCTA, vCTA)], i + 1)
            cap = 0
        if i == barpos + 2 and not NOCS:
            side.add(csreads(0 if par else 128), i)
        if i % 2 == 1:
            a.wait_lgkm('r%d' % ((i + 2) % NB)); cap -= 1
        if first and xq:
            for x in xq.pop(0): a(x)
        side.step(a, i, cap)
        a(mfma16(A + 8 * mat + 4, fr, xreg(k, 1), '0' if k == 0 else None))
        j = i + L
        if j < NSTEP: read(a, par, j)
        else: read(a, 1 - par, j - NSTEP)
        if SLOTB: side.step(a, i, 1)
    side.flush(a)

def gen_f1(name='f1_kernel'):
    a = Asm()
    stamp(a, 0); stamp_rt(a, 9)
    a('s_load_dwordx2 s[12:13], s[0:1], 88')
    a('s_cmp_ge_u32 s2, 256')
    a('s_cbranch_scc1 F1_END')
    a('v_and_b32 v%d, 63, v0' % vT)
    a('v_lshrrev_b32 v%d, 6, v0' % (vT + 1))
    a('v_readfirstlane_b32 s17, v%d' % (vT + 1))
    a('v_lshlrev_b32 v%d, 4, v%d' % (vL16, vT))
    a('s_and_b32 s16, s17, 3')
    import math
    nR = MAPR; nj = 32 // nR; lR = int(math.log2(nR)); lj = int(math.log2(nj))
    gj = 16 // nj
    lgj = int(math.log2(gj))
    a('s_and_b32 s33, s2, 7')
    a('s_lshr_b32 s34, s2, 3')
    a('s_lshr_b32 s19, s33, %d' % lgj)
    a('s_lshl_b32 s19, s19, %d' % lR)
    a('s_and_b32 s35, s34, %d' % (nR - 1))
    a('s_add_u32 s19, s19, s35')
    a('s_and_b32 s20, s33, %d' % (gj - 1))
    a('s_lshl_b32 s20, s20, %d' % lj)
    a('s_lshr_b32 s35, s34, %d' % lR)
    a('s_add_u32 s20, s20, s35')
    a('s_lshl_b32 s46, s19, 2')
    a('s_add_u32 s46, s46, s16')
    a('s_lshl_b32 s33, s16, 11')
    a('s_add_u32 s33, s33, %d' % REC_LDS)
    a('v_lshlrev_b32 v%d, 2, v%d' % (vRW, vT))
    a('v_add_u32 v%d, s33, v%d' % (vRW, vRW))
    a('s_mul_i32 s44, s46, 144')
    a('s_mul_i32 s33, s20, 9')
    a('s_add_u32 s44, s44, s33')
    a('s_lshl_b32 s44, s44, 11')
    a('s_mul_i32 s21, s20, %d' % (18 * STG))
    a('s_lshl_b32 s33, s17, 12')
    a('s_add_u32 s34, s21, s33')
    a('s_mul_i32 s47, s20, %d' % (18 * 128))
    a('s_add_u32 s47, s47, 0x%x' % (WS_CT - WS_P1))
    a('s_sub_u32 s48, s17, 4')
    a('s_min_u32 s48, s48, 2')
    a('s_lshl_b32 s48, s48, 10')
    a('s_lshl_b32 s35, s17, 10')
    a('s_add_u32 s35, s35, 32768')
    a('s_add_u32 s45, s21, s35')
    a('s_add_u32 s47, s47, s48')
    a('s_add_u32 s48, s48, %d' % CT_LDS)
    a('s_cmp_ge_u32 s17, 4')
    a('s_cselect_b32 s45, s47, s45')
    a('s_cselect_b32 s35, s48, s35')
    a('s_waitcnt lgkmcnt(0)')
    srd_off(a, 24, 12, 13, WS_P1, P1_SIZE)
    a('s_mov_b32 m0, s33')
    for q in range(4):
        a('buffer_load_dwordx4 v%d, s[24:27], s34 offen offset:%d lds' % (vL16, q * 1024))
    a('s_mov_b32 m0, s35')
    a('buffer_load_dwordx4 v%d, s[24:27], s45 offen lds' % vL16)
    a('s_cmp_ge_u32 s17, 4')
    a('s_cbranch_scc1 F1_PROD')
    t0 = a.finish()

    a = Asm()
    if PRIO: a('s_setprio %d' % PRIO)
    a('s_mul_i32 s35, s46, %d' % (2 * 18 * 1024))
    a('s_add_u32 s45, s35, %d' % (18 * 1024))
    a('v_and_b32 v%d, 15, v%d' % (vT + 1, vT))
    a('v_lshrrev_b32 v%d, 4, v%d' % (vT + 2, vT))
    a('s_lshl_b32 s33, s46, 5')
    a('v_add_u32 v%d, s33, v%d' % (vT + 1, vT + 1))
    a('v_mul_u32_u24 v%d, 96, v%d' % (vT + 1, vT + 1))
    a('v_mul_u32_u24 v%d, 24, v%d' % (vT + 3, vT + 2))
    a('v_add_u32 v%d, v%d, v%d' % (vT + 1, vT + 1, vT + 3))
    a('v_lshlrev_b32 v%d, 4, v%d' % (vCTA, vT + 2))
    a('v_add_u32 v%d, %d, v%d' % (vCTA, CT_LDS - 128, vCTA))
    a('v_mov_b32 v%d, v%d' % (vRB0, vL16))
    a('v_add_u32 v%d, %d, v%d' % (vRB1, STG, vL16))
    a('s_mov_b32 s22, 0')
    a('s_waitcnt lgkmcnt(0)')
    srd_off(a, 36, 12, 13, WS_H, WS_HB - WS_H)
    srd_off(a, 40, 12, 13, WS_HB, WS_FLAG - WS_HB)
    xl = []
    for k in range(18):
        for tt in range(2):
            r = xreg(k, tt)
            g = ['buffer_load_dwordx4 v[%d:%d], v%d, s[36:39], s%d offen offset:%d' % (r, r + 3, vL16, 35 if tt == 0 else 45, (k % 4) * 1024)]
            if k % 4 == 3 and tt == 1: g += ['s_add_u32 s35, s35, 4096', 's_add_u32 s45, s45, 4096']
            xl.append(g)
    xl.append(['s_mov_b32 s35, 0x%x' % (WS_ST - WS_H)])
    for tt, b in ((0, ACC + 16), (1, ACC + 22)):
        xl.append(['buffer_load_dwordx4 v[%d:%d], v%d, s[36:39], s35 offen offset:%d' % (b, b + 3, vT + 1, tt * 1536)])
        xl.append(['buffer_load_dwordx2 v[%d:%d], v%d, s[36:39], s35 offen offset:%d' % (b + 4, b + 5, vT + 1, tt * 1536 + 16)])
    for g in xl[:2 * XPRE]:
        for x in g: a(x)
    global XLATE
    XLATE = xl[2 * XPRE:]
    stamp(a, 1)
    a('s_waitcnt vmcnt(%d)' % (2 * XPRE))
    a('s_barrier')
    stamp(a, 4)
    for i in range(L): read(a, 0, i)
    a.wait_lgkm('r1')
    stage(a, 0, True)
    stamp(a, 2)
    stage(a, 1, True)
    a('s_mov_b32 s49, 1')
    stamp(a, 5)
    a.loop_begin('F1_LOOP')
    stage(a, 0, False)
    stage(a, 1, False)
    a('s_add_u32 s49, s49, 1')
    a('s_cmp_le_u32 s49, 8')
    a.loop_end('s_cbranch_scc1 F1_LOOP')
    if not DIRECT: a('s_add_u32 s44, s44, %d' % (8 * 2048))
    for x in epilogue(1, 1): a(x)
    for tt in range(2):
        a('buffer_store_dwordx4 v[%d:%d], v%d, s[40:43], s44 offen offset:%d %s' % (REC + 4 * tt, REC + 4 * tt + 3, vL16, tt * 1024, HMOD))
    stamp(a, 3)
    stamp_store(a, 3, 6, 's17')
    a('s_endpgm')
    t1 = a.finish()

    a = Asm()
    a.label('F1_PROD')
    a('s_mul_i32 s23, s16, 9216')
    a('s_add_u32 s21, s21, s23')
    srd_off(a, 40, 12, 13, WS_HB, WS_FLAG - WS_HB)
    a('s_mov_b32 s50, 0x%x' % (0 if NOW else P1_SIZE))
    a('s_mov_b32 s51, 0x%x' % (WS_FLAG - WS_HB))
    def w1():
        a('s_add_u32 s21, s21, %d' % STG)
        a('s_add_u32 s33, s23, %d' % STG)
        for g in dma_groups('w1'):
            for x in g: emit(a, x)
    stamp(a, 1)
    if not W1LATE: w1()
    stamp(a, 2)
    a('s_waitcnt vmcnt(%d)' % (0 if W1LATE else 9))
    stamp(a, 3)
    a('s_barrier')
    if W1LATE: w1()
    a('s_add_u32 s21, s21, %d' % STG)
    a('s_add_u32 s33, s23, %d' % (2 * STG))
    for g in dma_groups('w0'):
        for x in g: emit(a, x)
    if TOUCHP2:
        a('s_lshl_b32 s34, s2, 2')
        a('s_add_u32 s34, s34, s16')
        a('s_mul_i32 s34, s34, %d' % (44 * 128))
        a('s_add_u32 s34, s34, 0x%x' % (WS_P2 - WS_P1))
        a('v_lshlrev_b32 v20, 3, v%d' % vL16)
        a('v_min_u32 v20, %d, v20' % (43 * 128))
        a('buffer_load_dword v21, v20, s[24:27], s34 offen')
    a('s_mov_b32 s22, 0')
    a('s_mov_b32 s49, 0')
    def tm(r): pass
    def acc_(dst, x, y): pass
    a.loop_begin('F1_PLOOP')
    tm(96)
    a.wait_vm('w1')
    tm(98); acc_(66, 96, 98)
    a('s_barrier')
    tm(96); acc_(68, 98, 96)
    if not NOREC and not NORD and not DIRECT:
        for tt in range(2):
            a('ds_read2st64_b32 v[%d:%d], v%d offset0:%d offset1:%d' % (18 + 4 * tt, 19 + 4 * tt, vRW, 4 + tt * 2, 4 + tt * 2 + 1))
    a('s_cmp_ge_u32 s49, 1')
    a('s_cselect_b32 s42, s51, 0')
    a('s_xor_b32 s22, s22, %d' % (2 * STG))
    a('s_add_u32 s33, s22, %d' % STG)
    a('s_add_u32 s33, s33, s23')
    a('s_add_u32 s21, s21, %d' % STG)
    a('s_cmp_le_u32 s49, 7')
    a('s_cselect_b32 s26, s50, 0')
    for g in dma_groups('w1'):
        for x in g: emit(a, x)
    if not NOREC and not NOST and not DIRECT:
        a('buffer_store_dwordx4 v[16:19], v%d, s[40:43], s44 offen offset:0' % vL16)
        a('buffer_store_dwordx4 v[20:23], v%d, s[40:43], s44 offen offset:1024' % vL16)
    a('s_cmp_ge_u32 s49, 1')
    a('s_cselect_b32 s34, 2048, 0')
    a('s_add_u32 s44, s44, s34')
    a('s_waitcnt lgkmcnt(0)')
    tm(96)
    a.wait_vm('w0')
    tm(98); acc_(66, 96, 98)
    a('s_barrier')
    tm(96); acc_(68, 98, 96)
    if not NOREC and not NORD and not DIRECT:
        for tt in range(2):
            a('ds_read2st64_b32 v[%d:%d], v%d offset0:%d offset1:%d' % (16 + 4 * tt, 17 + 4 * tt, vRW, tt * 2, tt * 2 + 1))
    a('s_xor_b32 s33, s22, %d' % (2 * STG))
    a('s_add_u32 s33, s33, s23')
    a('s_add_u32 s21, s21, %d' % STG)
    a('s_cmp_le_u32 s49, 6')
    a('s_cselect_b32 s26, s50, 0')
    for g in dma_groups('w0'):
        for x in g: emit(a, x)
    a('s_waitcnt lgkmcnt(0)')
    a('s_add_u32 s49, s49, 1')
    a('s_cmp_le_u32 s49, 8')
    a.loop_end('s_cbranch_scc1 F1_PLOOP')
    stamp_store(a, 5, 4, 's17')
    a('s_waitcnt vmcnt(0)')
    a.label('F1_END')
    a('s_endpgm')
    t2 = a.finish()
    return kernel_header(name) + t0 + t1 + t2, kernel_desc(name, 256, 102), (256, 512, LDS_F1)
```

```python
from asmgen import *
from common import *
import common
from f1a import Side, emit
from f2b import gen_red, rstd2_code
WSTG = 18432
STG = WSTG + 16384
LDS_F2 = 4 * STG
ACC = 16
HS = 88
FR = 120
NB = 12
L = 10
vL16, vRB0, vRB1, vHB0, vHB1, vT = 1, 2, 3, 4, 5, 6
NS = 18
P_SIZE = WS_PEND - WS_P1
H_SIZE = WS_PART - WS_HB
NOW = False
NOH = False
TOUCH = False

def acc(dt, tt): return ACC + 4 * (2 * dt + tt)
def hreg(par, m, tt): return HS + 16 * par + 8 * m + 4 * tt

def read(a, par, i):
    g = par * NS + i
    fr = FR + 4 * (g % NB)
    a('ds_read_b128 v[%d:%d], v%d offset:%d' % (fr, fr + 3, vRB1 if par else vRB0, i * 1024), tag='r%d' % (g % NB))

def hreads(par):
    return [('ds_read_b128 v[%d:%d], v%d offset:%d' % (hreg(par, m, tt), hreg(par, m, tt) + 3, vHB1 if par else vHB0, (2 * m + tt) * 1024), 'h') for m in range(2) for tt in range(2)]

BARPOS = 12
PRE = 8
def stage(a, par):
    planA = {i: [] for i in range(NS)}; planB = {i: [] for i in range(NS)}
    plan = [(0, 'A', 8), (0, 'B', 9), (1, 'A', 10), (1, 'B', 11), (2, 'A', 12), (2, 'B', 13), (3, 'B', 14), (4, 'B', 15), (5, 'B', 16), (6, 'B', 17)]
    for st, sl, fr_ in plan:
        (planA if sl == 'A' else planB)[st].append(('w', par, fr_))
    nxt = [('w', 1 - par, 0), ('w', 1 - par, 1), ('h', 1 - par, 0), ('w', 1 - par, 2), ('h', 1 - par, 1), ('w', 1 - par, 3),
           ('w', 1 - par, 4), ('w', 1 - par, 5), ('h', 1 - par, 2), ('w', 1 - par, 6), ('h', 1 - par, 3), ('w', 1 - par, 7)]
    for i in range(BARPOS, NS):
        planA[i].append(nxt.pop(0)); planB[i].append(nxt.pop(0))
    def do(x):
        if x[0] == 'w': read(a, x[1], x[2])
        else: emit(a, hreads(x[1])[x[2]])
    for i in range(NS):
        m, dt = i // 9, i % 9
        g = par * NS + i
        fr = FR + 4 * (g % NB)
        if i == BARPOS:
            a.wait_lgkm('r%d' % ((par * NS + NS - 1) % NB))
            a('s_barrier')
        a(mfma16(acc(dt, 0), fr, hreg(par, m, 0)))
        for x in planA[i]: do(x)
        if not planA[i] and i % 2 == 1 and i < BARPOS - 2:
            a.wait_lgkm('r%d' % ((g + 2) % NB))
        if par == 1 and i == 10:
            pass
        a(mfma16(acc(dt, 1), fr, hreg(par, m, 1)))
        for x in planB[i]: do(x)
        if par == 0 and i == 10:
            a('v_add_u32 v%d, %d, v%d' % (vRB1, STG, vRB0))
        if par == 0 and i == 11:
            a('v_add_u32 v%d, %d, v%d' % (vHB1, STG, vHB0))
        if par == 1 and i == 9:
            a('s_xor_b32 s22, s22, %d' % (2 * STG))
        if par == 1 and i == 10:
            a('v_add_u32 v%d, s22, v%d' % (vRB0, vL16))
        if par == 1 and i == 11:
            a('v_add_u32 v%d, s23, v%d' % (vHB0, vRB0))

def dma(a, tag, lab):
    a('s_add_u32 m0, s33, s47')
    for q in range(4):
        a('buffer_load_dwordx4 v%d, s[24:27], s21 offen offset:%d lds' % (vL16, q * 1024), tag=tag)
    a('s_add_u32 m0, s33, s48')
    for q in range(4):
        a('buffer_load_dwordx4 v%d, s[36:39], s35 offen offset:%d lds' % (vL16, q * 1024), tag=tag)
    a('s_cmp_ge_u32 s16, 2')
    a('s_cbranch_scc1 %s' % lab)
    a.opt_begin()
    a('s_add_u32 s34, s33, s47')
    a('s_add_u32 m0, s34, 4096')
    a('s_add_u32 s34, s21, 4096')
    a('buffer_load_dwordx4 v%d, s[24:27], s34 offen lds' % vL16, tag=tag)
    a.opt_end()
    a.label(lab)
    a('s_add_u32 s21, s21, %d' % WSTG)
    a('s_add_u32 s35, s35, 4096')

def gen_f2(name='f2_kernel'):
    a = Asm()
    stamp(a, 0); stamp_rt(a, 9)
    a('s_load_dwordx2 s[12:13], s[0:1], 88')
    a('s_cmp_ge_u32 s2, 256')
    a('s_cbranch_scc1 F2_END')
    a('v_and_b32 v%d, 63, v0' % vT)
    a('v_lshrrev_b32 v%d, 6, v0' % (vT + 1))
    a('v_readfirstlane_b32 s17, v%d' % (vT + 1))
    a('v_lshlrev_b32 v%d, 4, v%d' % (vL16, vT))
    a('s_and_b32 s16, s17, 3')
    a('s_and_b32 s33, s2, 7')
    a('s_lshr_b32 s34, s2, 3')
    a('s_and_b32 s19, s33, 3')
    a('s_lshr_b32 s33, s33, 2')
    a('s_lshl_b32 s33, s33, 3')
    a('s_lshr_b32 s20, s34, 2')
    a('s_add_u32 s20, s20, s33')
    a('s_and_b32 s18, s34, 3')
    a('s_cmp_lt_u32 s17, 4')
    a('s_cbranch_scc1 F2_CONS')
    t0 = a.finish()

    a = Asm()
    a('s_lshl_b32 s35, s20, 2')
    a('s_add_u32 s35, s35, s16')
    a('s_mul_i32 s35, s35, 144')
    a('s_mul_i32 s33, s19, 36')
    a('s_add_u32 s35, s35, s33')
    a('s_lshl_b32 s35, s35, 11')
    a('s_mul_i32 s47, s16, 5')
    a('s_cmp_eq_u32 s16, 3')
    a('s_cselect_b32 s33, 1, 0')
    a('s_sub_u32 s47, s47, s33')
    a('s_lshl_b32 s47, s47, 10')
    a('s_lshl_b32 s48, s16, 12')
    a('s_add_u32 s48, s48, %d' % WSTG)
    a('s_lshl_b32 s21, s19, 2')
    a('s_add_u32 s21, s21, s18')
    a('s_mul_i32 s21, s21, %d' % (36 * 9216))
    a('s_add_u32 s21, s21, s47')
    a('s_add_u32 s21, s21, 0x%x' % (WS_P2 - WS_P1))
    a('s_waitcnt lgkmcnt(0)')
    srd_off(a, 24, 12, 13, WS_P1, P_SIZE)
    srd_off(a, 36, 12, 13, WS_HB, H_SIZE)
    a('s_mov_b32 s50, 0x%x' % (0 if NOW else P_SIZE))
    a('s_mov_b32 s51, 0x%x' % (0 if NOH else H_SIZE))
    a('s_mov_b32 s33, 0')
    dma(a, 'p0', 'F2_D0')
    a('s_mov_b32 s33, %d' % STG)
    dma(a, 'w1', 'F2_D1')
    stamp(a, 1)
    a.wait_vm('p0')
    stamp(a, 2)
    a('s_barrier')
    a('s_mov_b32 s33, %d' % (2 * STG))
    dma(a, 'w2', 'F2_D2')
    a('s_mov_b32 s33, %d' % (3 * STG))
    dma(a, 'w3', 'F2_D2B')
    a('s_mov_b32 s33, 0')
    a('s_mov_b32 s49, 0')
    a.loop_begin('F2_PLOOP')
    a('s_waitcnt vmcnt(16)')
    a('s_barrier')
    a('s_cmp_le_u32 s49, 13')
    a('s_cselect_b32 s26, s50, 0')
    a('s_cselect_b32 s38, s51, 0')
    dma(a, 'wx', 'F2_D3')
    a('s_add_u32 s33, s33, %d' % STG)
    a('s_cmp_eq_u32 s33, %d' % (4 * STG))
    a('s_cselect_b32 s33, 0, s33')
    a('s_add_u32 s49, s49, 1')
    a('s_cmp_le_u32 s49, 17')
    a.loop_end('s_cbranch_scc1 F2_PLOOP')
    stamp(a, 3)
    stamp_store(a, 6, 4, 's17')
    a('s_waitcnt vmcnt(0)')
    a.label('F2_END')
    a('s_endpgm')
    t1 = a.finish()

    a = Asm()
    a.label('F2_CONS')
    a('v_mov_b32 v%d, v%d' % (vRB0, vL16))
    a('v_add_u32 v%d, %d, v%d' % (vRB1, STG, vL16))
    a('s_lshl_b32 s23, s16, 12')
    a('s_add_u32 s23, s23, %d' % WSTG)
    a('v_add_u32 v%d, s23, v%d' % (vHB0, vL16))
    a('v_add_u32 v%d, %d, v%d' % (vHB1, STG, vHB0))
    for r in range(72): a('v_mov_b32 v%d, 0' % (ACC + r))
    a('s_mov_b32 s22, 0')
    a('s_waitcnt lgkmcnt(0)')
    srd_off(a, 40, 12, 13, WS_PART, WS_FLAG - WS_PART)
    if TOUCH:
        srd_off(a, 24, 12, 13, WS_P1, P_SIZE)
        srd_off(a, 36, 12, 13, WS_HB, H_SIZE)
        a('v_lshlrev_b32 v%d, 7, v%d' % (vT + 1, vT))
        a('s_lshl_b32 s35, s20, 2')
        a('s_add_u32 s35, s35, s16')
        a('s_mul_i32 s35, s35, 144')
        a('s_mul_i32 s33, s19, 36')
        a('s_add_u32 s35, s35, s33')
        a('s_lshl_b32 s35, s35, 11')
        a('s_lshl_b32 s33, s18, 13')
        a('s_add_u32 s35, s35, s33')
        a('s_lshl_b32 s21, s19, 2')
        a('s_add_u32 s21, s21, s18')
        a('s_mul_i32 s21, s21, %d' % (36 * 9216))
        a('s_add_u32 s21, s21, 0x%x' % (WS_P2 - WS_P1))
        a('s_and_b32 s33, s20, 7')
        a('s_lshl_b32 s33, s33, 13')
        a('s_add_u32 s21, s21, s33')
        a('s_lshl_b32 s33, s16, 16')
        a('s_add_u32 s21, s21, s33')
        a('buffer_load_dword v%d, v%d, s[24:27], s21 offen' % (vT + 2, vT + 1))
        a('buffer_load_dword v%d, v%d, s[36:39], s35 offen' % (vT + 3, vT + 1))
        a('s_add_u32 s35, s35, 32768')
        a('buffer_load_dword v%d, v%d, s[36:39], s35 offen' % (vT + 4, vT + 1))
        a('s_add_u32 s21, s21, %d' % (4 * 65536))
        a('s_add_u32 s35, s35, 32768')
        a('s_cmp_ge_u32 s16, 2')
        a('s_cselect_b32 s26, 0, s26')
        a('buffer_load_dword v%d, v%d, s[24:27], s21 offen' % (vT + 5, vT + 1))
        a('s_cmp_eq_u32 s18, 0')
        a('s_cselect_b32 s38, s38, 0')
        a('buffer_load_dword v%d, v%d, s[36:39], s35 offen' % (vT + 6, vT + 1))
    stamp(a, 1)
    a('s_barrier')
    for x in hreads(0): emit(a, x)
    for i in range(PRE): read(a, 0, i)
    a('s_mov_b32 s49, 0')
    a.loop_begin('F2_LOOP')
    stage(a, 0)
    stage(a, 1)
    a('s_add_u32 s49, s49, 1')
    a('s_cmp_le_u32 s49, 8')
    a.loop_end('s_cbranch_scc1 F2_LOOP')
    stamp(a, 2)
    a('s_lshl_b32 s34, s2, 2')
    a('s_add_u32 s34, s34, s16')
    a('s_mul_i32 s34, s34, 18432')
    for i in range(18):
        a('buffer_store_dwordx4 v[%d:%d], v%d, s[40:43], s34 offen offset:%d' % (ACC + 4 * i, ACC + 4 * i + 3, vL16, (i % 4) * 1024))
        if i % 4 == 3: a('s_add_u32 s34, s34, 4096')
    stamp(a, 3)
    stamp_store(a, 4, 4, 's17')
    a('s_endpgm')
    t2 = a.finish()
    return kernel_header(name) + t0 + t1 + t2, kernel_desc(name, 256 if common.STAMPS else 176, 102), (256, 512, LDS_F2)
```

```python
from asmgen import *
from common import *
import common
from sched import *
STG = 36864
LDS_F2 = 4 * STG
ACC = 16
HS = 88
FR = 184
NB = 12
L = 10
vL16, vRB, vT = 1, 2, 3
NOH = False
NOW = False
NSTEP = 36
P_SIZE = WS_PEND - WS_P1
H_SIZE = WS_PART - WS_HB

def acc(dt, tt): return ACC + 4 * (2 * dt + tt)
def hreg(st, m, tt): return HS + 32 * st + 8 * m + 4 * tt

def dma_groups(tag):
    out = []
    for grp in range(3):
        n = 4 if grp < 2 else 1
        for q in range(n):
            g = []
            if q == 0:
                g.append('s_add_u32 m0, s33, %d' % (grp * 4096))
                g.append('s_add_u32 s34, s21, %d' % (grp * 4096))
            g.append(('buffer_load_dwordx4 v%d, s[24:27], s34 offen offset:%d lds' % (vL16, q * 1024), tag))
            out.append(g)
    return out

def h_groups(st):
    out = []
    for m in range(4):
        for tt in range(2):
            g = []
            if m == 2 and tt == 0: g.append('s_add_u32 s35, s35, 4096')
            g.append('buffer_load_dwordx4 v[%d:%d], v%d, s[36:39], s35 offen offset:%d' % (hreg(st, m, tt), hreg(st, m, tt) + 3, vL16, (m & 1) * 2048 + tt * 1024))
            if m == 3 and tt == 1: g.append('s_add_u32 s35, s35, 4096')
            out.append(g)
    return out

def read(a, i):
    fr = FR + 4 * (i % NB)
    a('ds_read_b128 v[%d:%d], v%d offset:%d' % (fr, fr + 3, vRB, i * 1024))

def rot(a, reg):
    a('s_add_u32 s%d, s%d, %d' % (reg, reg, STG))
    a('s_cmp_eq_u32 s%d, %d' % (reg, 4 * STG))
    a('s_cselect_b32 s%d, 0, s%d' % (reg, reg))

def stage(a, u):
    streams = []
    slot = 0
    barpos = NSTEP - L
    pre = []
    if u > 0:
        pre = [['s_cmp_lt_u32 s49, 2', 's_cselect_b32 s38, s51, 0']]
    streams.append(Stream(pre + h_groups((u + 2) % 3), 0, 2))
    for i in range(NSTEP):
        m, dt = i // 9, i % 9
        fr = FR + 4 * (i % NB)
        if i == barpos:
            a.wait_vm('w%d' % ((u + 1) % 3))
            a('s_barrier')
            a('v_add_u32 v%d, s22, v%d' % (vRB, vL16))
            rot(a, 22)
            a('s_cmp_lt_u32 s49, 2')
            a('s_cselect_b32 s26, s50, 0')
            a('s_add_u32 s33, s23, s47')
            rot(a, 23)
            a('s_add_u32 s21, s21, %d' % STG)
            streams.append(Stream(dma_groups('w%d' % u), slot + 1, 2))
        for tt in range(2):
            a(mfma16(acc(dt, tt), fr, hreg(u, m, tt)))
            if tt == 1:
                read(a, (i + L) % NSTEP)
            for s_ in streams: s_.step(a, slot)
            slot += 1
    for s_ in streams: s_.flush(a)

def gen_f2(name='f2_kernel'):
    a = Asm()
    stamp(a, 0); stamp_rt(a, 9)
    a('s_load_dwordx2 s[12:13], s[0:1], 88')
    a('s_cmp_ge_u32 s2, 256')
    a('s_cbranch_scc1 F2_END')
    a('v_and_b32 v%d, 63, v0' % vT)
    a('v_lshrrev_b32 v%d, 6, v0' % (vT + 1))
    a('v_readfirstlane_b32 s16, v%d' % (vT + 1))
    a('v_lshlrev_b32 v%d, 4, v%d' % (vL16, vT))
    a('s_and_b32 s33, s2, 7')
    a('s_lshr_b32 s34, s2, 3')
    a('s_and_b32 s19, s33, 3')
    a('s_lshr_b32 s33, s33, 2')
    a('s_lshl_b32 s33, s33, 3')
    a('s_lshr_b32 s20, s34, 2')
    a('s_add_u32 s20, s20, s33')
    a('s_and_b32 s18, s34, 3')
    a('s_lshl_b32 s35, s20, 2')
    a('s_add_u32 s35, s35, s16')
    a('s_mul_i32 s35, s35, 144')
    a('s_mul_i32 s33, s19, 36')
    a('s_add_u32 s35, s35, s33')
    a('s_lshl_b32 s35, s35, 11')
    a('s_mul_i32 s47, s16, 9216')
    a('s_lshl_b32 s21, s19, 2')
    a('s_add_u32 s21, s21, s18')
    a('s_mul_i32 s21, s21, %d' % (36 * 9216))
    a('s_add_u32 s21, s21, s47')
    a('s_add_u32 s21, s21, 0x%x' % (WS_P2 - WS_P1))
    a('v_mov_b32 v%d, v%d' % (vRB, vL16))
    a('s_waitcnt lgkmcnt(0)')
    srd_off(a, 24, 12, 13, WS_P1, P_SIZE)
    srd_off(a, 36, 12, 13, WS_HB, H_SIZE)
    srd_off(a, 40, 12, 13, WS_PART, WS_FLAG - WS_PART)
    a('s_mov_b32 s50, 0x%x' % (0 if NOW else P_SIZE))
    a('s_mov_b32 s51, 0x%x' % (0 if NOH else H_SIZE))
    if NOH: a('s_mov_b32 s38, 0')
    a('s_mov_b32 s33, s47')
    for g in dma_groups('p0'):
        for x in g: emit(a, x)
    for g in h_groups(0):
        for x in g: emit(a, x)
    a('s_add_u32 s21, s21, %d' % STG)
    a('s_add_u32 s33, s47, %d' % STG)
    for g in dma_groups('w1'):
        for x in g: emit(a, x)
    for g in h_groups(1):
        for x in g: emit(a, x)
    for r in range(72): a('v_mov_b32 v%d, 0' % (ACC + r))
    a('s_mov_b32 s22, %d' % STG)
    a('s_mov_b32 s23, %d' % (3 * STG))
    stamp(a, 1)
    a.wait_vm('p0')
    a('s_barrier')
    a('s_add_u32 s21, s21, %d' % STG)
    a('s_add_u32 s33, s47, %d' % (2 * STG))
    for g in dma_groups('w2'):
        for x in g: emit(a, x)
    for i in range(L): read(a, i)
    a('s_mov_b32 s49, 0')
    a.loop_begin('F2_LOOP')
    for u in range(3): stage(a, u)
    a('s_add_u32 s49, s49, 1')
    a('s_cmp_lt_u32 s49, 3')
    a.loop_end('s_cbranch_scc1 F2_LOOP')
    stamp(a, 2)
    a('s_lshl_b32 s34, s2, 2')
    a('s_add_u32 s34, s34, s16')
    a('s_mul_i32 s34, s34, 18432')
    for i in range(18):
        a('buffer_store_dwordx4 v[%d:%d], v%d, s[40:43], s34 offen offset:%d' % (ACC + 4 * i, ACC + 4 * i + 3, vL16, (i % 4) * 1024))
        if i % 4 == 3: a('s_add_u32 s34, s34, 4096')
    stamp(a, 3)
    stamp_store(a, 4, 4)
    a('s_waitcnt vmcnt(0)')
    a.label('F2_END')
    a('s_endpgm')
    return kernel_header(name) + a.finish(), kernel_desc(name, 256, 102), (256, 256, LDS_F2)

def rstd2_code(a, vrow, vg, st, t, sreg):
    a('v_add_f32 v%d, v%d, v%d' % (st, st, st + 2))
    a('v_add_f32 v%d, v%d, v%d' % (st + 1, st + 1, st + 3))
    a('v_add_f32 v%d, v%d, v%d' % (st, st, st + 4))
    a('v_add_f32 v%d, v%d, v%d' % (st + 1, st + 1, st + 5))
    xlane_sum(a, st, t)
    xlane_sum(a, st + 1, t)
    a('v_mul_f32 v%d, %s, v%d' % (st, f32(1.0 / 576), st))
    a('v_mul_f32 v%d, %s, v%d' % (st + 1, f32(1.0 / 576), st + 1))
    a('v_fma_f32 v%d, -v%d, v%d, v%d' % (st + 1, st, st, st + 1))
    a('v_max_f32 v%d, 0, v%d' % (st + 1, st + 1))
    a('v_add_f32 v%d, %s, v%d' % (st + 1, f32(EPS), st + 1))
    a('v_rcp_f32 v%d, v%d' % (st, st + 1))

def gen_red(name='red_kernel'):
    a = Asm()
    a('s_load_dwordx2 s[4:5], s[0:1], 72')
    a('s_load_dwordx2 s[12:13], s[0:1], 88')
    a('s_cmp_ge_u32 s2, 576')
    a('s_cbranch_scc1 RED_END')
    a('v_and_b32 v1, 63, v0')
    a('v_lshrrev_b32 v2, 6, v0')
    a('v_readfirstlane_b32 s16, v2')
    a('s_lshl_b32 s17, s2, 3')
    a('s_add_u32 s17, s17, s16')
    a('s_mul_hi_u32 s18, s17, 0x%x' % ((2 ** 32 + 17) // 18))
    a('s_mul_i32 s19, s18, 18')
    a('s_sub_u32 s19, s17, s19')
    a('s_and_b32 s20, s18, 3')
    a('s_bfe_u32 s21, s18, 0x20002')
    a('s_lshr_b32 s22, s18, 4')
    a('s_lshr_b32 s23, s19, 1')
    a('s_and_b32 s33, s19, 1')
    a('s_waitcnt lgkmcnt(0)')
    srd(a, 24, 4, 5, S * D * 2)
    srd_off(a, 36, 12, 13, WS_H, WS_HB - WS_H)
    srd_off(a, 40, 12, 13, WS_PART, WS_FLAG - WS_PART)
    a('v_lshlrev_b32 v3, 4, v1')
    a('s_lshr_b32 s34, s22, 3')
    a('s_lshl_b32 s34, s34, 2')
    a('s_and_b32 s35, s22, 7')
    a('s_lshl_b32 s35, s35, 2')
    a('s_add_u32 s35, s35, s21')
    a('s_lshl_b32 s35, s35, 3')
    a('s_add_u32 s34, s34, s35')
    a('s_lshl_b32 s34, s34, 2')
    a('s_add_u32 s34, s34, s20')
    a('s_mul_i32 s34, s34, 18')
    a('s_add_u32 s34, s34, s19')
    a('s_lshl_b32 s34, s34, 10')
    for s in range(4):
        a('buffer_load_dwordx4 v[%d:%d], v3, s[40:43], s34 offen' % (8 + 4 * s, 11 + 4 * s))
        if s < 3: a('s_add_u32 s34, s34, %d' % (4 * 18432))
    a('s_lshl_b32 s44, s22, 2')
    a('s_add_u32 s44, s44, s20')
    a('s_lshl_b32 s44, s44, 1')
    a('s_add_u32 s44, s44, s33')
    a('s_mul_i32 s45, s44, 18432')
    a('s_mul_i32 s46, s21, 9')
    a('s_add_u32 s46, s46, s23')
    a('s_lshl_b32 s46, s46, 9')
    a('s_add_u32 s45, s45, s46')
    a('v_and_b32 v4, 15, v1')
    a('v_lshrrev_b32 v5, 4, v1')
    a('v_lshrrev_b32 v7, 1, v5')
    a('v_lshlrev_b32 v7, 8, v7')
    a('v_lshl_add_u32 v7, v4, 4, v7')
    a('v_and_b32 v24, 1, v5')
    a('v_lshl_add_u32 v7, v24, 3, v7')
    a('buffer_load_dwordx2 v[26:27], v7, s[36:39], s45 offen')
    a('s_lshl_b32 s46, s44, 4')
    a('v_add_u32 v6, s46, v4')
    a('v_mul_u32_u24 v32, 96, v6')
    a('v_mul_u32_u24 v33, 24, v5')
    a('v_add_u32 v32, v32, v33')
    a('s_mov_b32 s46, 0x%x' % (WS_ST - WS_H))
    a('buffer_load_dwordx4 v[34:37], v32, s[36:39], s46 offen')
    a('buffer_load_dwordx2 v[38:39], v32, s[36:39], s46 offen offset:16')
    a('v_mul_u32_u24 v6, 1152, v6')
    a('v_lshl_add_u32 v6, v5, 3, v6')
    a('s_mul_i32 s46, s21, 288')
    a('s_lshl_b32 s47, s23, 5')
    a('s_add_u32 s46, s46, s47')
    for r in range(4):
        a('v_add_f32 v%d, v%d, v%d' % (8 + r, 8 + r, 12 + r))
        a('v_add_f32 v%d, v%d, v%d' % (16 + r, 16 + r, 20 + r))
    rstd2_code(a, None, None, 34, 33, None)
    a('v_lshlrev_b32 v28, 16, v26')
    a('v_and_b32 v29, 0xffff0000, v26')
    a('v_lshlrev_b32 v30, 16, v27')
    a('v_and_b32 v31, 0xffff0000, v27')
    for r in range(4):
        a('v_add_f32 v%d, v%d, v%d' % (8 + r, 8 + r, 16 + r))
        a('v_fma_f32 v%d, v%d, v34, v%d' % (8 + r, 8 + r, 28 + r))
    a('v_cvt_pk_bf16_f32 v8, v8, v9')
    a('v_cvt_pk_bf16_f32 v9, v10, v11')
    a('buffer_store_dwordx2 v[8:9], v6, s[24:27], s46 offen')
    a.label('RED_END')
    a('s_endpgm')
    return kernel_header(name) + a.finish(), kernel_desc(name, 40, 64), (576, 512, 0)
```

```python
from asmgen import *
from common import *
import common

LDS_K2 = 4 * KV_CHUNK
Q1, Q2 = 8, 12
SB = [16, 32]
P = 48
O = 56
K1B = [72, 76]
K2B = [80, 82]
VB = [84, 92]
vK1A, vK2A, vVA = 100, 101, 102
vLANE, vHI, vQ = 1, 2, 3
vT = 104
vOOFF = 4
vM, vMX, vAL = 112, 113, 114
vPF = 116
PREFETCH = False
PACK = True
import pk

def kreads(a, tile15, buf):
    a('ds_read_b128 v[%d:%d], v%d offset:%d' % (K1B[buf], K1B[buf] + 3, vK1A, tile15 * 1152))
    a('ds_read_b32 v%d, v%d offset:%d' % (K2B[buf], vK2A, tile15 * 1152))
def vreads(a, tile15, buf):
    a('ds_read_b128 v[%d:%d], v%d offset:%d' % (VB[buf], VB[buf] + 3, vVA, tile15 * 1216))
    a('ds_read_b128 v[%d:%d], v%d offset:%d' % (VB[buf] + 4, VB[buf] + 7, vVA, tile15 * 1216 + 608))

SCHED = 1
NOLDS = False
def tile_body(a, tl, cur, nxt, Sc, Sn):
    E = lambda r: a('v_exp_f32 v%d, v%d' % (Sc + r, Sc + r))
    C = lambda i: a('v_cvt_pk_bf16_f32 v%d, v%d, v%d' % (P + i, Sc + 2 * i, Sc + 2 * i + 1))
    def KR():
        if not NOLDS: kreads(a, (tl + 2) & 15, cur)
    def VR():
        if not NOLDS: vreads(a, (tl + 1) & 15, nxt)
    if SCHED == 0:
        a(mfma32k8(Sn, K2B[nxt], Q2, '0'))
        for r in range(0, 4): E(r)
        a(mfma32(Sn, K1B[nxt], Q1))
        E(4); E(5); KR(); VR(); C(0); E(6); E(7); C(1); C(2); E(8); E(9); C(3); E(10); E(11)
        a(mfma32(O, VB[cur], P))
        E(12); E(13); C(4); E(14); E(15); C(5); C(6); C(7)
        a(mfma32(O, VB[cur] + 4, P + 4))
    elif SCHED == 1:
        a(mfma32k8(Sn, K2B[nxt], Q2, '0'))
        E(0); E(1); E(2); E(3)
        C(0)
        a(mfma32(Sn, K1B[nxt], Q1))
        KR()
        E(4); E(5); C(1); E(6); E(7)
        C(2); E(8); C(3); E(9)
        a(mfma32(O, VB[cur], P))
        E(10); E(11); C(4); E(12); E(13)
        C(5); E(14); E(15)
        C(6); VR(); C(7)
        a(mfma32(O, VB[cur] + 4, P + 4))
    elif SCHED == 2:
        E(0); E(1)
        a(mfma32k8(Sn, K2B[nxt], Q2, '0'))
        E(2); E(3); C(0); E(4); E(5); C(1)
        a(mfma32(Sn, K1B[nxt], Q1))
        KR()
        E(6); E(7); C(2); E(8); C(3); E(9)
        a(mfma32(O, VB[cur], P))
        E(10); E(11); C(4); E(12); E(13); C(5); E(14); E(15)
        VR()
        C(6); C(7)
        a(mfma32(O, VB[cur] + 4, P + 4))

def gen_k2(name='k2_kernel'):
    a = Asm()
    stamp(a, 0); stamp_rt(a, 9)
    a('s_load_dwordx2 s[12:13], s[0:1], 88')
    a('s_cmp_ge_u32 s2, 256')
    a('s_cbranch_scc1 K2_END')
    a('v_and_b32 v%d, 63, v0' % vLANE)
    a('v_lshrrev_b32 v%d, 6, v0' % vT)
    a('v_readfirstlane_b32 s16, v%d' % vT)
    if PACK: pk.decode(a, 's16')
    if PREFETCH:
        a('s_lshl_b32 s50, s2, 3')
        a('s_add_u32 s50, s50, s16')
        a('s_mul_hi_u32 s51, s50, 0x%x' % ((2 ** 32 + 647) // 648))
        a('s_mul_i32 s52, s51, 648')
        a('s_sub_u32 s52, s50, s52')
        a('s_lshl_b32 s53, s51, 3')
        a('s_add_u32 s53, s53, 48')
        a('s_cmp_eq_u32 s51, 3')
        a('s_cselect_b32 s53, 32, s53')
        a('s_load_dwordx2 s[56:57], s[0:1], s53')
        a('s_lshl_b32 s52, s52, 13')
        a('v_lshlrev_b32 v%d, 7, v%d' % (vPF, vLANE))
        a('v_add_u32 v%d, s52, v%d' % (vPF, vPF))
    a('v_and_b32 v%d, 31, v%d' % (vQ, vLANE))
    a('v_lshrrev_b32 v%d, 5, v%d' % (vHI, vLANE))
    a('s_lshl_b32 s17, s2, 3')
    a('s_add_u32 s17, s17, s16')
    a('s_mul_i32 s18, s17, 1152')
    a('v_mul_u32_u24 v%d, 36, v%d' % (vOOFF, vQ))
    a('v_add_u32 v%d, s18, v%d' % (vOOFF, vOOFF))
    a('v_lshl_add_u32 v%d, v%d, 4, v%d' % (vT, vHI, vOOFF))
    a('v_lshlrev_b32 v%d, 4, v0' % (vT + 1))
    a('s_waitcnt lgkmcnt(0)')
    srd(a, 24, 12, 13, WS_KV)
    srd_off(a, 28, 12, 13, WS_KV, 4 * KV_CHUNK)
    srd_off(a, 32, 12, 13, WS_O, S * D * 2)
    if PREFETCH:
        a('s_mov_b32 s58, %d' % (D * F * 2))
        a('s_cmp_eq_u32 s51, 3')
        a('s_cselect_b32 s58, %d, s58' % (D * D * 2))
        a('s_mov_b32 s59, 0x00020000')
    a('buffer_load_dwordx4 v[%d:%d], v%d, s[24:27], 0 offen' % (Q1, Q1 + 3, vT))
    a('buffer_load_dword v%d, v%d, s[24:27], 0 offen offset:32' % (Q2, vOOFF))
    a('s_lshl_b32 s19, s16, 10')
    a('s_cmp_lt_u32 s16, 5')
    a('s_cselect_b32 s43, 8, 6')
    a('s_lshl_b32 s43, s43, 12')
    for c in range(4):
        for i in range(5):
            if i < 4:
                off = c * KV_CHUNK + i * 8192
                a('s_add_u32 m0, s19, %d' % off)
                a('s_mov_b32 s20, %d' % off)
            else:
                a('s_add_u32 s20, s43, %d' % (c * KV_CHUNK))
                a('s_add_u32 m0, s19, s20')
            a('buffer_load_dwordx4 v%d, s[28:31], s20 offen lds' % (vT + 1), tag='kv%d' % c)
    if PACK:
        def scr(a):
            a('s_lshr_b32 s52, s16, 1')
            a('s_mul_i32 s52, s52, %d' % KV_CHUNK)
            a('s_and_b32 s53, s16, 1')
            a('s_mul_i32 s53, s53, 1168')
            a('s_add_u32 s52, s52, s53')
            a('s_add_u32 s52, s52, %d' % (KV_CHUNK - 3072))
        pk.setup(a, vLANE, vT + 4, scr)
        never = lambda a: a('s_cmp_eq_u32 s16, 99')
        pk.load(a, 0, never)
        pk.touch(a)
        pk.load(a, 1, never)
        pk.touch(a)
    a('v_lshlrev_b32 v%d, 4, v%d' % (vK1A, vLANE))
    a('v_lshlrev_b32 v%d, 2, v%d' % (vK2A, vQ))
    a('v_add_u32 v%d, 1024, v%d' % (vK2A, vK2A))
    a('v_mov_b32 v%d, v%d' % (vT + 2, vQ))
    a('v_cmp_lt_u32 vcc, 18, v%d' % vQ)
    a('v_cndmask_b32 v%d, v%d, 4, vcc' % (vT + 2, vT + 2))
    a('v_add_u32 v%d, -20, v%d' % (vT + 3, vQ))
    a('v_cmp_gt_u32 vcc, 8, v%d' % (vT + 3))
    a('v_cndmask_b32 v%d, v%d, 0, vcc' % (vT + 2, vT + 2))
    a('v_mul_u32_u24 v%d, 19, v%d' % (vT + 3, vHI))
    a('v_add_u32 v%d, v%d, v%d' % (vT + 2, vT + 2, vT + 3))
    a('v_lshlrev_b32 v%d, 4, v%d' % (vVA, vT + 2))
    a('v_add_u32 v%d, %d, v%d' % (vVA, KV_VOFF, vVA))
    for b in range(2):
        a('v_mov_b32 v%d, 0' % (K2B[b] + 1))
    for r in range(16):
        a('v_mov_b32 v%d, 0' % (O + r))
    a('v_mov_b32 v%d, 0' % (Q2 + 1))
    a('v_cmp_eq_u32 vcc, 0, v%d' % vHI)
    a('v_cndmask_b32 v%d, 0, v%d, vcc' % (Q2, Q2))
    a.wait_vm('kv0')
    a('s_barrier')
    stamp(a, 1)
    kreads(a, 0, 0)
    kreads(a, 1, 1)
    vreads(a, 0, 0)
    a(mfma32k8(SB[0], K2B[0], Q2, '0'))
    a(mfma32(SB[0], K1B[0], Q1))
    a('s_mov_b32 s21, 0')
    a('s_mov_b32 s23, %d' % (-3 * KV_CHUNK))
    a('s_mov_b32 s42, %d' % KV_CHUNK)
    a('s_nop 9')
    a.loop_begin('K2_LOOP')
    a('s_cmp_eq_u32 s21, 3')
    a('s_cselect_b32 s22, s23, s42')
    for tl in range(16):
        cur = tl & 1; nxt = cur ^ 1
        Sc = SB[cur]; Sn = SB[nxt]
        if tl == 14:
            a('s_cmp_lg_u32 s21, 0')
            a('s_cbranch_scc1 K2_NOBAR')
            a.opt_begin()
            a('s_waitcnt vmcnt(0)')
            a('s_barrier')
            if PREFETCH:
                a('buffer_load_dword v%d, v%d, s[56:59], 0 offen' % (vPF + 1, vPF))
            a.opt_end()
            a.label('K2_NOBAR')
            a('v_add_u32 v%d, s22, v%d' % (vK1A, vK1A))
            a('v_add_u32 v%d, s22, v%d' % (vK2A, vK2A))
        if tl == 15:
            a('v_add_u32 v%d, s22, v%d' % (vVA, vVA))
        side = []
        if PACK:
            never = lambda a: a('s_cmp_eq_u32 s21, 99')
            if tl == 6: side = pk.partA(a, 0, never, lambda a: (a('s_cmp_eq_u32 s21, 3'), a('s_cselect_b32 s%d, 0, s%d' % (pk.R.sSRC + 2, pk.R.sSRC + 2))))
            if tl == 14: side = pk.partA(a, 1, lambda a: a('s_bitcmp0_b32 s21, 0'))
            if tl == 7: side = pk.partB(a, never)
            if tl == 15: side = pk.partB(a, lambda a: a('s_bitcmp1_b32 s21, 0'))
        for f_ in side: f_()
        tile_body(a, tl, cur, nxt, Sc, Sn)
    a('s_add_u32 s21, s21, 1')
    a('s_cmp_lt_u32 s21, 4')
    a.loop_end('s_cbranch_scc1 K2_LOOP')
    stamp(a, 2)
    if PACK:
        pk.finish(a, vLANE, vT)
        a('s_waitcnt vmcnt(0)')
    a('v_mov_b32 v%d, v%d' % (vT, O + 10))
    a('v_mov_b32 v%d, v%d' % (vT + 1, O + 10))
    a('v_permlane32_swap_b32 v%d, v%d' % (vT, vT + 1))
    a('v_max3_f32 v%d, |v%d|, |v%d|, |v%d|' % (vT + 2, O, O + 1, O + 2))
    a('v_max3_f32 v%d, |v%d|, |v%d|, v%d' % (vT + 2, O + 3, O + 4, vT + 2))
    a('v_max3_f32 v%d, |v%d|, |v%d|, v%d' % (vT + 2, O + 5, O + 6, vT + 2))
    a('v_max3_f32 v%d, |v%d|, |v%d|, v%d' % (vT + 2, O + 7, O + 8, vT + 2))
    a('v_max_f32 v%d, |v%d|, v%d' % (vT + 2, O + 9, vT + 2))
    a('v_cmp_lt_f32 vcc, %s, v%d' % (f32(2.0 ** -60), vT))
    a('s_mov_b32 s38, %s' % f32(2.0 ** 60))
    a('s_mov_b32 s39, %s' % f32(2.0 ** 120))
    a('v_cmp_gt_f32 s[36:37], s38, v%d' % vT)
    a('v_cmp_gt_f32 s[40:41], s39, v%d' % (vT + 2))
    a('s_and_b64 s[36:37], s[36:37], vcc')
    a('s_and_b64 s[36:37], s[36:37], s[40:41]')
    a('s_cmp_eq_u64 s[36:37], -1')
    a('s_cbranch_scc0 K2_SLOW')
    t1 = a.finish()

    a = Asm()
    a.label('K2_FIN')
    a('v_rcp_f32 v%d, v%d' % (vT, vT))
    for r in range(10):
        a('v_mul_f32 v%d, v%d, v%d' % (O + r, O + r, vT))
    for i in range(5):
        a('v_cvt_pk_bf16_f32 v%d, v%d, v%d' % (P + i, O + 2 * i, O + 2 * i + 1))
    a('s_lshr_b32 s22, s16, 1')
    a('s_mul_i32 s22, s22, %d' % KV_CHUNK)
    a('s_and_b32 s23, s16, 1')
    a('s_mul_i32 s23, s23, 1168')
    a('s_add_u32 s22, s22, s23')
    a('s_add_u32 s22, s22, %d' % (KV_CHUNK - 3072))
    a('v_mul_u32_u24 v%d, 36, v%d' % (vT + 1, vQ))
    a('v_add_u32 v%d, s22, v%d' % (vT + 1, vT + 1))
    a('v_lshl_add_u32 v%d, v%d, 3, v%d' % (vT + 2, vHI, vT + 1))
    a('ds_write2_b32 v%d, v%d, v%d offset0:0 offset1:1' % (vT + 2, P, P + 1))
    a('ds_write2_b32 v%d, v%d, v%d offset0:4 offset1:5' % (vT + 2, P + 2, P + 3))
    a('s_mov_b32 exec_hi, 0')
    a('ds_write_b32 v%d, v%d offset:32' % (vT + 1, P + 4))
    a('s_mov_b32 exec_hi, -1')
    a('s_waitcnt lgkmcnt(0)')
    a('s_barrier')
    def out_units(ireg):
        a('v_and_b32 v%d, 7, v%d' % (vT + 3, vLANE))
        a('v_bfe_u32 v%d, v%d, 3, 2' % (vT + 4, vLANE))
        a('v_lshrrev_b32 v%d, 5, v%d' % (vT + 5, vLANE))
        a('s_lshl_b32 s23, %s, 1' % ireg)
        a('v_add_u32 v%d, s23, v%d' % (vT + 5, vT + 5))
        a('v_lshrrev_b32 v%d, 1, v%d' % (vT + 6, vT + 3))
        a('v_mul_u32_u24 v%d, %d, v%d' % (vT + 6, KV_CHUNK, vT + 6))
        a('v_and_b32 v%d, 1, v%d' % (vT + 7, vT + 3))
        a('v_mul_u32_u24 v%d, 1168, v%d' % (vT + 7, vT + 7))
        a('v_add3_u32 v%d, v%d, v%d, s47' % (vT + 6, vT + 6, vT + 7))
        a('v_lshl_add_u32 v%d, v%d, 6, v%d' % (vT + 6, vT + 5, vT + 6))
        a('v_lshl_add_u32 v%d, v%d, 4, v%d' % (vT + 6, vT + 4, vT + 6))
        a('ds_read_b128 v[%d:%d], v%d' % (P, P + 3, vT + 6))
        a('v_lshlrev_b32 v%d, 10, v%d' % (vT + 7, vT + 5))
        a('v_lshl_add_u32 v%d, v%d, 8, v%d' % (vT + 7, vT + 4, vT + 7))
        a('v_lshl_add_u32 v%d, v%d, 4, v%d' % (vT + 7, vT + 3, vT + 7))
        a('buffer_store_dwordx4 v[%d:%d], v%d, s[32:35], s48 offen' % (P, P + 3, vT + 7))
    a('s_mov_b32 s47, %d' % (KV_CHUNK - 3072))
    a('s_lshr_b32 s48, s2, 1')
    a('s_mul_i32 s48, s48, 18432')
    a('s_and_b32 s49, s2, 1')
    a('s_lshl_b32 s49, s49, 7')
    a('s_add_u32 s48, s48, s49')
    out_units('s16')
    a('s_cmp_lg_u32 s16, 0')
    a('s_cbranch_scc1 K2_DONE')
    a('s_mov_b32 s50, 8')
    out_units('s50')
    a.label('K2_DONE')
    stamp(a, 3)
    stamp_store(a, 1, 4)
    a('s_endpgm')
    t2 = a.finish()

    a = Asm()
    a.label('K2_SLOW')
    a('v_lshlrev_b32 v%d, 4, v%d' % (vK1A, vLANE))
    a('v_lshlrev_b32 v%d, 2, v%d' % (vK2A, vQ))
    a('v_add_u32 v%d, 1024, v%d' % (vK2A, vK2A))
    for r in range(16):
        a('v_mov_b32 v%d, 0' % (O + r))
    a('v_mov_b32 v%d, %s' % (vM, f32(-3.0e38)))
    a('s_mov_b32 s43, %d' % (KV_CHUNK - 15 * 1152))
    a('s_mov_b32 s44, 1152')
    a('s_mov_b32 s45, %d' % (KV_CHUNK - 15 * 1216))
    a('s_mov_b32 s46, 1216')
    a('s_mov_b32 s21, 0')
    Sc = SB[0]
    a.loop_begin('K2_SLOOP')
    kreads(a, 0, 0)
    vreads(a, 0, 0)
    a(mfma32k8(Sc, K2B[0], Q2, '0'))
    a(mfma32(Sc, K1B[0], Q1))
    a('v_max3_f32 v%d, v%d, v%d, v%d' % (vMX, Sc, Sc + 1, Sc + 2))
    for r in range(3, 15, 2):
        a('v_max3_f32 v%d, v%d, v%d, v%d' % (vMX, Sc + r, Sc + r + 1, vMX))
    a('v_max_f32 v%d, v%d, v%d' % (vMX, Sc + 15, vMX))
    a('v_mov_b32 v%d, v%d' % (vAL, vMX))
    a('v_permlane32_swap_b32 v%d, v%d' % (vMX, vAL))
    a('v_max3_f32 v%d, v%d, v%d, v%d' % (vMX, vMX, vAL, vM))
    a('v_sub_f32 v%d, v%d, v%d' % (vAL, vM, vMX))
    a('v_exp_f32 v%d, v%d' % (vAL, vAL))
    a('v_mov_b32 v%d, v%d' % (vM, vMX))
    for r in range(16):
        a('v_sub_f32 v%d, v%d, v%d' % (Sc + r, Sc + r, vM))
    for r in range(16):
        a('v_exp_f32 v%d, v%d' % (Sc + r, Sc + r))
    for r in range(16):
        a('v_mul_f32 v%d, v%d, v%d' % (O + r, O + r, vAL))
    for i in range(8):
        a('v_cvt_pk_bf16_f32 v%d, v%d, v%d' % (P + i, Sc + 2 * i, Sc + 2 * i + 1))
    a(mfma32(O, VB[0], P))
    a(mfma32(O, VB[0] + 4, P + 4))
    a('s_add_u32 s21, s21, 1')
    a('s_and_b32 s22, s21, 15')
    a('s_cmp_eq_u32 s22, 0')
    a('s_cselect_b32 s22, s43, s44')
    a('s_cselect_b32 s23, s45, s46')
    a('v_add_u32 v%d, s22, v%d' % (vK1A, vK1A))
    a('v_add_u32 v%d, s22, v%d' % (vK2A, vK2A))
    a('v_add_u32 v%d, s23, v%d' % (vVA, vVA))
    a('s_cmp_lt_u32 s21, 64')
    a.loop_end('s_cbranch_scc1 K2_SLOOP')
    a('v_mov_b32 v%d, v%d' % (vT, O + 10))
    a('v_mov_b32 v%d, v%d' % (vT + 1, O + 10))
    a('v_permlane32_swap_b32 v%d, v%d' % (vT, vT + 1))
    a('s_nop 1')
    a('s_branch K2_FIN')
    t3 = a.finish()
    end = 'K2_END:\n  s_endpgm\n'
    return kernel_header(name) + t1 + t2 + t3 + end, kernel_desc(name, 256 if common.STAMPS else 136, 102), (256, 512, LDS_K2)
```

```python
from asmgen import *
from common import *
import common
LDS_K3 = 576 * 192
X = 32
FR = 108
ACC = 132
XR = 144
vLANE, vG, vN, vROW = 1, 2, 3, 4
vT = 10
vRB = 24
vD = 6
vS1, vS2 = 28, 29
ONE = 30

def gen_k3(name='k3_kernel'):
    a = Asm()
    stamp(a, 0); stamp_rt(a, 9)
    a('s_load_dwordx2 s[4:5], s[0:1], 0')
    a('s_load_dwordx2 s[6:7], s[0:1], 32')
    a('s_load_dwordx2 s[12:13], s[0:1], 88')
    a('s_cmp_ge_u32 s2, 192')
    a('s_cbranch_scc1 K3_CT')
    a('v_and_b32 v%d, 63, v0' % vLANE)
    a('v_lshrrev_b32 v%d, 6, v0' % vT)
    a('v_readfirstlane_b32 s16, v%d' % vT)
    a('s_and_b32 s19, s16, 3')
    a('s_lshr_b32 s20, s16, 2')
    a('s_and_b32 s21, s2, 7')
    a('s_lshr_b32 s22, s2, 3')
    a('s_and_b32 s22, s22, 3')
    a('s_lshl_b32 s22, s22, 3')
    a('s_add_u32 s17, s21, s22')
    a('s_lshr_b32 s18, s2, 5')
    a('v_and_b32 v%d, 15, v%d' % (vN, vLANE))
    a('v_lshrrev_b32 v%d, 4, v%d' % (vG, vLANE))
    a('s_lshl_b32 s23, s17, 2')
    a('s_add_u32 s23, s23, s19')
    a('s_lshl_b32 s33, s23, 4')
    a('v_add_u32 v%d, s33, v%d' % (vROW, vN))
    a('v_lshlrev_b32 v%d, 4, v%d' % (vT, vLANE))
    a('s_mul_i32 s34, s23, 18432')
    a('v_mul_u32_u24 v%d, 5462, v%d' % (vT + 1, vLANE))
    a('v_lshrrev_b32 v%d, 16, v%d' % (vT + 1, vT + 1))
    a('v_mul_u32_u24 v%d, 12, v%d' % (vT + 2, vT + 1))
    a('v_sub_u32 v%d, v%d, v%d' % (vT + 2, vLANE, vT + 2))
    a('s_lshl_b32 s33, s16, 2')
    a('v_add_u32 v%d, s33, v%d' % (vT + 1, vT + 1))
    a('v_and_b32 v%d, 0x33, v%d' % (vT + 3, vT + 1))
    a('v_and_b32 v%d, 4, v%d' % (vT + 4, vT + 1))
    a('v_lshl_or_b32 v%d, v%d, 1, v%d' % (vT + 3, vT + 4, vT + 3))
    a('v_and_b32 v%d, 8, v%d' % (vT + 4, vT + 1))
    a('v_lshrrev_b32 v%d, 1, v%d' % (vT + 4, vT + 4))
    a('v_or_b32 v%d, v%d, v%d' % (vT + 3, vT + 3, vT + 4))
    a('s_and_b32 s33, s16, 1')
    a('s_lshl_b32 s33, s33, 1')
    a('v_xor_b32 v%d, s33, v%d' % (vT + 2, vT + 2))
    a('v_mul_u32_u24 v%d, 1152, v%d' % (vT + 3, vT + 3))
    a('v_lshl_add_u32 v%d, v%d, 4, v%d' % (vD, vT + 2, vT + 3))
    a('s_mul_i32 s33, s18, 192')
    a('v_add_u32 v%d, s33, v%d' % (vD, vD))
    a('s_waitcnt lgkmcnt(0)')
    srd(a, 24, 4, 5, S * D * 2)
    srd(a, 28, 6, 7, D * D * 2)
    srd_off(a, 36, 12, 13, WS_O, S * D * 2)
    srd_off(a, 40, 12, 13, WS_H, WS_HB - WS_H)
    for k in range(18):
        a('buffer_load_dwordx4 v[%d:%d], v%d, s[36:39], s34 offen offset:%d' % (X + 4 * k, X + 4 * k + 3, vT, (k % 4) * 1024), tag='x')
        if k % 4 == 3: a('s_add_u32 s34, s34, 4096')
    a('s_mul_i32 s34, s16, 768')
    a('s_mov_b32 s35, 0')
    a('s_mov_b32 exec_hi, 0x0000ffff')
    for q in range(18):
        a('s_mov_b32 m0, s34')
        a('buffer_load_dwordx4 v%d, s[28:31], s35 offen lds' % vD, tag='w')
        if q < 17:
            a('s_add_u32 s34, s34, %d' % (8 * 768))
            a('s_add_u32 s35, s35, %d' % (32 * 1152))
    a('s_mov_b32 exec_hi, -1')
    a('s_mul_i32 s33, s18, 192')
    a('s_mul_i32 s35, s20, 96')
    a('s_add_u32 s33, s33, s35')
    a('v_mul_u32_u24 v%d, 1152, v%d' % (vT, vROW))
    a('v_lshl_add_u32 v%d, v%d, 3, v%d' % (vT, vG, vT))
    for ti in range(3):
        a('buffer_load_dwordx2 v[%d:%d], v%d, s[24:27], s33 offen offset:%d' % (XR + 2 * ti, XR + 2 * ti + 1, vT, ti * 32))
    a('v_lshrrev_b32 v%d, 1, v%d' % (vT, vG))
    a('v_lshlrev_b32 v%d, 4, v%d' % (vT, vT))
    a('v_and_b32 v%d, 1, v%d' % (vT + 1, vG))
    a('v_lshl_add_u32 v%d, v%d, 2, v%d' % (vT, vT + 1, vT))
    a('v_lshrrev_b32 v%d, 2, v%d' % (vT + 2, vN))
    a('v_add_u32 v%d, v%d, v%d' % (vT, vT, vT + 2))
    a('v_mul_u32_u24 v%d, 192, v%d' % (vT, vT))
    a('v_and_b32 v%d, 3, v%d' % (vT + 2, vN))
    a('v_lshl_add_u32 v%d, v%d, 3, v%d' % (vT, vT + 2, vT))
    a('v_add_u32 v%d, s35, v%d' % (vT, vT))
    a('v_lshlrev_b32 v%d, 5, v%d' % (vT + 1, vT + 1))
    a('s_cmp_eq_u32 s20, 0')
    a('s_cselect_b32 s33, 1, -1')
    a('v_mul_lo_u32 v%d, v%d, s33' % (vT + 1, vT + 1))
    a('v_add_u32 v%d, v%d, v%d' % (vRB, vT, vT + 1))
    a('v_sub_u32 v%d, v%d, v%d' % (vRB + 1, vT, vT + 1))
    a('v_add_u32 v%d, %d, v%d' % (vRB + 2, 10 * 6144, vRB))
    a('v_add_u32 v%d, %d, v%d' % (vRB + 3, 10 * 6144, vRB + 1))
    a('v_mov_b32 v%d, 0x3f803f80' % ONE)
    a('s_waitcnt vmcnt(0)')
    a('s_barrier')
    stamp(a, 1)
    steps = [(k, ti) for k in range(18) for ti in range(3)]
    NB = 6; PD = 5
    def reads(idx):
        k, ti = steps[idx]
        fr = FR + 4 * (idx % NB)
        base = vRB + (ti & 1) + (2 if k >= 10 else 0)
        off = (k if k < 10 else k - 10) * 6144 + ti * 32
        a('ds_read_b64_tr_b16 v[%d:%d], v%d offset:%d' % (fr, fr + 1, base, off))
        a('ds_read_b64_tr_b16 v[%d:%d], v%d offset:%d' % (fr + 2, fr + 3, base, off + 1536))
    for i in range(PD): reads(i)
    for idx, (k, ti) in enumerate(steps):
        fr = FR + 4 * (idx % NB)
        a(mfma16(ACC + 4 * ti, fr, X + 4 * k, '0' if k == 0 else None))
        if idx + PD < len(steps): reads(idx + PD)
    stamp(a, 2)
    a('s_mul_i32 s33, s23, 18432')
    a('s_mul_i32 s34, s18, 6')
    a('s_mul_i32 s35, s20, 3')
    a('s_add_u32 s34, s34, s35')
    a('s_lshl_b32 s34, s34, 9')
    a('s_add_u32 s33, s33, s34')
    a('v_lshrrev_b32 v%d, 1, v%d' % (vT + 1, vG))
    a('v_lshlrev_b32 v%d, 8, v%d' % (vT + 1, vT + 1))
    a('v_lshl_add_u32 v%d, v%d, 4, v%d' % (vT, vN, vT + 1))
    a('v_and_b32 v%d, 1, v%d' % (vT + 1, vG))
    a('v_lshl_add_u32 v%d, v%d, 3, v%d' % (vD, vT + 1, vT))
    a('v_mov_b32 v%d, 0' % vS1)
    a('v_mov_b32 v%d, 0' % vS2)
    for ti in range(3):
        t0 = vT + 2
        a('v_lshlrev_b32 v%d, 16, v%d' % (t0, XR + 2 * ti))
        a('v_and_b32 v%d, 0xffff0000, v%d' % (t0 + 1, XR + 2 * ti))
        a('v_lshlrev_b32 v%d, 16, v%d' % (t0 + 2, XR + 2 * ti + 1))
        a('v_and_b32 v%d, 0xffff0000, v%d' % (t0 + 3, XR + 2 * ti + 1))
        for r in range(4):
            a('v_add_f32 v%d, v%d, v%d' % (t0 + r, t0 + r, ACC + 4 * ti + r))
        a('v_cvt_pk_bf16_f32 v%d, v%d, v%d' % (XR + 2 * ti, t0, t0 + 1))
        a('v_cvt_pk_bf16_f32 v%d, v%d, v%d' % (XR + 2 * ti + 1, t0 + 2, t0 + 3))
        a('buffer_store_dwordx2 v[%d:%d], v%d, s[40:43], s33 offen offset:%d' % (XR + 2 * ti, XR + 2 * ti + 1, vD, ti * 512))
        for r in range(2):
            a('v_dot2_f32_bf16 v%d, v%d, v%d, v%d' % (vS1, XR + 2 * ti + r, ONE, vS1))
            a('v_dot2_f32_bf16 v%d, v%d, v%d, v%d' % (vS2, XR + 2 * ti + r, XR + 2 * ti + r, vS2))
    xlane_sum(a, vS1, vT)
    xlane_sum(a, vS2, vT)
    a('s_lshl_b32 s33, s18, 1')
    a('s_add_u32 s33, s33, s20')
    a('s_lshl_b32 s33, s33, 3')
    a('s_add_u32 s33, s33, 0x%x' % (WS_ST - WS_H))
    a('v_mul_u32_u24 v%d, 96, v%d' % (vT, vROW))
    stamp(a, 3)
    stamp_store(a, 2, 4)
    a('v_cmp_eq_u32 vcc, 0, v%d' % vG)
    a('s_and_saveexec_b64 s[44:45], vcc')
    a('buffer_store_dwordx2 v[%d:%d], v%d, s[40:43], s33 offen' % (vS1, vS1 + 1, vT))
    a.label('K3_END')
    a('s_endpgm')
    t0 = a.finish()
    a = Asm()
    a.label('K3_CT')
    a('v_and_b32 v1, 63, v0')
    a('v_lshrrev_b32 v2, 6, v0')
    a('v_readfirstlane_b32 s16, v2')
    a('s_sub_u32 s17, s2, 192')
    a('s_lshl_b32 s17, s17, 3')
    a('s_add_u32 s17, s17, s16')
    a('s_cmp_ge_u32 s17, 36')
    a('s_cbranch_scc1 K3_END2')
    a('s_cmp_ge_u32 s17, 18')
    a('s_cselect_b32 s18, 1, 0')
    a('s_mul_i32 s19, s18, 18')
    a('s_sub_u32 s19, s17, s19')
    a('s_lshl_b32 s19, s19, 6')
    a('v_add_u32 v3, s19, v1')
    a('v_lshlrev_b32 v4, 4, v3')
    a('s_mul_i32 s20, s18, %d' % (9 * 18432))
    a('s_waitcnt lgkmcnt(0)')
    srd_off(a, 40, 12, 13, WS_CSP, WS_PEND - WS_CSP)
    for kq in range(9):
        a('buffer_load_dwordx4 v[%d:%d], v4, s[40:43], s20 offen' % (8 + 4 * kq, 11 + 4 * kq))
        a('s_add_u32 s20, s20, 18432')
    a('v_lshrrev_b32 v5, 2, v3')
    a('v_lshlrev_b32 v5, 7, v5')
    a('v_and_b32 v6, 3, v3')
    a('v_lshl_add_u32 v5, v6, 4, v5')
    a('s_lshl_b32 s21, s18, 6')
    a('s_add_u32 s21, s21, 0x%x' % (WS_CT - WS_CSP))
    for kq in range(1, 9):
        for r in range(4):
            a('v_add_f32 v%d, v%d, v%d' % (8 + r, 8 + r, 8 + 4 * kq + r))
    a('buffer_store_dwordx4 v[8:11], v5, s[40:43], s21 offen')
    a.label('K3_END2')
    a('s_endpgm')
    return kernel_header(name) + t0 + a.finish(), kernel_desc(name, 256 if common.STAMPS else 152, 102), (256, 512, LDS_K3)
```

```python
from asmgen import *
from common import *
NJ1, NJ2 = 1296, 1944
CS_OFF = WS_CSP - WS_P1
P2_OFF = WS_P2 - WS_P1

class Regs: pass
R = Regs()
R.sSRC, R.sDST, R.sCS = 56, 60, 4
R.sSO, R.sDO, R.sSLO, R.sSHI, R.sDHI, R.sCSO, R.sSCR = 8, 9, 10, 11, 14, 15, 52
R.vPS, R.vPD, R.vPR, R.vCS, R.vONE, R.vDAT, R.vPF = 118, 119, 120, 121, 122, 124, 116
R.vSET = [128, 132]
R.vPW = 123
T = [50, 51, 53, 54, 55, 48, 49]

def decode(a, sWave):
    J, t1, t2, t3, t4, t5, t6 = T
    a('s_lshl_b32 s%d, s2, 3' % J)
    a('s_add_u32 s%d, s%d, %s' % (J, J, sWave))
    a('s_mov_b32 s%d, 32' % t1)
    a('s_cmp_lt_u32 s%d, %d' % (J, NJ2)); a('s_cselect_b32 s%d, 64, s%d' % (t1, t1))
    a('s_cmp_lt_u32 s%d, %d' % (J, NJ1)); a('s_cselect_b32 s%d, 56, s%d' % (t1, t1))
    a('s_cmp_lt_u32 s%d, 648' % J); a('s_cselect_b32 s%d, 48, s%d' % (t1, t1))
    a('s_load_dwordx2 s[%d:%d], s[0:1], s%d' % (R.sSRC, R.sSRC + 1, t1))

def setup(a, vLANE, vt, scratch_sreg_code, ws_lo=12, ws_hi=13):
    J, t1, t2, t3, t4, t5, t6 = T
    scratch_sreg_code(a)
    a('v_lshrrev_b32 v%d, 3, v%d' % (vt, vLANE))
    a('v_and_b32 v%d, 7, v%d' % (vt + 1, vLANE))
    a('v_lshlrev_b32 v%d, 4, v%d' % (vt + 1, vt + 1))
    a('v_lshrrev_b32 v%d, 4, v%d' % (vt + 2, vLANE))
    a('v_and_b32 v%d, 15, v%d' % (vt + 3, vLANE))
    a('v_lshrrev_b32 v%d, 2, v%d' % (R.vPR, vt + 3))
    a('v_lshlrev_b32 v%d, 7, v%d' % (R.vPR, R.vPR))
    a('v_lshl_add_u32 v%d, v%d, 5, v%d' % (R.vPR, vt + 2, R.vPR))
    a('v_and_b32 v%d, 3, v%d' % (R.vCS, vt + 3))
    a('v_lshl_add_u32 v%d, v%d, 3, v%d' % (R.vPR, R.vCS, R.vPR))
    a('v_add_u32 v%d, s%d, v%d' % (R.vPR, R.sSCR, R.vPR))
    a('v_lshlrev_b32 v%d, 4, v%d' % (vt + 3, vt + 3))
    a('v_mov_b32 v%d, 0x3f803f80' % R.vONE)
    a('v_lshlrev_b32 v%d, 4, v%d' % (R.vPW, vLANE))
    a('v_add_u32 v%d, s%d, v%d' % (R.vPW, R.sSCR, R.vPW))
    srd_off(a, R.sDST, ws_lo, ws_hi, WS_P1, WS_PEND - WS_P1)
    srd_off(a, R.sCS, ws_lo, ws_hi, WS_P1, WS_PEND - WS_P1)
    a('s_mov_b32 s%d, 0x00020000' % (R.sSRC + 3))
    a('s_mov_b32 s96, s%d' % R.sSRC)
    a('s_mov_b32 s97, s%d' % (R.sSRC + 1))
    a('s_mov_b32 s98, 0')
    a('s_mov_b32 s99, 0x00020000')
    a('s_cmp_lt_u32 s%d, %d' % (J, NJ1))
    a('s_cbranch_scc0 PK_NOT1')
    a('s_cmp_ge_u32 s%d, 648' % J)
    a('s_cselect_b32 s%d, 1, 0' % t1)
    a('s_mul_i32 s%d, s%d, 648' % (t2, t1))
    a('s_sub_u32 s%d, s%d, s%d' % (t2, J, t2))
    a('s_mul_hi_u32 s%d, s%d, 0x%x' % (t3, t2, (2 ** 32 + 71) // 72))
    a('s_mul_i32 s%d, s%d, 72' % (t4, t3))
    a('s_sub_u32 s%d, s%d, s%d' % (t4, t2, t4))
    a('s_mul_i32 s%d, s%d, %d' % (R.sSO, t3, 64 * 9216))
    a('s_lshl_b32 s%d, s%d, 7' % (t5, t4))
    a('s_add_u32 s%d, s%d, s%d' % (R.sSO, R.sSO, t5))
    a('s_mul_i32 s%d, s%d, %d' % (R.sDO, t4, 4 * 36864))
    a('s_lshl_b32 s%d, s%d, 12' % (t5, t3))
    a('s_add_u32 s%d, s%d, s%d' % (R.sDO, R.sDO, t5))
    a('s_lshl_b32 s%d, s%d, 10' % (t5, t1))
    a('s_add_u32 s%d, s%d, s%d' % (R.sDO, R.sDO, t5))
    a('s_mov_b32 s%d, %d' % (R.sSLO, 8 * 9216))
    a('s_mov_b32 s%d, %d' % (R.sSHI, 8 * 9216))
    a('s_mov_b32 s%d, 1280' % R.sDHI)
    a('s_mul_i32 s%d, s%d, 9' % (t5, t1))
    a('s_add_u32 s%d, s%d, s%d' % (t5, t5, t3))
    a('s_mul_i32 s%d, s%d, %d' % (R.sCSO, t5, 4608 * 4))
    a('s_lshl_b32 s%d, s%d, 8' % (t5, t4))
    a('s_add_u32 s%d, s%d, s%d' % (R.sCSO, R.sCSO, t5))
    a('s_add_u32 s%d, s%d, 0x%x' % (R.sCSO, R.sCSO, CS_OFF))
    a('s_mov_b32 s%d, %d' % (R.sSRC + 2, D * F * 2))
    a('v_mul_u32_u24 v%d, 9216, v%d' % (R.vPS, vt))
    a('v_add_u32 v%d, v%d, v%d' % (R.vPS, R.vPS, vt + 1))
    a('v_mul_u32_u24 v%d, 36864, v%d' % (R.vPD, vt + 2))
    a('v_add_u32 v%d, v%d, v%d' % (R.vPD, R.vPD, vt + 3))
    a('v_mov_b32 v%d, 0x40000000' % R.vPF)
    a('s_branch PK_SET')
    a.label('PK_NOT1')
    a('s_mov_b32 s%d, 0' % (R.sCS + 2))
    a('s_mov_b32 s%d, 0' % R.sCSO)
    a('s_cmp_lt_u32 s%d, %d' % (J, NJ2))
    a('s_cbranch_scc0 PK_NOT2')
    a('s_sub_u32 s%d, s%d, %d' % (t2, J, NJ1))
    a('s_mul_hi_u32 s%d, s%d, 0x%x' % (t3, t2, (2 ** 32 + 8) // 9))
    a('s_mul_i32 s%d, s%d, 9' % (t4, t3))
    a('s_sub_u32 s%d, s%d, s%d' % (t4, t2, t4))
    a('s_mul_i32 s%d, s%d, %d' % (R.sSO, t3, 64 * 1152))
    a('s_lshl_b32 s%d, s%d, 7' % (t5, t4))
    a('s_add_u32 s%d, s%d, s%d' % (R.sSO, R.sSO, t5))
    a('s_mul_hi_u32 s%d, s%d, 0x%x' % (t1, t3, (2 ** 32 + 17) // 18))
    a('s_mul_i32 s%d, s%d, 18' % (t5, t1))
    a('s_sub_u32 s%d, s%d, s%d' % (t5, t3, t5))
    a('s_mul_i32 s%d, s%d, 144' % (t1, t1))
    a('s_lshl_b32 s%d, s%d, 1' % (t5, t5))
    a('s_add_u32 s%d, s%d, s%d' % (t1, t1, t5))
    a('s_mul_i32 s%d, s%d, 9216' % (R.sDO, t1))
    a('s_add_u32 s%d, s%d, 0x%x' % (R.sDO, R.sDO, P2_OFF))
    a('s_mov_b32 s%d, 4608' % R.sSLO)
    a('s_mov_b32 s%d, 23040' % R.sSHI)
    a('s_mov_b32 s%d, 8448' % R.sDHI)
    a('s_mov_b32 s%d, %d' % (R.sSRC + 2, D * F * 2))
    a('v_lshrrev_b32 v%d, 2, v%d' % (R.vPS, vt))
    a('v_and_b32 v%d, 3, v%d' % (R.vPD, vt))
    a('v_lshl_add_u32 v%d, v%d, 4, v%d' % (R.vPS, R.vPS, R.vPD))
    a('v_mul_u32_u24 v%d, 1152, v%d' % (R.vPS, R.vPS))
    a('v_add_u32 v%d, v%d, v%d' % (R.vPS, R.vPS, vt + 1))
    a('s_lshl_b32 s%d, s%d, 2' % (t4, t4))
    a('v_add_u32 v%d, s%d, v%d' % (vt + 2, t4, vt + 2))
    a('v_mul_u32_u24 v%d, 7282, v%d' % (vt, vt + 2))
    a('v_lshrrev_b32 v%d, 16, v%d' % (vt, vt))
    a('v_mul_u32_u24 v%d, 9, v%d' % (vt + 1, vt))
    a('v_sub_u32 v%d, v%d, v%d' % (vt + 2, vt + 2, vt + 1))
    a('v_mul_u32_u24 v%d, %d, v%d' % (R.vPD, 36 * 9216, vt))
    a('v_lshl_add_u32 v%d, v%d, 10, v%d' % (R.vPD, vt + 2, R.vPD))
    a('v_add_u32 v%d, v%d, v%d' % (R.vPD, R.vPD, vt + 3))
    a('v_mov_b32 v%d, 0x40000000' % R.vPF)
    a('s_branch PK_SET')
    a.label('PK_NOT2')
    a('s_sub_u32 s%d, s%d, %d' % (t2, J, NJ2))
    a('s_lshl_b32 s%d, s%d, 13' % (t2, t2))
    a('v_lshlrev_b32 v%d, 7, v%d' % (R.vPF, vLANE))
    a('v_add_u32 v%d, s%d, v%d' % (R.vPF, t2, R.vPF))
    a('s_mov_b32 s98, %d' % (D * D * 2))
    a('s_mov_b32 s%d, 0' % (R.sSRC + 2))
    a('s_mov_b32 s%d, 0' % (R.sDST + 2))
    for r in (R.sSO, R.sDO, R.sSLO, R.sSHI, R.sDHI): a('s_mov_b32 s%d, 0' % r)
    a('v_mov_b32 v%d, 0' % R.vPS)
    a('v_mov_b32 v%d, 0' % R.vPD)
    a.label('PK_SET')
    a('v_mov_b32 v%d, 0' % R.vCS)

def touch(a):
    a('buffer_load_dword v%d, v%d, s[96:99], 0 offen' % (R.vPF + 1, R.vPF))

def load(a, st, hi_code):
    a('buffer_load_dwordx4 v[%d:%d], v%d, s[%d:%d], s%d offen' % (R.vSET[st], R.vSET[st] + 3, R.vPS, R.sSRC, R.sSRC + 3, R.sSO))
    t = T[1]
    hi_code(a)
    a('s_cselect_b32 s%d, s%d, s%d' % (t, R.sSHI, R.sSLO))
    a('s_add_u32 s%d, s%d, s%d' % (R.sSO, R.sSO, t))

def partA(a, st, hi_code, last_code=None):
    d = R.vDAT
    def ld():
        if last_code: last_code(a)
        load(a, st, hi_code)
    return [lambda: a('ds_write_b128 v%d, v[%d:%d]' % (R.vPW, R.vSET[st], R.vSET[st] + 3)),
            lambda: a('ds_read_b64_tr_b16 v[%d:%d], v%d' % (d, d + 1, R.vPR)),
            lambda: a('ds_read_b64_tr_b16 v[%d:%d], v%d offset:512' % (d + 2, d + 3, R.vPR)),
            ld]

def partB(a, hi_code):
    d = R.vDAT
    out = []
    for r in range(4):
        out.append(lambda r=r: a('v_dot2_f32_bf16 v%d, v%d, v%d, v%d' % (R.vCS, d + r, R.vONE, R.vCS)))
    out.append(lambda: a('buffer_store_dwordx4 v[%d:%d], v%d, s[%d:%d], s%d offen' % (d, d + 3, R.vPD, R.sDST, R.sDST + 3, R.sDO)))
    def adv():
        u = T[2]
        hi_code(a)
        a('s_cselect_b32 s%d, s%d, 256' % (u, R.sDHI))
        a('s_add_u32 s%d, s%d, s%d' % (R.sDO, R.sDO, u))
    out.append(adv)
    return out

def finish(a, vLANE, vt):
    a('v_lshlrev_b32 v%d, 2, v%d' % (vt, vLANE))
    a('buffer_store_dword v%d, v%d, s[%d:%d], s%d offen' % (R.vCS, vt, R.sCS, R.sCS + 3, R.sCSO))
```

```python
from asmgen import *
from common import *

def emit(a, x):
    if callable(x): x()
    elif isinstance(x, tuple): a(x[0], tag=x[1])
    else: a(x)

class Stream:
    def __init__(self, items, start, every=1, per=1):
        self.items = list(items); self.start = start; self.every = every; self.per = per
    def step(self, a, slot):
        if slot < self.start or (slot - self.start) % self.every: return
        for _ in range(self.per):
            if self.items:
                g = self.items.pop(0)
                if isinstance(g, list):
                    for x in g: emit(a, x)
                else: emit(a, g)
    def flush(self, a):
        while self.items:
            g = self.items.pop(0)
            if isinstance(g, list):
                for x in g: emit(a, x)
            else: emit(a, g)
```

```python
from asmgen import *
from common import *
import common
from f1a import Side, emit
from f2b import gen_red, rstd2_code
WSTG = 18432
STG = WSTG + 16384
LDS_F2 = 4 * STG
ACC = 16
HS = 88
FR = 120
NB = 12
L = 10
vL16, vRB0, vRB1, vHB0, vHB1, vT = 1, 2, 3, 4, 5, 6
NS = 18
P_SIZE = WS_PEND - WS_P1
H_SIZE = WS_PART - WS_HB
NOW = False
NOH = False
FUSE = True
SPIN = 200000
STMOD = 'sc1'
LDMOD = 'sc1'
WBL2 = False
NREC = 9
DSET = [[0, 1, 2], [3, 4], [5, 6], [7, 8]]
DMASK = [sum(1 << d for d in s_) for s_ in DSET]
vRS, vHA, vOA, vHR = 8, 10, 11, 168
XB_SIZE = 256 * 4 * 9 * 1024
TOUCH = False

def acc(dt, tt): return ACC + 4 * (2 * dt + tt)
def hreg(par, m, tt): return HS + 16 * par + 8 * m + 4 * tt

def read(a, par, i):
    g = par * NS + i
    fr = FR + 4 * (g % NB)
    a('ds_read_b128 v[%d:%d], v%d offset:%d' % (fr, fr + 3, vRB1 if par else vRB0, i * 1024), tag='r%d' % (g % NB))

def hreads(par):
    return [('ds_read_b128 v[%d:%d], v%d offset:%d' % (hreg(par, m, tt), hreg(par, m, tt) + 3, vHB1 if par else vHB0, (2 * m + tt) * 1024), 'h') for m in range(2) for tt in range(2)]

BARPOS = 12
PRE = 8
def stage(a, par):
    planA = {i: [] for i in range(NS)}; planB = {i: [] for i in range(NS)}
    plan = [(0, 'A', 8), (0, 'B', 9), (1, 'A', 10), (1, 'B', 11), (2, 'A', 12), (2, 'B', 13), (3, 'B', 14), (4, 'B', 15), (5, 'B', 16), (6, 'B', 17)]
    for st, sl, fr_ in plan:
        (planA if sl == 'A' else planB)[st].append(('w', par, fr_))
    nxt = [('w', 1 - par, 0), ('w', 1 - par, 1), ('h', 1 - par, 0), ('w', 1 - par, 2), ('h', 1 - par, 1), ('w', 1 - par, 3),
           ('w', 1 - par, 4), ('w', 1 - par, 5), ('h', 1 - par, 2), ('w', 1 - par, 6), ('h', 1 - par, 3), ('w', 1 - par, 7)]
    for i in range(BARPOS, NS):
        planA[i].append(nxt.pop(0)); planB[i].append(nxt.pop(0))
    def do(x):
        if x[0] == 'w': read(a, x[1], x[2])
        else: emit(a, hreads(x[1])[x[2]])
    for i in range(NS):
        m, dt = i // 9, i % 9
        g = par * NS + i
        fr = FR + 4 * (g % NB)
        if i == BARPOS:
            a.wait_lgkm('r%d' % ((par * NS + NS - 1) % NB))
            a('s_barrier')
        a(mfma16(acc(dt, 0), fr, hreg(par, m, 0)))
        for x in planA[i]: do(x)
        if not planA[i] and i % 2 == 1 and i < BARPOS - 2:
            a.wait_lgkm('r%d' % ((g + 2) % NB))
        if par == 1 and i == 10:
            pass
        a(mfma16(acc(dt, 1), fr, hreg(par, m, 1)))
        for x in planB[i]: do(x)
        if par == 0 and i == 10:
            a('v_add_u32 v%d, %d, v%d' % (vRB1, STG, vRB0))
        if par == 0 and i == 11:
            a('v_add_u32 v%d, %d, v%d' % (vHB1, STG, vHB0))
        if par == 1 and i == 9:
            a('s_xor_b32 s22, s22, %d' % (2 * STG))
        if par == 1 and i == 10:
            a('v_add_u32 v%d, s22, v%d' % (vRB0, vL16))
        if par == 1 and i == 11:
            a('v_add_u32 v%d, s23, v%d' % (vHB0, vRB0))

def dma(a, tag, lab):
    a('s_add_u32 m0, s33, s47')
    for q in range(4):
        a('buffer_load_dwordx4 v%d, s[24:27], s21 offen offset:%d lds' % (vL16, q * 1024), tag=tag)
    a('s_add_u32 m0, s33, s48')
    for q in range(4):
        a('buffer_load_dwordx4 v%d, s[36:39], s35 offen offset:%d lds' % (vL16, q * 1024), tag=tag)
    a('s_cmp_ge_u32 s16, 2')
    a('s_cbranch_scc1 %s' % lab)
    a.opt_begin()
    a('s_add_u32 s34, s33, s47')
    a('s_add_u32 m0, s34, 4096')
    a('s_add_u32 s34, s21, 4096')
    a('buffer_load_dwordx4 v%d, s[24:27], s34 offen lds' % vL16, tag=tag)
    a.opt_end()
    a.label(lab)
    a('s_add_u32 s21, s21, %d' % WSTG)
    a('s_add_u32 s35, s35, 4096')

def gen_f2(name='f2_kernel'):
    a = Asm()
    stamp(a, 0); stamp_rt(a, 9)
    a('s_load_dwordx2 s[12:13], s[0:1], 88')
    a('s_load_dwordx2 s[4:5], s[0:1], 72')
    a('s_cmp_ge_u32 s2, 256')
    a('s_cbranch_scc1 F2_END')
    a('v_and_b32 v%d, 63, v0' % vT)
    a('v_lshrrev_b32 v%d, 6, v0' % (vT + 1))
    a('v_readfirstlane_b32 s17, v%d' % (vT + 1))
    a('v_lshlrev_b32 v%d, 4, v%d' % (vL16, vT))
    a('s_and_b32 s16, s17, 3')
    a('s_and_b32 s33, s2, 7')
    a('s_lshr_b32 s34, s2, 3')
    a('s_and_b32 s19, s33, 3')
    a('s_lshr_b32 s33, s33, 2')
    a('s_lshl_b32 s33, s33, 3')
    a('s_lshr_b32 s20, s34, 2')
    a('s_add_u32 s20, s20, s33')
    a('s_and_b32 s18, s34, 3')
    a('s_cmp_lt_u32 s17, 4')
    a('s_cbranch_scc1 F2_CONS')
    t0 = a.finish()

    a = Asm()
    a('s_lshl_b32 s35, s20, 2')
    a('s_add_u32 s35, s35, s16')
    a('s_mul_i32 s35, s35, 144')
    a('s_mul_i32 s33, s19, 36')
    a('s_add_u32 s35, s35, s33')
    a('s_lshl_b32 s35, s35, 11')
    a('s_mul_i32 s47, s16, 5')
    a('s_cmp_eq_u32 s16, 3')
    a('s_cselect_b32 s33, 1, 0')
    a('s_sub_u32 s47, s47, s33')
    a('s_lshl_b32 s47, s47, 10')
    a('s_lshl_b32 s48, s16, 12')
    a('s_add_u32 s48, s48, %d' % WSTG)
    a('s_lshl_b32 s21, s19, 2')
    a('s_add_u32 s21, s21, s18')
    a('s_mul_i32 s21, s21, %d' % (36 * 9216))
    a('s_add_u32 s21, s21, s47')
    a('s_add_u32 s21, s21, 0x%x' % (WS_P2 - WS_P1))
    a('s_waitcnt lgkmcnt(0)')
    srd_off(a, 24, 12, 13, WS_P1, P_SIZE)
    srd_off(a, 36, 12, 13, WS_HB, H_SIZE)
    a('s_mov_b32 s50, 0x%x' % (0 if NOW else P_SIZE))
    a('s_mov_b32 s51, 0x%x' % (0 if NOH else H_SIZE))
    a('s_mov_b32 s33, 0')
    dma(a, 'p0', 'F2_D0')
    a('s_mov_b32 s33, %d' % STG)
    dma(a, 'w1', 'F2_D1')
    stamp(a, 1)
    a.wait_vm('p0')
    stamp(a, 2)
    a('s_barrier')
    a('s_mov_b32 s33, %d' % (2 * STG))
    dma(a, 'w2', 'F2_D2')
    a('s_mov_b32 s33, %d' % (3 * STG))
    dma(a, 'w3', 'F2_D2B')
    a('s_mov_b32 s33, 0')
    a('s_mov_b32 s49, 0')
    a.loop_begin('F2_PLOOP')
    a('s_waitcnt vmcnt(16)')
    a('s_barrier')
    a('s_cmp_le_u32 s49, 13')
    a('s_cselect_b32 s26, s50, 0')
    a('s_cselect_b32 s38, s51, 0')
    dma(a, 'wx', 'F2_D3')
    a('s_add_u32 s33, s33, %d' % STG)
    a('s_cmp_eq_u32 s33, %d' % (4 * STG))
    a('s_cselect_b32 s33, 0, s33')
    a('s_add_u32 s49, s49, 1')
    a('s_cmp_le_u32 s49, 17')
    a.loop_end('s_cbranch_scc1 F2_PLOOP')
    stamp(a, 3)
    stamp_store(a, 6, 4, 's17')
    a('s_waitcnt vmcnt(0)')
    a.label('F2_END')
    a('s_endpgm')
    t1 = a.finish()

    a = Asm()
    a.label('F2_CONS')
    a('v_mov_b32 v%d, v%d' % (vRB0, vL16))
    a('v_add_u32 v%d, %d, v%d' % (vRB1, STG, vL16))
    a('s_lshl_b32 s23, s16, 12')
    a('s_add_u32 s23, s23, %d' % WSTG)
    a('v_add_u32 v%d, s23, v%d' % (vHB0, vL16))
    a('v_add_u32 v%d, %d, v%d' % (vHB1, STG, vHB0))
    for r in range(72): a('v_mov_b32 v%d, 0' % (ACC + r))
    a('s_mov_b32 s22, 0')
    a('s_waitcnt lgkmcnt(0)')
    srd_off(a, 40, 12, 13, WS_PART, WS_FLAG - WS_PART)
    if FUSE:
        srd_off(a, 56, 12, 13, WS_H, WS_HB - WS_H)
        srd(a, 52, 4, 5, S * D * 2)
        srd_off(a, 60, 12, 13, WS_FLAG, 256 * 128)
        a('v_and_b32 v%d, 15, v%d' % (vT + 7, vT))
        a('v_lshrrev_b32 v%d, 4, v%d' % (vT + 8, vT))
        a('s_lshl_b32 s46, s20, 2')
        a('s_add_u32 s46, s46, s16')
        a('s_lshl_b32 s33, s46, 5')
        a('v_add_u32 v%d, s33, v%d' % (vT + 9, vT + 7))
        a('v_mul_u32_u24 v%d, 96, v%d' % (180, vT + 9))
        a('v_mul_u32_u24 v%d, 24, v%d' % (181, vT + 8))
        a('v_add_u32 v180, v180, v181')
        a('s_mov_b32 s33, 0x%x' % (WS_ST - WS_H))
        for tt in range(2):
            a('buffer_load_dwordx4 v[%d:%d], v180, s[56:59], s33 offen offset:%d' % (184 + 6 * tt, 187 + 6 * tt, tt * 1536))
            a('buffer_load_dwordx2 v[%d:%d], v180, s[56:59], s33 offen offset:%d' % (188 + 6 * tt, 189 + 6 * tt, tt * 1536 + 16))
        a('v_lshrrev_b32 v%d, 1, v%d' % (vHA, vT + 8))
        a('v_lshlrev_b32 v%d, 8, v%d' % (vHA, vHA))
        a('v_lshl_add_u32 v%d, v%d, 4, v%d' % (vHA, vT + 7, vHA))
        a('v_and_b32 v181, 1, v%d' % (vT + 8))
        a('v_lshl_add_u32 v%d, v181, 3, v%d' % (vHA, vHA))
        a('v_mul_u32_u24 v%d, 1152, v%d' % (vOA, vT + 9))
        a('v_lshl_add_u32 v%d, v%d, 3, v%d' % (vOA, vT + 8, vOA))
        a('s_lshl_b32 s45, s19, 1')
        a('s_add_u32 s45, s45, 1')
        a('s_cmp_eq_u32 s19, 0')
        a('s_cselect_b32 s45, 0, s45')
        a('s_mul_i32 s44, s46, 36864')
        a('s_mul_i32 s33, s18, 9')
        a('s_lshl_b32 s33, s33, 9')
        a('s_add_u32 s44, s44, s33')
        a('s_lshl_b32 s33, s45, 9')
        a('s_add_u32 s33, s33, s44')
        a('s_add_u32 s34, s33, 18432')
        for k in range(3):
            a('buffer_load_dwordx2 v[%d:%d], v%d, s[56:59], s33 offen offset:%d' % (vHR + 4 * k, vHR + 4 * k + 1, vHA, k * 512))
            a('buffer_load_dwordx2 v[%d:%d], v%d, s[56:59], s34 offen offset:%d' % (vHR + 4 * k + 2, vHR + 4 * k + 3, vHA, k * 512))
        for tt in range(2):
            rstd2_code(a, None, None, 184 + 6 * tt, 181, None)
            a('v_mov_b32 v%d, v%d' % (vRS + tt, 184 + 6 * tt))
    if TOUCH:
        srd_off(a, 24, 12, 13, WS_P1, P_SIZE)
        srd_off(a, 36, 12, 13, WS_HB, H_SIZE)
        a('v_lshlrev_b32 v%d, 7, v%d' % (vT + 1, vT))
        a('s_lshl_b32 s35, s20, 2')
        a('s_add_u32 s35, s35, s16')
        a('s_mul_i32 s35, s35, 144')
        a('s_mul_i32 s33, s19, 36')
        a('s_add_u32 s35, s35, s33')
        a('s_lshl_b32 s35, s35, 11')
        a('s_lshl_b32 s33, s18, 13')
        a('s_add_u32 s35, s35, s33')
        a('s_lshl_b32 s21, s19, 2')
        a('s_add_u32 s21, s21, s18')
        a('s_mul_i32 s21, s21, %d' % (36 * 9216))
        a('s_add_u32 s21, s21, 0x%x' % (WS_P2 - WS_P1))
        a('s_and_b32 s33, s20, 7')
        a('s_lshl_b32 s33, s33, 13')
        a('s_add_u32 s21, s21, s33')
        a('s_lshl_b32 s33, s16, 16')
        a('s_add_u32 s21, s21, s33')
        a('buffer_load_dword v%d, v%d, s[24:27], s21 offen' % (vT + 2, vT + 1))
        a('buffer_load_dword v%d, v%d, s[36:39], s35 offen' % (vT + 3, vT + 1))
        a('s_add_u32 s35, s35, 32768')
        a('buffer_load_dword v%d, v%d, s[36:39], s35 offen' % (vT + 4, vT + 1))
        a('s_add_u32 s21, s21, %d' % (4 * 65536))
        a('s_add_u32 s35, s35, 32768')
        a('s_cmp_ge_u32 s16, 2')
        a('s_cselect_b32 s26, 0, s26')
        a('buffer_load_dword v%d, v%d, s[24:27], s21 offen' % (vT + 5, vT + 1))
        a('s_cmp_eq_u32 s18, 0')
        a('s_cselect_b32 s38, s38, 0')
        a('buffer_load_dword v%d, v%d, s[36:39], s35 offen' % (vT + 6, vT + 1))
    stamp(a, 1)
    a('s_barrier')
    for x in hreads(0): emit(a, x)
    for i in range(PRE): read(a, 0, i)
    a('s_mov_b32 s49, 0')
    a.loop_begin('F2_LOOP')
    stage(a, 0)
    stage(a, 1)
    a('s_add_u32 s49, s49, 1')
    a('s_cmp_le_u32 s49, 8')
    a.loop_end('s_cbranch_scc1 F2_LOOP')
    stamp(a, 2)
    if not FUSE:
        a('s_lshl_b32 s34, s2, 2')
        a('s_add_u32 s34, s34, s16')
        a('s_mul_i32 s34, s34, 18432')
        for i in range(18):
            a('buffer_store_dwordx4 v[%d:%d], v%d, s[40:43], s34 offen offset:%d' % (ACC + 4 * i, ACC + 4 * i + 3, vL16, (i % 4) * 1024))
            if i % 4 == 3: a('s_add_u32 s34, s34, 4096')
        stamp(a, 3)
        stamp_store(a, 4, 4, 's17')
        a('s_endpgm')
        t2 = a.finish()
    else:
        a('s_nop 7')
        a('s_lshl_b32 s35, s20, 2')
        a('s_add_u32 s35, s35, s18')
        a('s_lshl_b32 s35, s35, 2')
        a('s_add_u32 s35, s35, s16')
        a('s_mul_i32 s34, s35, %d' % (4 * 9216))
        a('s_lshl_b32 s35, s35, 7')
        a('s_mul_i32 s47, s18, 288')
        a('v_mov_b32 v12, 0')
        for s_ in range(1, 4):
            a('s_cmp_eq_u32 s19, %d' % s_)
            a('s_cbranch_scc1 F2_EPI%d' % s_)
        t2 = a.finish()
        for s_ in range(4):
            t2 += epi_variant(s_)
        t2 += rescue()
    return kernel_header(name) + t0 + t1 + t2, kernel_desc(name, 256, 102), ((256, 512, LDS_F2))

REC = 88
def put_record(a, dt, s_, r):
    for tt in range(2):
        A = acc(dt, tt)
        a('v_cvt_pk_bf16_f32 v%d, v%d, v%d' % (r + 2 * tt, A, A + 1))
        a('v_cvt_pk_bf16_f32 v%d, v%d, v%d' % (r + 2 * tt + 1, A + 2, A + 3))
    off = (s_ * 9 + dt) * 1024
    a('s_add_u32 s33, s34, %d' % (off & ~4095))
    a('buffer_store_dwordx4 v[%d:%d], v%d, s[40:43], s33 offen offset:%d %s' % (r, r + 3, vL16, off & 4095, STMOD))

def word_op(a, op, val):
    a('v_mov_b32 v13, %s' % val)
    a('s_mov_b64 exec, 1')
    a('buffer_atomic_%s v13, v12, s[60:63], s35 offen sc0 sc1' % op)
    a('s_waitcnt vmcnt(0)')
    a('s_mov_b64 exec, -1')
    a('v_readfirstlane_b32 s36, v13')

def finalize(a, dt, tt, srcs, hr, own, t):
    first = own is None
    S_ = own if own is not None else t + 4
    for k, r in enumerate(srcs):
        a('v_lshlrev_b32 v%d, 16, v%d' % (t, r))
        a('v_and_b32 v%d, 0xffff0000, v%d' % (t + 1, r))
        a('v_lshlrev_b32 v%d, 16, v%d' % (t + 2, r + 1))
        a('v_and_b32 v%d, 0xffff0000, v%d' % (t + 3, r + 1))
        for j in range(4):
            if first and k == 0: a('v_mov_b32 v%d, v%d' % (S_ + j, t + j))
            else: a('v_add_f32 v%d, v%d, v%d' % (S_ + j, S_ + j, t + j))
    a('v_lshlrev_b32 v%d, 16, v%d' % (t, hr))
    a('v_and_b32 v%d, 0xffff0000, v%d' % (t + 1, hr))
    a('v_lshlrev_b32 v%d, 16, v%d' % (t + 2, hr + 1))
    a('v_and_b32 v%d, 0xffff0000, v%d' % (t + 3, hr + 1))
    for j in range(4):
        a('v_fma_f32 v%d, v%d, v%d, v%d' % (t + j, S_ + j, vRS + tt, t + j))
    a('v_cvt_pk_bf16_f32 v%d, v%d, v%d' % (t, t, t + 1))
    a('v_cvt_pk_bf16_f32 v%d, v%d, v%d' % (t + 1, t + 2, t + 3))

def epi_variant(s_):
    a = Asm()
    a.label('F2_EPI%d' % s_)
    own = DSET[s_]
    k = 0
    for dt in range(9):
        if dt in own or k >= NREC: continue
        put_record(a, dt, s_, REC + 4 * k); k += 1
    stamp(a, 1)
    if WBL2: a('buffer_wbl2 sc1')
    a('s_waitcnt vmcnt(0)')
    stamp(a, 3)
    word_op(a, 'add', '1')
    a('s_mov_b32 s38, 0')
    a('s_and_b32 s37, s36, 7')
    a('s_cmp_eq_u32 s37, 3')
    a('s_cbranch_scc0 F2_POLL%d' % s_)
    a('s_lshr_b32 s38, s36, 4')
    a('s_branch F2_GO%d' % s_)
    t = a.finish()
    a = Asm()
    a.label('F2_POLL%d' % s_)
    a('s_mov_b32 s39, %d' % SPIN)
    a.label('F2_PL%d' % s_)
    a('s_cmp_eq_u32 s39, 0')
    a('s_cbranch_scc1 F2_TMO%d' % s_)
    a('s_sub_u32 s39, s39, 1')
    a('buffer_load_dword v13, v12, s[60:63], s35 offen sc0 sc1')
    a('s_waitcnt vmcnt(0)')
    a('v_readfirstlane_b32 s36, v13')
    a('s_and_b32 s37, s36, 7')
    a('s_cmp_eq_u32 s37, 4')
    a('s_cbranch_scc0 F2_PL%d' % s_)
    a('s_branch F2_GO%d' % s_)
    t += a.finish()
    a = Asm()
    a.label('F2_TMO%d' % s_)
    for k, dt in enumerate(own):
        put_record(a, dt, s_, REC + 4 * k)
    a('s_waitcnt vmcnt(0)')
    word_op(a, 'or', str(16 << s_))
    a('s_and_b32 s37, s36, 7')
    a('s_cmp_eq_u32 s37, 4')
    a('s_cbranch_scc1 F2_GO%d' % s_)
    a('s_endpgm')
    t += a.finish()
    a = Asm()
    a.label('F2_GO%d' % s_)
    stamp(a, 4)
    others = [x for x in range(4) if x != s_]
    LD = 88
    for k, dt in enumerate(own):
        for j, o in enumerate(others):
            off = (o * 9 + dt) * 1024
            r = LD + 12 * k + 4 * j
            a('s_add_u32 s33, s34, %d' % (off & ~4095))
            a('buffer_load_dwordx4 v[%d:%d], v%d, s[40:43], s33 offen offset:%d %s' % (r, r + 3, vL16, off & 4095, LDMOD))
    if common.STAMPS:
        a('s_waitcnt vmcnt(0)')
        stamp(a, 2)
    T_ = 128
    n = 0
    for k, dt in enumerate(own):
        for tt in range(2):
            t_ = T_ + 8 * (n % 4); n += 1
            finalize(a, dt, tt, [LD + 12 * k + 4 * j + 2 * tt for j in range(3)], vHR + 4 * k + 2 * tt, acc(dt, tt), t_)
            a('s_add_u32 s33, s47, %d' % (tt * 16 * 1152 + dt * 32))
            a('buffer_store_dwordx2 v[%d:%d], v%d, s[52:55], s33 offen' % (t_, t_ + 1, vOA))
    stamp(a, 5)
    stamp_store(a, 4, 6, 's17')
    a('s_cmp_lg_u32 s38, 0')
    a('s_cbranch_scc1 F2_RESCUE')
    a('s_endpgm')
    t += a.finish()
    return t

def rescue():
    a = Asm()
    a.label('F2_RESCUE')
    a('s_mov_b32 s39, 0')
    for q in range(4):
        a('s_bitcmp1_b32 s38, %d' % q)
        a('s_cselect_b32 s37, %d, 0' % DMASK[q])
        a('s_or_b32 s39, s39, s37')
    a('s_mov_b32 s48, 0')
    t = a.finish()
    a = Asm()
    a.label('F2_RL')
    a('s_bitcmp1_b32 s39, s48')
    a('s_cbranch_scc0 F2_RN')
    a('s_lshl_b32 s33, s48, 10')
    a('s_add_u32 s33, s33, s34')
    for o in range(4):
        a('buffer_load_dwordx4 v[%d:%d], v%d, s[40:43], s33 offen sc1' % (88 + 4 * o, 91 + 4 * o, vL16))
        a('s_add_u32 s33, s33, 9216')
    a('s_lshl_b32 s33, s48, 9')
    a('s_add_u32 s33, s33, s44')
    a('buffer_load_dwordx2 v[104:105], v%d, s[56:59], s33 offen' % vHA)
    a('s_add_u32 s33, s33, 18432')
    a('buffer_load_dwordx2 v[106:107], v%d, s[56:59], s33 offen' % vHA)
    a('s_waitcnt vmcnt(0)')
    for tt in range(2):
        t_ = 128 + 8 * tt
        finalize(a, None, tt, [88 + 4 * o + 2 * tt for o in range(4)], 104 + 2 * tt, None, t_)
        a('s_lshl_b32 s33, s48, 5')
        a('s_add_u32 s33, s33, s47')
        a('s_add_u32 s33, s33, %d' % (tt * 16 * 1152))
        a('buffer_store_dwordx2 v[%d:%d], v%d, s[52:55], s33 offen' % (t_, t_ + 1, vOA))
    a('s_waitcnt vmcnt(0)')
    a.label('F2_RN')
    a('s_add_u32 s48, s48, 1')
    a('s_cmp_lt_u32 s48, 9')
    a('s_cbranch_scc1 F2_RL')
    a('s_endpgm')
    t += a.finish()
    return t
```

```python
from asmgen import *
from common import *
import common

LDS_K2 = 4 * KV_CHUNK
Q1, Q2 = 8, 12
SB = [16, 32]
P = 48
O = 56
K1B = [72, 76]
K2B = [80, 82]
VB = [84, 92]
vK1A, vK2A, vVA = 100, 101, 102
vLANE, vHI, vQ = 1, 2, 3
vT = 104
vOOFF = 4
vM, vMX, vAL = 112, 113, 114
vPF = 116
PREFETCH = False
PACK = True
import pk

def kreads(a, tile15, buf):
    a('ds_read_b128 v[%d:%d], v%d offset:%d' % (K1B[buf], K1B[buf] + 3, vK1A, tile15 * 1152))
    a('ds_read_b32 v%d, v%d offset:%d' % (K2B[buf], vK2A, tile15 * 1152))
def vreads(a, tile15, buf):
    a('ds_read_b128 v[%d:%d], v%d offset:%d' % (VB[buf], VB[buf] + 3, vVA, tile15 * 1216))
    a('ds_read_b128 v[%d:%d], v%d offset:%d' % (VB[buf] + 4, VB[buf] + 7, vVA, tile15 * 1216 + 608))

S3 = 'e0 e1 e2 e3 k8 e4 e5 c0 e6 c1 q1 e7 e8 c2 e9 c3 k16 K e10 e11 e12 e13 p0 V e14 e15 c4 c5 c6 c7'
SCHED = S3
SIDE = []
NOLDS = False
def tile_body(a, tl, cur, nxt, Sc, Sn):
    E = lambda r: a('v_exp_f32 v%d, v%d' % (Sc + r, Sc + r))
    C = lambda i: a('v_cvt_pk_bf16_f32 v%d, v%d, v%d' % (P + i, Sc + 2 * i, Sc + 2 * i + 1))
    def KR():
        if not NOLDS: kreads(a, (tl + 2) & 15, cur)
    def VR():
        if not NOLDS: vreads(a, (tl + 1) & 15, nxt)
    if SCHED == 0:
        a(mfma32k8(Sn, K2B[nxt], Q2, '0'))
        for r in range(0, 4): E(r)
        a(mfma32(Sn, K1B[nxt], Q1))
        E(4); E(5); KR(); VR(); C(0); E(6); E(7); C(1); C(2); E(8); E(9); C(3); E(10); E(11)
        a(mfma32(O, VB[cur], P))
        E(12); E(13); C(4); E(14); E(15); C(5); C(6); C(7)
        a(mfma32(O, VB[cur] + 4, P + 4))
    elif SCHED == 1:
        a(mfma32k8(Sn, K2B[nxt], Q2, '0'))
        E(0); E(1); E(2); E(3)
        C(0)
        a(mfma32(Sn, K1B[nxt], Q1))
        KR()
        E(4); E(5); C(1); E(6); E(7)
        C(2); E(8); C(3); E(9)
        a(mfma32(O, VB[cur], P))
        E(10); E(11); C(4); E(12); E(13)
        C(5); E(14); E(15)
        C(6); VR(); C(7)
        a(mfma32(O, VB[cur] + 4, P + 4))
    elif isinstance(SCHED, str):
        for t in SCHED.split():
            if t[0] == 'e': E(int(t[1:]))
            elif t[0] == 'c': C(int(t[1:]))
            elif t == 'k8': a(mfma32k8(Sn, K2B[nxt], Q2, '0'))
            elif t == 'k16': a(mfma32(Sn, K1B[nxt], Q1))
            elif t == 'p0': a(mfma32(O, VB[cur], P))
            elif t == 'p1': a(mfma32(O, VB[cur] + 4, P + 4))
            elif t == 'q1': a(mfma32(O, VB[nxt] + 4, P + 4))
            elif t == 'K': KR()
            elif t == 'V': VR()
            elif t == 'X':
                for f_ in SIDE: f_()
                del SIDE[:]
            else: raise ValueError(t)
    elif SCHED == 2:
        E(0); E(1)
        a(mfma32k8(Sn, K2B[nxt], Q2, '0'))
        E(2); E(3); C(0); E(4); E(5); C(1)
        a(mfma32(Sn, K1B[nxt], Q1))
        KR()
        E(6); E(7); C(2); E(8); C(3); E(9)
        a(mfma32(O, VB[cur], P))
        E(10); E(11); C(4); E(12); E(13); C(5); E(14); E(15)
        VR()
        C(6); C(7)
        a(mfma32(O, VB[cur] + 4, P + 4))

def gen_k2(name='k2_kernel'):
    a = Asm()
    stamp(a, 0); stamp_rt(a, 9)
    a('s_load_dwordx2 s[12:13], s[0:1], 88')
    a('s_cmp_ge_u32 s2, 256')
    a('s_cbranch_scc1 K2_END')
    a('v_and_b32 v%d, 63, v0' % vLANE)
    a('v_lshrrev_b32 v%d, 6, v0' % vT)
    a('v_readfirstlane_b32 s16, v%d' % vT)
    if PACK: pk.decode(a, 's16')
    if PREFETCH:
        a('s_lshl_b32 s50, s2, 3')
        a('s_add_u32 s50, s50, s16')
        a('s_mul_hi_u32 s51, s50, 0x%x' % ((2 ** 32 + 647) // 648))
        a('s_mul_i32 s52, s51, 648')
        a('s_sub_u32 s52, s50, s52')
        a('s_lshl_b32 s53, s51, 3')
        a('s_add_u32 s53, s53, 48')
        a('s_cmp_eq_u32 s51, 3')
        a('s_cselect_b32 s53, 32, s53')
        a('s_load_dwordx2 s[56:57], s[0:1], s53')
        a('s_lshl_b32 s52, s52, 13')
        a('v_lshlrev_b32 v%d, 7, v%d' % (vPF, vLANE))
        a('v_add_u32 v%d, s52, v%d' % (vPF, vPF))
    a('v_and_b32 v%d, 31, v%d' % (vQ, vLANE))
    a('v_lshrrev_b32 v%d, 5, v%d' % (vHI, vLANE))
    a('s_lshl_b32 s17, s2, 3')
    a('s_add_u32 s17, s17, s16')
    a('s_mul_i32 s18, s17, 1152')
    a('v_mul_u32_u24 v%d, 36, v%d' % (vOOFF, vQ))
    a('v_add_u32 v%d, s18, v%d' % (vOOFF, vOOFF))
    a('v_lshl_add_u32 v%d, v%d, 4, v%d' % (vT, vHI, vOOFF))
    a('v_lshlrev_b32 v%d, 4, v0' % (vT + 1))
    a('s_waitcnt lgkmcnt(0)')
    srd(a, 24, 12, 13, WS_KV)
    srd_off(a, 28, 12, 13, WS_KV, 4 * KV_CHUNK)
    srd_off(a, 32, 12, 13, WS_O, S * D * 2)
    if PREFETCH:
        a('s_mov_b32 s58, %d' % (D * F * 2))
        a('s_cmp_eq_u32 s51, 3')
        a('s_cselect_b32 s58, %d, s58' % (D * D * 2))
        a('s_mov_b32 s59, 0x00020000')
    a('buffer_load_dwordx4 v[%d:%d], v%d, s[24:27], 0 offen' % (Q1, Q1 + 3, vT))
    a('buffer_load_dword v%d, v%d, s[24:27], 0 offen offset:32' % (Q2, vOOFF))
    a('s_lshl_b32 s19, s16, 10')
    a('s_cmp_lt_u32 s16, 5')
    a('s_cselect_b32 s43, 8, 6')
    a('s_lshl_b32 s43, s43, 12')
    for c in range(4):
        for i in range(5):
            if i < 4:
                off = c * KV_CHUNK + i * 8192
                a('s_add_u32 m0, s19, %d' % off)
                a('s_mov_b32 s20, %d' % off)
            else:
                a('s_add_u32 s20, s43, %d' % (c * KV_CHUNK))
                a('s_add_u32 m0, s19, s20')
            a('buffer_load_dwordx4 v%d, s[28:31], s20 offen lds' % (vT + 1), tag='kv%d' % c)
    if PACK:
        def scr(a):
            a('s_lshr_b32 s52, s16, 1')
            a('s_mul_i32 s52, s52, %d' % KV_CHUNK)
            a('s_and_b32 s53, s16, 1')
            a('s_mul_i32 s53, s53, 1168')
            a('s_add_u32 s52, s52, s53')
            a('s_add_u32 s52, s52, %d' % (KV_CHUNK - 3072))
        pk.setup(a, vLANE, vT + 4, scr)
    a('v_lshlrev_b32 v%d, 4, v%d' % (vK1A, vLANE))
    a('v_lshlrev_b32 v%d, 2, v%d' % (vK2A, vQ))
    a('v_add_u32 v%d, 1024, v%d' % (vK2A, vK2A))
    a('v_mov_b32 v%d, v%d' % (vT + 2, vQ))
    a('v_cmp_lt_u32 vcc, 18, v%d' % vQ)
    a('v_cndmask_b32 v%d, v%d, 4, vcc' % (vT + 2, vT + 2))
    a('v_add_u32 v%d, -20, v%d' % (vT + 3, vQ))
    a('v_cmp_gt_u32 vcc, 8, v%d' % (vT + 3))
    a('v_cndmask_b32 v%d, v%d, 0, vcc' % (vT + 2, vT + 2))
    a('v_mul_u32_u24 v%d, 19, v%d' % (vT + 3, vHI))
    a('v_add_u32 v%d, v%d, v%d' % (vT + 2, vT + 2, vT + 3))
    a('v_lshlrev_b32 v%d, 4, v%d' % (vVA, vT + 2))
    a('v_add_u32 v%d, %d, v%d' % (vVA, KV_VOFF, vVA))
    for b in range(2):
        a('v_mov_b32 v%d, 0' % (K2B[b] + 1))
    for r in range(16):
        a('v_mov_b32 v%d, 0' % (O + r))
    if isinstance(SCHED, str) and 'q1' in SCHED:
        for r in range(4):
            a('v_mov_b32 v%d, 0' % (P + 4 + r)); a('v_mov_b32 v%d, 0' % (VB[1] + 4 + r))
    a('v_mov_b32 v%d, 0' % (Q2 + 1))
    a('v_cmp_eq_u32 vcc, 0, v%d' % vHI)
    a('v_cndmask_b32 v%d, 0, v%d, vcc' % (Q2, Q2))
    a.wait_vm('kv0')
    a('s_barrier')
    stamp(a, 1)
    if PACK:
        never = lambda a: a('s_cmp_eq_u32 s16, 99')
        if pk.DMA:
            pk.dma_issue(a, never)
            pk.touch(a)
        else:
            pk.load(a, 0, never)
            pk.touch(a)
            pk.load(a, 1, never)
            pk.touch(a)
    kreads(a, 0, 0)
    kreads(a, 1, 1)
    vreads(a, 0, 0)
    a(mfma32k8(SB[0], K2B[0], Q2, '0'))
    a(mfma32(SB[0], K1B[0], Q1))
    if pk.TIMEW:
        a('s_mov_b32 s70, s64'); a('s_mov_b32 s72, 0'); a('s_mov_b32 s74, 0'); a('s_mov_b32 s76, 0')
    a('s_mov_b32 s21, 0')
    a('s_mov_b32 s23, %d' % (-3 * KV_CHUNK))
    a('s_mov_b32 s42, %d' % KV_CHUNK)
    a('s_nop 9')
    a.loop_begin('K2_LOOP')
    a('s_cmp_eq_u32 s21, 3')
    a('s_cselect_b32 s22, s23, s42')
    for tl in range(16):
        cur = tl & 1; nxt = cur ^ 1
        Sc = SB[cur]; Sn = SB[nxt]
        if tl == 14:
            a('s_cmp_lg_u32 s21, 0')
            a('s_cbranch_scc1 K2_NOBAR')
            a.opt_begin()
            a.wait_vm('kv3')
            a('s_barrier')
            if PREFETCH:
                a('buffer_load_dword v%d, v%d, s[56:59], 0 offen' % (vPF + 1, vPF))
            a.opt_end()
            a.label('K2_NOBAR')
            a('v_add_u32 v%d, s22, v%d' % (vK1A, vK1A))
            a('v_add_u32 v%d, s22, v%d' % (vK2A, vK2A))
        if tl == 15:
            a('v_add_u32 v%d, s22, v%d' % (vVA, vVA))
        side = []
        if PACK:
            never = lambda a: a('s_cmp_eq_u32 s21, 99')
            if tl == 9: side = pk.partA(a, 0, never, lambda a: (a('s_cmp_eq_u32 s21, 3'), a('s_cselect_b32 s%d, 0, s%d' % (pk.R.sSRC + 2, pk.R.sSRC + 2))))
            if tl == 14: side = pk.partA(a, 1, lambda a: a('s_bitcmp0_b32 s21, 0'))
            if tl == 10: side = pk.partB(a, never)
            if tl == 15: side = pk.partB(a, lambda a: a('s_bitcmp1_b32 s21, 0'))
        if PACK and pk.DMA:
            never = lambda a: a('s_cmp_eq_u32 s21, 99')
            odd = lambda a: a('s_bitcmp1_b32 s21, 0')
            side = []
            if tl in (6, 14): side = pk.dmaA(a)
            if tl == 7: side = pk.dmaB(a, odd, never)
            if tl == 15: side = pk.dmaB(a, never, odd, lambda a: (a('s_cmp_eq_u32 s21, 3'), a('s_cselect_b32 s%d, 0, s%d' % (pk.R.sSRC + 2, pk.R.sSRC + 2))))
        for f_ in side: f_()
        tile_body(a, tl, cur, nxt, Sc, Sn)
    a('s_add_u32 s21, s21, 1')
    a('s_cmp_lt_u32 s21, 4')
    a.loop_end('s_cbranch_scc1 K2_LOOP')
    if isinstance(SCHED, str) and 'q1' in SCHED:
        a(mfma32(O, VB[1] + 4, P + 4))
    stamp(a, 2)
    if PACK:
        pk.finish(a, vLANE, vT)
        a('s_waitcnt vmcnt(0)')
    a('v_mov_b32 v%d, v%d' % (vT, O + 10))
    a('v_mov_b32 v%d, v%d' % (vT + 1, O + 10))
    a('v_permlane32_swap_b32 v%d, v%d' % (vT, vT + 1))
    a('v_max3_f32 v%d, |v%d|, |v%d|, |v%d|' % (vT + 2, O, O + 1, O + 2))
    a('v_max3_f32 v%d, |v%d|, |v%d|, v%d' % (vT + 2, O + 3, O + 4, vT + 2))
    a('v_max3_f32 v%d, |v%d|, |v%d|, v%d' % (vT + 2, O + 5, O + 6, vT + 2))
    a('v_max3_f32 v%d, |v%d|, |v%d|, v%d' % (vT + 2, O + 7, O + 8, vT + 2))
    a('v_max_f32 v%d, |v%d|, v%d' % (vT + 2, O + 9, vT + 2))
    a('v_cmp_lt_f32 vcc, %s, v%d' % (f32(2.0 ** -60), vT))
    a('s_mov_b32 s38, %s' % f32(2.0 ** 60))
    a('s_mov_b32 s39, %s' % f32(2.0 ** 120))
    a('v_cmp_gt_f32 s[36:37], s38, v%d' % vT)
    a('v_cmp_gt_f32 s[40:41], s39, v%d' % (vT + 2))
    a('s_and_b64 s[36:37], s[36:37], vcc')
    a('s_and_b64 s[36:37], s[36:37], s[40:41]')
    a('s_cmp_eq_u64 s[36:37], -1')
    a('s_cbranch_scc0 K2_SLOW')
    t1 = a.finish()

    a = Asm()
    a.label('K2_FIN')
    a('v_rcp_f32 v%d, v%d' % (vT, vT))
    for r in range(10):
        a('v_mul_f32 v%d, v%d, v%d' % (O + r, O + r, vT))
    for i in range(5):
        a('v_cvt_pk_bf16_f32 v%d, v%d, v%d' % (P + i, O + 2 * i, O + 2 * i + 1))
    a('s_lshr_b32 s22, s16, 1')
    a('s_mul_i32 s22, s22, %d' % KV_CHUNK)
    a('s_and_b32 s23, s16, 1')
    a('s_mul_i32 s23, s23, 1168')
    a('s_add_u32 s22, s22, s23')
    a('s_add_u32 s22, s22, %d' % (KV_CHUNK - 3072))
    a('v_mul_u32_u24 v%d, 36, v%d' % (vT + 1, vQ))
    a('v_add_u32 v%d, s22, v%d' % (vT + 1, vT + 1))
    a('v_lshl_add_u32 v%d, v%d, 3, v%d' % (vT + 2, vHI, vT + 1))
    a('ds_write2_b32 v%d, v%d, v%d offset0:0 offset1:1' % (vT + 2, P, P + 1))
    a('ds_write2_b32 v%d, v%d, v%d offset0:4 offset1:5' % (vT + 2, P + 2, P + 3))
    a('s_mov_b32 exec_hi, 0')
    a('ds_write_b32 v%d, v%d offset:32' % (vT + 1, P + 4))
    a('s_mov_b32 exec_hi, -1')
    a('s_waitcnt lgkmcnt(0)')
    a('s_barrier')
    def out_units(ireg):
        a('v_and_b32 v%d, 7, v%d' % (vT + 3, vLANE))
        a('v_bfe_u32 v%d, v%d, 3, 2' % (vT + 4, vLANE))
        a('v_lshrrev_b32 v%d, 5, v%d' % (vT + 5, vLANE))
        a('s_lshl_b32 s23, %s, 1' % ireg)
        a('v_add_u32 v%d, s23, v%d' % (vT + 5, vT + 5))
        a('v_lshrrev_b32 v%d, 1, v%d' % (vT + 6, vT + 3))
        a('v_mul_u32_u24 v%d, %d, v%d' % (vT + 6, KV_CHUNK, vT + 6))
        a('v_and_b32 v%d, 1, v%d' % (vT + 7, vT + 3))
        a('v_mul_u32_u24 v%d, 1168, v%d' % (vT + 7, vT + 7))
        a('v_add3_u32 v%d, v%d, v%d, s47' % (vT + 6, vT + 6, vT + 7))
        a('v_lshl_add_u32 v%d, v%d, 6, v%d' % (vT + 6, vT + 5, vT + 6))
        a('v_lshl_add_u32 v%d, v%d, 4, v%d' % (vT + 6, vT + 4, vT + 6))
        a('ds_read_b128 v[%d:%d], v%d' % (P, P + 3, vT + 6))
        a('v_lshlrev_b32 v%d, 10, v%d' % (vT + 7, vT + 5))
        a('v_lshl_add_u32 v%d, v%d, 8, v%d' % (vT + 7, vT + 4, vT + 7))
        a('v_lshl_add_u32 v%d, v%d, 4, v%d' % (vT + 7, vT + 3, vT + 7))
        a('buffer_store_dwordx4 v[%d:%d], v%d, s[32:35], s48 offen' % (P, P + 3, vT + 7))
    a('s_mov_b32 s47, %d' % (KV_CHUNK - 3072))
    a('s_lshr_b32 s48, s2, 1')
    a('s_mul_i32 s48, s48, 18432')
    a('s_and_b32 s49, s2, 1')
    a('s_lshl_b32 s49, s49, 7')
    a('s_add_u32 s48, s48, s49')
    out_units('s16')
    a('s_cmp_lg_u32 s16, 0')
    a('s_cbranch_scc1 K2_DONE')
    a('s_mov_b32 s50, 8')
    out_units('s50')
    a.label('K2_DONE')
    if pk.TIMEW:
        a('s_sub_u32 s70, s70, s64'); a('s_add_u32 s72, s72, s64'); a('s_add_u32 s74, s74, s64')
        stamp_store(a, 1, 6)
        a('s_endpgm')
    stamp(a, 3)
    stamp_store(a, 1, 4)
    a('s_endpgm')
    t2 = a.finish()

    a = Asm()
    a.label('K2_SLOW')
    a('v_lshlrev_b32 v%d, 4, v%d' % (vK1A, vLANE))
    a('v_lshlrev_b32 v%d, 2, v%d' % (vK2A, vQ))
    a('v_add_u32 v%d, 1024, v%d' % (vK2A, vK2A))
    for r in range(16):
        a('v_mov_b32 v%d, 0' % (O + r))
    a('v_mov_b32 v%d, %s' % (vM, f32(-3.0e38)))
    a('s_mov_b32 s43, %d' % (KV_CHUNK - 15 * 1152))
    a('s_mov_b32 s44, 1152')
    a('s_mov_b32 s45, %d' % (KV_CHUNK - 15 * 1216))
    a('s_mov_b32 s46, 1216')
    a('s_mov_b32 s21, 0')
    Sc = SB[0]
    a.loop_begin('K2_SLOOP')
    kreads(a, 0, 0)
    vreads(a, 0, 0)
    a(mfma32k8(Sc, K2B[0], Q2, '0'))
    a(mfma32(Sc, K1B[0], Q1))
    a('v_max3_f32 v%d, v%d, v%d, v%d' % (vMX, Sc, Sc + 1, Sc + 2))
    for r in range(3, 15, 2):
        a('v_max3_f32 v%d, v%d, v%d, v%d' % (vMX, Sc + r, Sc + r + 1, vMX))
    a('v_max_f32 v%d, v%d, v%d' % (vMX, Sc + 15, vMX))
    a('v_mov_b32 v%d, v%d' % (vAL, vMX))
    a('v_permlane32_swap_b32 v%d, v%d' % (vMX, vAL))
    a('v_max3_f32 v%d, v%d, v%d, v%d' % (vMX, vMX, vAL, vM))
    a('v_sub_f32 v%d, v%d, v%d' % (vAL, vM, vMX))
    a('v_exp_f32 v%d, v%d' % (vAL, vAL))
    a('v_mov_b32 v%d, v%d' % (vM, vMX))
    for r in range(16):
        a('v_sub_f32 v%d, v%d, v%d' % (Sc + r, Sc + r, vM))
    for r in range(16):
        a('v_exp_f32 v%d, v%d' % (Sc + r, Sc + r))
    for r in range(16):
        a('v_mul_f32 v%d, v%d, v%d' % (O + r, O + r, vAL))
    for i in range(8):
        a('v_cvt_pk_bf16_f32 v%d, v%d, v%d' % (P + i, Sc + 2 * i, Sc + 2 * i + 1))
    a(mfma32(O, VB[0], P))
    a(mfma32(O, VB[0] + 4, P + 4))
    a('s_add_u32 s21, s21, 1')
    a('s_and_b32 s22, s21, 15')
    a('s_cmp_eq_u32 s22, 0')
    a('s_cselect_b32 s22, s43, s44')
    a('s_cselect_b32 s23, s45, s46')
    a('v_add_u32 v%d, s22, v%d' % (vK1A, vK1A))
    a('v_add_u32 v%d, s22, v%d' % (vK2A, vK2A))
    a('v_add_u32 v%d, s23, v%d' % (vVA, vVA))
    a('s_cmp_lt_u32 s21, 64')
    a.loop_end('s_cbranch_scc1 K2_SLOOP')
    a('v_mov_b32 v%d, v%d' % (vT, O + 10))
    a('v_mov_b32 v%d, v%d' % (vT + 1, O + 10))
    a('v_permlane32_swap_b32 v%d, v%d' % (vT, vT + 1))
    a('s_nop 1')
    a('s_branch K2_FIN')
    t3 = a.finish()
    end = 'K2_END:\n  s_endpgm\n'
    return kernel_header(name) + t1 + t2 + t3 + end, kernel_desc(name, 256 if common.STAMPS else 136, 102), (256, 512, LDS_K2)
```

```python
from asmgen import *
from common import *
import common
LDS_K3 = 576 * 192
X = 32
FR = 108
ACC = 132
XR = 144
vLANE, vG, vN, vROW = 1, 2, 3, 4
vT = 10
vRB = 24
vD = 6
vS1, vS2 = 28, 29
ONE = 30

def gen_k3(name='k3_kernel'):
    a = Asm()
    stamp(a, 0); stamp_rt(a, 9)
    a('s_load_dwordx2 s[4:5], s[0:1], 0')
    a('s_load_dwordx2 s[6:7], s[0:1], 32')
    a('s_load_dwordx2 s[12:13], s[0:1], 88')
    a('s_cmp_ge_u32 s2, 192')
    a('s_cbranch_scc1 K3_CT')
    a('v_and_b32 v%d, 63, v0' % vLANE)
    a('v_lshrrev_b32 v%d, 6, v0' % vT)
    a('v_readfirstlane_b32 s16, v%d' % vT)
    a('s_and_b32 s19, s16, 3')
    a('s_lshr_b32 s20, s16, 2')
    a('s_and_b32 s21, s2, 7')
    a('s_lshr_b32 s22, s2, 3')
    a('s_and_b32 s22, s22, 3')
    a('s_lshl_b32 s22, s22, 3')
    a('s_add_u32 s17, s21, s22')
    a('s_lshr_b32 s18, s2, 5')
    a('v_and_b32 v%d, 15, v%d' % (vN, vLANE))
    a('v_lshrrev_b32 v%d, 4, v%d' % (vG, vLANE))
    a('s_lshl_b32 s23, s17, 2')
    a('s_add_u32 s23, s23, s19')
    a('s_lshl_b32 s33, s23, 4')
    a('v_add_u32 v%d, s33, v%d' % (vROW, vN))
    a('v_lshlrev_b32 v%d, 4, v%d' % (vT, vLANE))
    a('s_mul_i32 s34, s23, 18432')
    a('v_mul_u32_u24 v%d, 5462, v%d' % (vT + 1, vLANE))
    a('v_lshrrev_b32 v%d, 16, v%d' % (vT + 1, vT + 1))
    a('v_mul_u32_u24 v%d, 12, v%d' % (vT + 2, vT + 1))
    a('v_sub_u32 v%d, v%d, v%d' % (vT + 2, vLANE, vT + 2))
    a('s_lshl_b32 s33, s16, 2')
    a('v_add_u32 v%d, s33, v%d' % (vT + 1, vT + 1))
    a('v_and_b32 v%d, 0x33, v%d' % (vT + 3, vT + 1))
    a('v_and_b32 v%d, 4, v%d' % (vT + 4, vT + 1))
    a('v_lshl_or_b32 v%d, v%d, 1, v%d' % (vT + 3, vT + 4, vT + 3))
    a('v_and_b32 v%d, 8, v%d' % (vT + 4, vT + 1))
    a('v_lshrrev_b32 v%d, 1, v%d' % (vT + 4, vT + 4))
    a('v_or_b32 v%d, v%d, v%d' % (vT + 3, vT + 3, vT + 4))
    a('s_and_b32 s33, s16, 1')
    a('s_lshl_b32 s33, s33, 1')
    a('v_xor_b32 v%d, s33, v%d' % (vT + 2, vT + 2))
    a('v_mul_u32_u24 v%d, 1152, v%d' % (vT + 3, vT + 3))
    a('v_lshl_add_u32 v%d, v%d, 4, v%d' % (vD, vT + 2, vT + 3))
    a('s_mul_i32 s33, s18, 192')
    a('v_add_u32 v%d, s33, v%d' % (vD, vD))
    a('s_waitcnt lgkmcnt(0)')
    srd(a, 24, 4, 5, S * D * 2)
    srd(a, 28, 6, 7, D * D * 2)
    srd_off(a, 36, 12, 13, WS_O, S * D * 2)
    srd_off(a, 40, 12, 13, WS_H, WS_HB - WS_H)
    for k in range(18):
        a('buffer_load_dwordx4 v[%d:%d], v%d, s[36:39], s34 offen offset:%d' % (X + 4 * k, X + 4 * k + 3, vT, (k % 4) * 1024), tag='x')
        if k % 4 == 3: a('s_add_u32 s34, s34, 4096')
    a('s_mul_i32 s34, s16, 768')
    a('s_mov_b32 s35, 0')
    a('s_mov_b32 exec_hi, 0x0000ffff')
    for q in range(18):
        a('s_mov_b32 m0, s34')
        a('buffer_load_dwordx4 v%d, s[28:31], s35 offen lds' % vD, tag='w')
        if q < 17:
            a('s_add_u32 s34, s34, %d' % (8 * 768))
            a('s_add_u32 s35, s35, %d' % (32 * 1152))
    a('s_mov_b32 exec_hi, -1')
    a('s_mul_i32 s33, s18, 192')
    a('s_mul_i32 s35, s20, 96')
    a('s_add_u32 s33, s33, s35')
    a('v_mul_u32_u24 v%d, 1152, v%d' % (vT, vROW))
    a('v_lshl_add_u32 v%d, v%d, 3, v%d' % (vT, vG, vT))
    for ti in range(3):
        a('buffer_load_dwordx2 v[%d:%d], v%d, s[24:27], s33 offen offset:%d' % (XR + 2 * ti, XR + 2 * ti + 1, vT, ti * 32))
    a('v_lshrrev_b32 v%d, 1, v%d' % (vT, vG))
    a('v_lshlrev_b32 v%d, 4, v%d' % (vT, vT))
    a('v_and_b32 v%d, 1, v%d' % (vT + 1, vG))
    a('v_lshl_add_u32 v%d, v%d, 2, v%d' % (vT, vT + 1, vT))
    a('v_lshrrev_b32 v%d, 2, v%d' % (vT + 2, vN))
    a('v_add_u32 v%d, v%d, v%d' % (vT, vT, vT + 2))
    a('v_mul_u32_u24 v%d, 192, v%d' % (vT, vT))
    a('v_and_b32 v%d, 3, v%d' % (vT + 2, vN))
    a('v_lshl_add_u32 v%d, v%d, 3, v%d' % (vT, vT + 2, vT))
    a('v_add_u32 v%d, s35, v%d' % (vT, vT))
    a('v_lshlrev_b32 v%d, 5, v%d' % (vT + 1, vT + 1))
    a('s_cmp_eq_u32 s20, 0')
    a('s_cselect_b32 s33, 1, -1')
    a('v_mul_lo_u32 v%d, v%d, s33' % (vT + 1, vT + 1))
    a('v_add_u32 v%d, v%d, v%d' % (vRB, vT, vT + 1))
    a('v_sub_u32 v%d, v%d, v%d' % (vRB + 1, vT, vT + 1))
    a('v_add_u32 v%d, %d, v%d' % (vRB + 2, 10 * 6144, vRB))
    a('v_add_u32 v%d, %d, v%d' % (vRB + 3, 10 * 6144, vRB + 1))
    a('v_mov_b32 v%d, 0x3f803f80' % ONE)
    a('s_waitcnt vmcnt(0)')
    a('s_barrier')
    stamp(a, 1)
    steps = [(k, ti) for k in range(18) for ti in range(3)]
    NB = 6; PD = 5
    def reads(idx):
        k, ti = steps[idx]
        fr = FR + 4 * (idx % NB)
        base = vRB + (ti & 1) + (2 if k >= 10 else 0)
        off = (k if k < 10 else k - 10) * 6144 + ti * 32
        a('ds_read_b64_tr_b16 v[%d:%d], v%d offset:%d' % (fr, fr + 1, base, off))
        a('ds_read_b64_tr_b16 v[%d:%d], v%d offset:%d' % (fr + 2, fr + 3, base, off + 1536))
    for i in range(PD): reads(i)
    for idx, (k, ti) in enumerate(steps):
        fr = FR + 4 * (idx % NB)
        a(mfma16(ACC + 4 * ti, fr, X + 4 * k, '0' if k == 0 else None))
        if idx + PD < len(steps): reads(idx + PD)
    stamp(a, 2)
    a('s_mul_i32 s33, s23, 18432')
    a('s_mul_i32 s34, s18, 6')
    a('s_mul_i32 s35, s20, 3')
    a('s_add_u32 s34, s34, s35')
    a('s_lshl_b32 s34, s34, 9')
    a('s_add_u32 s33, s33, s34')
    a('v_lshrrev_b32 v%d, 1, v%d' % (vT + 1, vG))
    a('v_lshlrev_b32 v%d, 8, v%d' % (vT + 1, vT + 1))
    a('v_lshl_add_u32 v%d, v%d, 4, v%d' % (vT, vN, vT + 1))
    a('v_and_b32 v%d, 1, v%d' % (vT + 1, vG))
    a('v_lshl_add_u32 v%d, v%d, 3, v%d' % (vD, vT + 1, vT))
    a('v_mov_b32 v%d, 0' % vS1)
    a('v_mov_b32 v%d, 0' % vS2)
    for ti in range(3):
        t0 = vT + 2
        a('v_lshlrev_b32 v%d, 16, v%d' % (t0, XR + 2 * ti))
        a('v_and_b32 v%d, 0xffff0000, v%d' % (t0 + 1, XR + 2 * ti))
        a('v_lshlrev_b32 v%d, 16, v%d' % (t0 + 2, XR + 2 * ti + 1))
        a('v_and_b32 v%d, 0xffff0000, v%d' % (t0 + 3, XR + 2 * ti + 1))
        for r in range(4):
            a('v_add_f32 v%d, v%d, v%d' % (t0 + r, t0 + r, ACC + 4 * ti + r))
        a('v_cvt_pk_bf16_f32 v%d, v%d, v%d' % (XR + 2 * ti, t0, t0 + 1))
        a('v_cvt_pk_bf16_f32 v%d, v%d, v%d' % (XR + 2 * ti + 1, t0 + 2, t0 + 3))
        a('buffer_store_dwordx2 v[%d:%d], v%d, s[40:43], s33 offen offset:%d' % (XR + 2 * ti, XR + 2 * ti + 1, vD, ti * 512))
        for r in range(2):
            a('v_dot2_f32_bf16 v%d, v%d, v%d, v%d' % (vS1, XR + 2 * ti + r, ONE, vS1))
            a('v_dot2_f32_bf16 v%d, v%d, v%d, v%d' % (vS2, XR + 2 * ti + r, XR + 2 * ti + r, vS2))
    xlane_sum(a, vS1, vT)
    xlane_sum(a, vS2, vT)
    a('s_lshl_b32 s33, s18, 1')
    a('s_add_u32 s33, s33, s20')
    a('s_lshl_b32 s33, s33, 3')
    a('s_add_u32 s33, s33, 0x%x' % (WS_ST - WS_H))
    a('v_mul_u32_u24 v%d, 96, v%d' % (vT, vROW))
    stamp(a, 3)
    stamp_store(a, 2, 4)
    a('v_cmp_eq_u32 vcc, 0, v%d' % vG)
    a('s_and_saveexec_b64 s[44:45], vcc')
    a('buffer_store_dwordx2 v[%d:%d], v%d, s[40:43], s33 offen' % (vS1, vS1 + 1, vT))
    a.label('K3_END')
    a('s_endpgm')
    t0 = a.finish()
    a = Asm()
    a.label('K3_CT')
    a('v_and_b32 v1, 63, v0')
    a('v_lshrrev_b32 v2, 6, v0')
    a('v_readfirstlane_b32 s16, v2')
    a('s_sub_u32 s17, s2, 192')
    a('s_lshl_b32 s17, s17, 3')
    a('s_add_u32 s17, s17, s16')
    a('s_cmp_ge_u32 s17, 36')
    a('s_cbranch_scc1 K3_ZF')
    a('s_cmp_ge_u32 s17, 18')
    a('s_cselect_b32 s18, 1, 0')
    a('s_mul_i32 s19, s18, 18')
    a('s_sub_u32 s19, s17, s19')
    a('s_lshl_b32 s19, s19, 6')
    a('v_add_u32 v3, s19, v1')
    a('v_lshlrev_b32 v4, 4, v3')
    a('s_mul_i32 s20, s18, %d' % (9 * 18432))
    a('s_waitcnt lgkmcnt(0)')
    srd_off(a, 40, 12, 13, WS_CSP, WS_PEND - WS_CSP)
    for kq in range(9):
        a('buffer_load_dwordx4 v[%d:%d], v4, s[40:43], s20 offen' % (8 + 4 * kq, 11 + 4 * kq))
        a('s_add_u32 s20, s20, 18432')
    a('v_lshrrev_b32 v5, 2, v3')
    a('v_lshlrev_b32 v5, 7, v5')
    a('v_and_b32 v6, 3, v3')
    a('v_lshl_add_u32 v5, v6, 4, v5')
    a('s_lshl_b32 s21, s18, 6')
    a('s_add_u32 s21, s21, 0x%x' % (WS_CT - WS_CSP))
    for kq in range(1, 9):
        for r in range(4):
            a('v_add_f32 v%d, v%d, v%d' % (8 + r, 8 + r, 8 + 4 * kq + r))
    a('buffer_store_dwordx4 v[8:11], v5, s[40:43], s21 offen')
    a('s_endpgm')
    a.label('K3_ZF')
    a('s_cmp_ge_u32 s17, 68')
    a('s_cbranch_scc1 K3_END2')
    a('s_sub_u32 s17, s17, 36')
    a('s_lshl_b32 s17, s17, 10')
    a('v_lshlrev_b32 v4, 4, v1')
    for r in range(4): a('v_mov_b32 v%d, 0' % (8 + r))
    a('s_waitcnt lgkmcnt(0)')
    srd_off(a, 40, 12, 13, WS_FLAG, 256 * 128)
    a('buffer_store_dwordx4 v[8:11], v4, s[40:43], s17 offen')
    a.label('K3_END2')
    a('s_endpgm')
    return kernel_header(name) + t0 + a.finish(), kernel_desc(name, 256 if common.STAMPS else 152, 102), (256, 512, LDS_K3)
```

```python
from asmgen import *
from common import *
NJ1, NJ2 = 1296, 1944
PMOD = 'sc1'
NOLD = False
DMA = True
TIMEW = False
NOST = False
NODS = False
NODOT = False
CS_OFF = WS_CSP - WS_P1
P2_OFF = WS_P2 - WS_P1

class Regs: pass
R = Regs()
R.sSRC, R.sDST, R.sCS = 56, 60, 4
R.sSO, R.sDO, R.sSLO, R.sSHI, R.sDHI, R.sCSO, R.sSCR = 8, 9, 10, 11, 14, 15, 52
R.vPS, R.vPD, R.vPR, R.vCS, R.vONE, R.vDAT, R.vPF = 118, 119, 120, 121, 122, 124, 116
R.vSET = [128, 132]
R.vPW = 123
T = [50, 51, 53, 54, 55, 48, 49]

def decode(a, sWave):
    J, t1, t2, t3, t4, t5, t6 = T
    a('s_lshl_b32 s%d, s2, 3' % J)
    a('s_add_u32 s%d, s%d, %s' % (J, J, sWave))
    a('s_mov_b32 s%d, 32' % t1)
    a('s_cmp_lt_u32 s%d, %d' % (J, NJ2)); a('s_cselect_b32 s%d, 64, s%d' % (t1, t1))
    a('s_cmp_lt_u32 s%d, %d' % (J, NJ1)); a('s_cselect_b32 s%d, 56, s%d' % (t1, t1))
    a('s_cmp_lt_u32 s%d, 648' % J); a('s_cselect_b32 s%d, 48, s%d' % (t1, t1))
    a('s_load_dwordx2 s[%d:%d], s[0:1], s%d' % (R.sSRC, R.sSRC + 1, t1))

def setup(a, vLANE, vt, scratch_sreg_code, ws_lo=12, ws_hi=13):
    J, t1, t2, t3, t4, t5, t6 = T
    scratch_sreg_code(a)
    a('v_lshrrev_b32 v%d, 3, v%d' % (vt, vLANE))
    a('v_and_b32 v%d, 7, v%d' % (vt + 1, vLANE))
    a('v_lshlrev_b32 v%d, 4, v%d' % (vt + 1, vt + 1))
    a('v_lshrrev_b32 v%d, 4, v%d' % (vt + 2, vLANE))
    a('v_and_b32 v%d, 15, v%d' % (vt + 3, vLANE))
    a('v_lshrrev_b32 v%d, 2, v%d' % (R.vPR, vt + 3))
    a('v_lshlrev_b32 v%d, 7, v%d' % (R.vPR, R.vPR))
    a('v_lshl_add_u32 v%d, v%d, 5, v%d' % (R.vPR, vt + 2, R.vPR))
    a('v_and_b32 v%d, 3, v%d' % (R.vCS, vt + 3))
    a('v_lshl_add_u32 v%d, v%d, 3, v%d' % (R.vPR, R.vCS, R.vPR))
    a('v_add_u32 v%d, s%d, v%d' % (R.vPR, R.sSCR, R.vPR))
    a('v_lshlrev_b32 v%d, 4, v%d' % (vt + 3, vt + 3))
    a('v_mov_b32 v%d, 0x3f803f80' % R.vONE)
    a('v_lshlrev_b32 v%d, 4, v%d' % (R.vPW, vLANE))
    a('v_add_u32 v%d, s%d, v%d' % (R.vPW, R.sSCR, R.vPW))
    srd_off(a, R.sDST, ws_lo, ws_hi, WS_P1, WS_PEND - WS_P1)
    srd_off(a, R.sCS, ws_lo, ws_hi, WS_P1, WS_PEND - WS_P1)
    a('s_mov_b32 s%d, 0x00020000' % (R.sSRC + 3))
    a('s_mov_b32 s96, s%d' % R.sSRC)
    a('s_mov_b32 s97, s%d' % (R.sSRC + 1))
    a('s_mov_b32 s98, 0')
    a('s_mov_b32 s99, 0x00020000')
    a('s_cmp_lt_u32 s%d, %d' % (J, NJ1))
    a('s_cbranch_scc0 PK_NOT1')
    a('s_cmp_ge_u32 s%d, 648' % J)
    a('s_cselect_b32 s%d, 1, 0' % t1)
    a('s_mul_i32 s%d, s%d, 648' % (t2, t1))
    a('s_sub_u32 s%d, s%d, s%d' % (t2, J, t2))
    a('s_mul_hi_u32 s%d, s%d, 0x%x' % (t3, t2, (2 ** 32 + 71) // 72))
    a('s_mul_i32 s%d, s%d, 72' % (t4, t3))
    a('s_sub_u32 s%d, s%d, s%d' % (t4, t2, t4))
    a('s_mul_i32 s%d, s%d, %d' % (R.sSO, t3, 64 * 9216))
    a('s_lshl_b32 s%d, s%d, 7' % (t5, t4))
    a('s_add_u32 s%d, s%d, s%d' % (R.sSO, R.sSO, t5))
    a('s_mul_i32 s%d, s%d, %d' % (R.sDO, t4, 4 * 36864))
    a('s_lshl_b32 s%d, s%d, 12' % (t5, t3))
    a('s_add_u32 s%d, s%d, s%d' % (R.sDO, R.sDO, t5))
    a('s_lshl_b32 s%d, s%d, 10' % (t5, t1))
    a('s_add_u32 s%d, s%d, s%d' % (R.sDO, R.sDO, t5))
    a('s_mov_b32 s%d, %d' % (R.sSLO, 8 * 9216))
    a('s_mov_b32 s%d, %d' % (R.sSHI, 8 * 9216))
    a('s_mov_b32 s%d, 1280' % R.sDHI)
    a('s_mul_i32 s%d, s%d, 9' % (t5, t1))
    a('s_add_u32 s%d, s%d, s%d' % (t5, t5, t3))
    a('s_mul_i32 s%d, s%d, %d' % (R.sCSO, t5, 4608 * 4))
    a('s_lshl_b32 s%d, s%d, 8' % (t5, t4))
    a('s_add_u32 s%d, s%d, s%d' % (R.sCSO, R.sCSO, t5))
    a('s_add_u32 s%d, s%d, 0x%x' % (R.sCSO, R.sCSO, CS_OFF))
    a('s_mov_b32 s%d, %d' % (R.sSRC + 2, D * F * 2))
    a('v_mul_u32_u24 v%d, 9216, v%d' % (R.vPS, vt))
    a('v_add_u32 v%d, v%d, v%d' % (R.vPS, R.vPS, vt + 1))
    a('v_mul_u32_u24 v%d, 36864, v%d' % (R.vPD, vt + 2))
    a('v_add_u32 v%d, v%d, v%d' % (R.vPD, R.vPD, vt + 3))
    a('v_mov_b32 v%d, 0x40000000' % R.vPF)
    a('s_branch PK_SET')
    a.label('PK_NOT1')
    a('s_mov_b32 s%d, 0' % (R.sCS + 2))
    a('s_mov_b32 s%d, 0' % R.sCSO)
    a('s_cmp_lt_u32 s%d, %d' % (J, NJ2))
    a('s_cbranch_scc0 PK_NOT2')
    a('s_sub_u32 s%d, s%d, %d' % (t2, J, NJ1))
    a('s_mul_hi_u32 s%d, s%d, 0x%x' % (t3, t2, (2 ** 32 + 8) // 9))
    a('s_mul_i32 s%d, s%d, 9' % (t4, t3))
    a('s_sub_u32 s%d, s%d, s%d' % (t4, t2, t4))
    a('s_mul_i32 s%d, s%d, %d' % (R.sSO, t3, 64 * 1152))
    a('s_lshl_b32 s%d, s%d, 7' % (t5, t4))
    a('s_add_u32 s%d, s%d, s%d' % (R.sSO, R.sSO, t5))
    a('s_mul_hi_u32 s%d, s%d, 0x%x' % (t1, t3, (2 ** 32 + 17) // 18))
    a('s_mul_i32 s%d, s%d, 18' % (t5, t1))
    a('s_sub_u32 s%d, s%d, s%d' % (t5, t3, t5))
    a('s_mul_i32 s%d, s%d, 144' % (t1, t1))
    a('s_lshl_b32 s%d, s%d, 1' % (t5, t5))
    a('s_add_u32 s%d, s%d, s%d' % (t1, t1, t5))
    a('s_mul_i32 s%d, s%d, 9216' % (R.sDO, t1))
    a('s_add_u32 s%d, s%d, 0x%x' % (R.sDO, R.sDO, P2_OFF))
    a('s_mov_b32 s%d, 4608' % R.sSLO)
    a('s_mov_b32 s%d, 23040' % R.sSHI)
    a('s_mov_b32 s%d, 8448' % R.sDHI)
    a('s_mov_b32 s%d, %d' % (R.sSRC + 2, D * F * 2))
    a('v_lshrrev_b32 v%d, 2, v%d' % (R.vPS, vt))
    a('v_and_b32 v%d, 3, v%d' % (R.vPD, vt))
    a('v_lshl_add_u32 v%d, v%d, 4, v%d' % (R.vPS, R.vPS, R.vPD))
    a('v_mul_u32_u24 v%d, 1152, v%d' % (R.vPS, R.vPS))
    a('v_add_u32 v%d, v%d, v%d' % (R.vPS, R.vPS, vt + 1))
    a('s_lshl_b32 s%d, s%d, 2' % (t4, t4))
    a('v_add_u32 v%d, s%d, v%d' % (vt + 2, t4, vt + 2))
    a('v_mul_u32_u24 v%d, 7282, v%d' % (vt, vt + 2))
    a('v_lshrrev_b32 v%d, 16, v%d' % (vt, vt))
    a('v_mul_u32_u24 v%d, 9, v%d' % (vt + 1, vt))
    a('v_sub_u32 v%d, v%d, v%d' % (vt + 2, vt + 2, vt + 1))
    a('v_mul_u32_u24 v%d, %d, v%d' % (R.vPD, 36 * 9216, vt))
    a('v_lshl_add_u32 v%d, v%d, 10, v%d' % (R.vPD, vt + 2, R.vPD))
    a('v_add_u32 v%d, v%d, v%d' % (R.vPD, R.vPD, vt + 3))
    a('v_mov_b32 v%d, 0x40000000' % R.vPF)
    a('s_branch PK_SET')
    a.label('PK_NOT2')
    a('s_sub_u32 s%d, s%d, %d' % (t2, J, NJ2))
    a('s_lshl_b32 s%d, s%d, 13' % (t2, t2))
    a('v_lshlrev_b32 v%d, 7, v%d' % (R.vPF, vLANE))
    a('v_add_u32 v%d, s%d, v%d' % (R.vPF, t2, R.vPF))
    a('s_mov_b32 s98, %d' % (D * D * 2))
    a('s_mov_b32 s%d, 0' % (R.sSRC + 2))
    a('s_mov_b32 s%d, 0' % (R.sDST + 2))
    for r in (R.sSO, R.sDO, R.sSLO, R.sSHI, R.sDHI): a('s_mov_b32 s%d, 0' % r)
    a('v_mov_b32 v%d, 0' % R.vPS)
    a('v_mov_b32 v%d, 0' % R.vPD)
    a.label('PK_SET')
    a('v_mov_b32 v%d, 0' % R.vCS)

def touch(a):
    a('buffer_load_dword v%d, v%d, s[96:99], 0 offen' % (R.vPF + 1, R.vPF))

def load(a, st, hi_code):
    if not NOLD: a('buffer_load_dwordx4 v[%d:%d], v%d, s[%d:%d], s%d offen' % (R.vSET[st], R.vSET[st] + 3, R.vPS, R.sSRC, R.sSRC + 3, R.sSO))
    t = T[1]
    hi_code(a)
    a('s_cselect_b32 s%d, s%d, s%d' % (t, R.sSHI, R.sSLO))
    a('s_add_u32 s%d, s%d, s%d' % (R.sSO, R.sSO, t))

def partA(a, st, hi_code, last_code=None):
    d = R.vDAT
    def ld():
        if last_code: last_code(a)
        load(a, st, hi_code)
    if NODS: return [ld]
    if TIMEW:
        def tw():
            a('s_memtime s[96:97]'); a('s_waitcnt lgkmcnt(0)')
            a('s_waitcnt vmcnt(3)')
            a('s_memtime s[98:99]'); a('s_waitcnt lgkmcnt(0)')
            a('s_sub_u32 s100, s98, s96')
            a('s_add_u32 s%d, s%d, s100' % (72 + 2 * st, 72 + 2 * st))
            a('s_max_u32 s70, s70, s100')
        return [tw, lambda: a('ds_write_b128 v%d, v[%d:%d]' % (R.vPW, R.vSET[st], R.vSET[st] + 3)),
            lambda: a('ds_read_b64_tr_b16 v[%d:%d], v%d' % (d, d + 1, R.vPR)),
            lambda: a('ds_read_b64_tr_b16 v[%d:%d], v%d offset:512' % (d + 2, d + 3, R.vPR)),
            ld]
    return [lambda: a('ds_write_b128 v%d, v[%d:%d]' % (R.vPW, R.vSET[st], R.vSET[st] + 3)),
            lambda: a('ds_read_b64_tr_b16 v[%d:%d], v%d' % (d, d + 1, R.vPR)),
            lambda: a('ds_read_b64_tr_b16 v[%d:%d], v%d offset:512' % (d + 2, d + 3, R.vPR)),
            ld]

def partB(a, hi_code):
    d = R.vDAT
    out = []
    for r in range(0 if NODOT else 4):
        out.append(lambda r=r: a('v_dot2_f32_bf16 v%d, v%d, v%d, v%d' % (R.vCS, d + r, R.vONE, R.vCS)))
    if not NOST: out.append(lambda: a('buffer_store_dwordx4 v[%d:%d], v%d, s[%d:%d], s%d offen %s' % (d, d + 3, R.vPD, R.sDST, R.sDST + 3, R.sDO, PMOD)))
    def adv():
        u = T[2]
        hi_code(a)
        a('s_cselect_b32 s%d, s%d, 256' % (u, R.sDHI))
        a('s_add_u32 s%d, s%d, s%d' % (R.sDO, R.sDO, u))
    out.append(adv)
    return out

def finish(a, vLANE, vt):
    a('v_lshlrev_b32 v%d, 2, v%d' % (vt, vLANE))
    a('buffer_store_dword v%d, v%d, s[%d:%d], s%d offen' % (R.vCS, vt, R.sCS, R.sCS + 3, R.sCSO))

def dma_issue(a, hi_code):
    a('s_mov_b32 m0, s%d' % R.sSCR)
    t = T[1]
    hi_code(a)
    a('buffer_load_dwordx4 v%d, s[%d:%d], s%d offen lds' % (R.vPS, R.sSRC, R.sSRC + 3, R.sSO), tag='pk')
    a('s_cselect_b32 s%d, s%d, s%d' % (t, R.sSHI, R.sSLO))
    a('s_add_u32 s%d, s%d, s%d' % (R.sSO, R.sSO, t))

def dmaA(a):
    d = R.vDAT
    return [lambda: a.wait_vm('pk'),
            lambda: a('ds_read_b64_tr_b16 v[%d:%d], v%d' % (d, d + 1, R.vPR)),
            lambda: a('ds_read_b64_tr_b16 v[%d:%d], v%d offset:512' % (d + 2, d + 3, R.vPR))]

def dmaB(a, src_hi, dst_hi, last_code=None):
    d = R.vDAT
    out = []
    for r in range(4):
        out.append(lambda r=r: a('v_dot2_f32_bf16 v%d, v%d, v%d, v%d' % (R.vCS, d + r, R.vONE, R.vCS)))
    def nxt():
        if last_code: last_code(a)
        dma_issue(a, src_hi)
    out.append(nxt)
    out.append(lambda: a('buffer_store_dwordx4 v[%d:%d], v%d, s[%d:%d], s%d offen %s' % (d, d + 3, R.vPD, R.sDST, R.sDST + 3, R.sDO, PMOD)))
    def adv():
        u = T[2]
        dst_hi(a)
        a('s_cselect_b32 s%d, s%d, 256' % (u, R.sDHI))
        a('s_add_u32 s%d, s%d, s%d' % (R.sDO, R.sDO, u))
    out.append(adv)
    return out
```

```python
from asmgen import *
from common import *
import common

W_BYTES = 92160
XC_LDS = W_BYTES
CS_LDS = XC_LDS + 20480
ST_LDS = CS_LDS + 1024
LDS_K1 = ST_LDS + 1024
DIAG = False
ISSUE_BAR = True
X = 32
ONES = 68
FR = 72
NB = 8
ACC = 104
CS = 124
SUM = 132
vLANE, vG, vN = 1, 2, 3
vXOFF = 4
vA = 6
vSTR = 8
vT0, vT1, vT2, vT3, vT4, vT5 = 10, 11, 12, 13, 14, 15
vMEAN, vRSTD, vSC = 16, 17, 18
vSQ = 20
vRB, vRBC = 24, 25
vSOFF = 26
vROW = 27
CSR = 136
PX = 140
vMR = 144
vRR = 148
vXA = 28
QORDER = [0, 6, 1, 7, 2, 8, 3, 9, 4, 10, 5, 11]

def main_group(a, grp, kv):
    steps = [(k, t) for k in range(3 * grp, 3 * grp + 3) for t in (0, 1, 2, 3, 4, 5)]
    def reads(idx):
        k, t = steps[idx]
        fr = FR + 4 * (idx % NB)
        base = vRBC if t == 5 else vRB
        off = k * 5120 + (0 if t == 5 else t * 32)
        a('ds_read_b64_tr_b16 v[%d:%d], v%d offset:%d' % (fr, fr + 1, base, off))
        a('ds_read_b64_tr_b16 v[%d:%d], v%d offset:%d' % (fr + 2, fr + 3, base, off + 1280))
    PD = NB - 1
    for i in range(PD): reads(i)
    for idx, (k, t) in enumerate(steps):
        fr = FR + 4 * (idx % NB)
        c0 = '0' if k == 0 else None
        if t == 5: a(mfma16(CS, fr, ONES, c0))
        elif kv and t >= 3: a(mfma16(ACC + 4 * t, X + 4 * k, fr, c0))
        else: a(mfma16(ACC + 4 * t, fr, X + 4 * k, c0))
        if t == 4: a(mfma16(CS + 4, fr, ONES, c0))
        if idx + PD < len(steps): reads(idx + PD)

def finish_T(a, t, scale_reg):
    A = ACC + 4 * t
    for r in range(4): a('v_add_f32 v%d, v%d, v%d' % (A + r, A + r, PX + r))
    for r in range(4): a('v_fma_f32 v%d, -v%d, v%d, v%d' % (vT2 + r, vMEAN, CSR + r, A + r))
    for r in range(4): a('v_mul_f32 v%d, v%d, v%d' % (vT2 + r, vT2 + r, scale_reg))
    a('v_cvt_pk_bf16_f32 v%d, v%d, v%d' % (vT0, vT2, vT2 + 1))
    a('v_cvt_pk_bf16_f32 v%d, v%d, v%d' % (vT0 + 1, vT2 + 2, vT2 + 3))

def fetch_T(a, t, vCSA):
    a('ds_read_b128 v[%d:%d], v%d offset:%d' % (PX, PX + 3, vXA, t * 1024))
    a('ds_read_b128 v[%d:%d], v%d offset:%d' % (CSR, CSR + 3, vCSA, t * 64))
    a('ds_read_b128 v[%d:%d], v%d offset:%d' % (vT2, vT2 + 3, vCSA, t * 64 + 320))
    for r in range(4): a('v_add_f32 v%d, v%d, v%d' % (CSR + r, CSR + r, vT2 + r))

def gen_k1(name='k1_kernel'):
    a = Asm()
    stamp(a, 0); stamp_rt(a, 9)
    a('s_load_dwordx4 s[4:7], s[0:1], 0')
    a('s_load_dwordx4 s[8:11], s[0:1], 16')
    a('s_load_dwordx2 s[12:13], s[0:1], 88')
    a('s_cmp_ge_u32 s2, 256')
    a('s_cbranch_scc1 K1_END')
    a('v_and_b32 v%d, 63, v0' % vLANE)
    a('v_lshrrev_b32 v%d, 6, v0' % vT0)
    a('v_readfirstlane_b32 s16, v%d' % vT0)
    a('s_and_b32 s19, s16, 3')
    a('s_lshr_b32 s20, s16, 2')
    a('s_and_b32 s21, s2, 7')
    a('s_lshr_b32 s22, s2, 3')
    a('s_and_b32 s22, s22, 3')
    a('s_lshl_b32 s22, s22, 3')
    a('s_add_u32 s17, s21, s22')
    a('s_lshr_b32 s18, s2, 5')
    a('v_and_b32 v%d, 15, v%d' % (vN, vLANE))
    a('v_lshrrev_b32 v%d, 4, v%d' % (vG, vLANE))
    a('s_lshl_b32 s23, s17, 6')
    a('s_lshl_b32 s33, s19, 4')
    a('s_add_u32 s23, s23, s33')
    a('v_add_u32 v%d, s23, v%d' % (vROW, vN))
    a('v_mul_u32_u24 v%d, 1152, v%d' % (vXOFF, vROW))
    a('v_lshl_add_u32 v%d, v%d, 4, v%d' % (vXOFF, vG, vXOFF))
    a('s_mul_i32 s35, s20, 576')
    a('v_mul_u32_u24 v%d, 6554, v%d' % (vT0, vLANE))
    a('v_lshrrev_b32 v%d, 16, v%d' % (vT0, vT0))
    a('v_mul_u32_u24 v%d, 10, v%d' % (vT1, vT0))
    a('v_sub_u32 v%d, v%d, v%d' % (vT1, vLANE, vT1))
    a('s_mul_i32 s33, s16, 6')
    a('v_add_u32 v%d, s33, v%d' % (vT0, vT0))
    a('v_and_b32 v%d, 0x33, v%d' % (vT2, vT0))
    a('v_and_b32 v%d, 4, v%d' % (vT3, vT0))
    a('v_lshl_or_b32 v%d, v%d, 1, v%d' % (vT2, vT3, vT2))
    a('v_and_b32 v%d, 8, v%d' % (vT3, vT0))
    a('v_lshrrev_b32 v%d, 1, v%d' % (vT3, vT3))
    a('v_or_b32 v%d, v%d, v%d' % (vT2, vT2, vT3))
    a('s_waitcnt lgkmcnt(0)')
    if DIAG: stamp(a, 5)
    srd(a, 24, 4, 5, S * D * 2)
    srd(a, 28, 12, 13, WS_O)
    for k in range(3):
        a('buffer_load_dwordx4 v[%d:%d], v%d, s[24:27], s35 offen offset:%d' % (X + 4 * k, X + 4 * k + 3, vXOFF, 64 * k))
    if DIAG:
        a('s_waitcnt vmcnt(2)')
        stamp(a, 6)
    a('s_mul_i32 s33, s18, 160')
    a('v_mul_u32_u24 v%d, 1152, v%d' % (vT3, vT2))
    a('v_lshl_add_u32 v%d, v%d, 4, v%d' % (vT3, vT1, vT3))
    a('v_add_u32 v%d, s33, v%d' % (vT3, vT3))
    a('v_mov_b32 v%d, s6' % vA)
    a('v_mov_b32 v%d, s7' % (vA + 1))
    a('v_mov_b32 v%d, %d' % (vSTR, 48 * 1152))
    a('s_cmp_lg_u32 s18, 7')
    a('s_cbranch_scc1 K1_NOKV')
    a.opt_begin()
    a('v_lshrrev_b32 v%d, 1, v%d' % (vT4, vT1))
    a('v_and_b32 v%d, 1, v%d' % (vT5, vT1))
    a('v_lshlrev_b32 v%d, 4, v%d' % (vT5, vT5))
    a('v_and_b32 v%d, 1, v%d' % (vT0, vT4))
    a('v_cmp_eq_u32 vcc, 1, v%d' % vT0)
    a('v_cndmask_b32 v%d, 20, v%d, vcc' % (vT5, vT5))
    a('v_mul_u32_u24 v%d, 36, v%d' % (vT0, vT2))
    a('v_add_u32 v%d, v%d, v%d' % (vT5, vT5, vT0))
    a('v_cmp_le_u32 vcc, 1, v%d' % vT4)
    a('v_cndmask_b32 v%d, v%d, v%d, vcc' % (vT3, vT3, vT5))
    a('v_mov_b32 v%d, %d' % (vT0, 48 * 36))
    a('v_cndmask_b32 v%d, v%d, v%d, vcc' % (vSTR, vSTR, vT0))
    a('v_mov_b32 v%d, s8' % vT0)
    a('v_cndmask_b32 v%d, v%d, v%d, vcc' % (vA, vA, vT0))
    a('v_mov_b32 v%d, s9' % vT0)
    a('v_cndmask_b32 v%d, v%d, v%d, vcc' % (vA + 1, vA + 1, vT0))
    a('v_cmp_le_u32 vcc, 3, v%d' % vT4)
    a('v_mov_b32 v%d, s10' % vT0)
    a('v_cndmask_b32 v%d, v%d, v%d, vcc' % (vA, vA, vT0))
    a('v_mov_b32 v%d, s11' % vT0)
    a('v_cndmask_b32 v%d, v%d, v%d, vcc' % (vA + 1, vA + 1, vT0))
    a.opt_end()
    a.label('K1_NOKV')
    a('v_add_co_u32 v%d, vcc, v%d, v%d' % (vA, vA, vT3))
    a('v_addc_co_u32 v%d, vcc, 0, v%d, vcc' % (vA + 1, vA + 1))
    vB = 30
    a('v_mul_u32_u24 v%d, 6, v%d' % (vT0, vSTR))
    a('v_add_co_u32 v%d, vcc, v%d, v%d' % (vB, vA, vT0))
    a('v_addc_co_u32 v%d, vcc, 0, v%d, vcc' % (vB + 1, vA + 1))
    a('s_mul_i32 s34, s16, 960')
    def wdma(a, q):
        v = vA if q < 6 else vB
        a('s_add_u32 m0, s34, %d' % (q * 8 * 960))
        a('s_mov_b32 exec_hi, 0x0fffffff')
        a('global_load_lds_dwordx4 v[%d:%d], off' % (v, v + 1), tag='w%d' % (QORDER.index(q) // 4))
        a('s_mov_b32 exec_hi, -1')
        a('v_add_co_u32 v%d, vcc, v%d, v%d' % (v, v, vSTR))
        a('v_addc_co_u32 v%d, vcc, 0, v%d, vcc' % (v + 1, v + 1))
    def issue(a, gi):
        if gi > 0:
            for k in range(3 * gi, 3 * gi + 3):
                a('buffer_load_dwordx4 v[%d:%d], v%d, s[24:27], s35 offen offset:%d' % (X + 4 * k, X + 4 * k + 3, vXOFF, 64 * k))
        for q in QORDER[4 * gi:4 * gi + 4]: wdma(a, q)
    issue(a, 0)
    a('s_barrier')
    for r in range(4):
        a('v_mov_b32 v%d, 0x3f803f80' % (ONES + r))
    a('v_lshrrev_b32 v%d, 1, v%d' % (vT0, vG))
    a('v_lshlrev_b32 v%d, 4, v%d' % (vT0, vT0))
    a('v_and_b32 v%d, 1, v%d' % (vT1, vG))
    a('v_lshl_add_u32 v%d, v%d, 2, v%d' % (vT0, vT1, vT0))
    a('v_lshrrev_b32 v%d, 2, v%d' % (vT1, vN))
    a('v_add_u32 v%d, v%d, v%d' % (vT0, vT0, vT1))
    a('v_mul_u32_u24 v%d, 160, v%d' % (vT0, vT0))
    a('v_and_b32 v%d, 3, v%d' % (vT1, vN))
    a('v_lshl_add_u32 v%d, v%d, 3, v%d' % (vRB, vT1, vT0))
    a('s_mul_i32 s33, s20, %d' % (9 * 5120))
    a('v_add_u32 v%d, s33, v%d' % (vRB, vRB))
    a('s_lshl_b32 s33, s19, 5')
    a('v_add_u32 v%d, s33, v%d' % (vRBC, vRB))
    a('s_mul_i32 s33, s19, 5120')
    a('s_add_u32 s33, s33, %d' % XC_LDS)
    a('v_lshlrev_b32 v%d, 4, v%d' % (vXA, vLANE))
    a('v_add_u32 v%d, s33, v%d' % (vXA, vXA))
    a('s_mul_i32 s33, s18, 160')
    a('v_mul_u32_u24 v%d, 1152, v%d' % (vSOFF, vROW))
    a('v_lshl_add_u32 v%d, v%d, 3, v%d' % (vSOFF, vG, vSOFF))
    a('v_add_u32 v%d, s33, v%d' % (vSOFF, vSOFF))
    for r in range(4):
        a('v_mov_b32 v%d, 0' % (vSQ + r))
    issue(a, 1)
    stamp(a, 1)
    a('s_cmp_eq_u32 s18, 7')
    a('s_cbranch_scc1 K1_KV')
    t0 = a.finish()

    def body(kv):
        a = Asm()
        for gi in range(3):
            a('s_waitcnt vmcnt(%d)' % (7 if gi < 2 else 0))
            a('s_barrier')
            if gi == 0: stamp(a, 2)
            if gi == 0: issue(a, 2)
            for k in range(3 * gi, 3 * gi + 3):
                a(mfma16(SUM, ONES, X + 4 * k, '0' if k == 0 else None))
                for r in range(4):
                    a('v_dot2_f32_bf16 v%d, v%d, v%d, v%d' % (vSQ + r, X + 4 * k + r, X + 4 * k + r, vSQ + r))
            main_group(a, gi, kv)
        stamp(a, 3)
        a('v_add_f32 v%d, v%d, v%d' % (vSQ, vSQ, vSQ + 1))
        a('v_add_f32 v%d, v%d, v%d' % (vSQ + 2, vSQ + 2, vSQ + 3))
        a('v_add_f32 v%d, v%d, v%d' % (vSQ, vSQ, vSQ + 2))
        xlane_sum(a, vSQ, vT0)
        a('v_mov_b32 v%d, v%d' % (vT0, SUM))
        a('v_mov_b32 v%d, v%d' % (vT1, vSQ))
        a('s_lshl_b32 s33, s20, 9')
        a('s_lshl_b32 s36, s19, 7')
        a('s_add_u32 s33, s33, s36')
        a('s_add_u32 s33, s33, %d' % ST_LDS)
        a('v_lshlrev_b32 v%d, 3, v%d' % (vT2, vN))
        a('v_add_u32 v%d, s33, v%d' % (vT2, vT2))
        a('s_mov_b64 exec, 0xffff')
        a('ds_write_b64 v%d, v[%d:%d]' % (vT2, vT0, vT1))
        a('s_mov_b32 exec_lo, 0x00010001')
        a('s_mov_b32 exec_hi, 0x00010001')
        a('s_mul_i32 s33, s20, 320')
        a('s_add_u32 s33, s33, %d' % CS_LDS)
        a('v_lshlrev_b32 v%d, 4, v%d' % (vT3, vG))
        a('v_add_u32 v%d, s33, v%d' % (vT3, vT3))
        a('s_lshl_b32 s36, s19, 6')
        a('v_add_u32 v%d, s36, v%d' % (vT4, vT3))
        a('ds_write_b128 v%d, v[%d:%d]' % (vT4, CS, CS + 3))
        a('ds_write_b128 v%d, v[%d:%d] offset:256' % (vT3, CS + 4, CS + 7))
        a('s_mov_b64 exec, -1')
        a('s_cmp_lg_u32 s20, 0')
        a('s_cbranch_scc1 K1_X1%d' % kv)
        ta = a.finish()
        b = Asm()
        for t in (3, 4): b('ds_write_b128 v%d, v[%d:%d] offset:%d' % (vXA, ACC + 4 * t, ACC + 4 * t + 3, t * 1024))
        b('s_waitcnt lgkmcnt(0)')
        b('s_barrier')
        stats(b)
        vCSA = 29
        b('v_lshlrev_b32 v%d, 4, v%d' % (vCSA, vG))
        b('v_add_u32 v%d, %d, v%d' % (vCSA, CS_LDS, vCSA))
        if not kv:
            for t in range(3):
                fetch_T(b, t, vCSA)
                finish_T(b, t, vSC)
                b('buffer_store_dwordx2 v[%d:%d], v%d, s[28:31], 0 offen offset:%d' % (vT0, vT0 + 1, vSOFF, t * 32))
                b('s_nop 0')
        else:
            fetch_T(b, 0, vCSA)
            finish_T(b, 0, vSC)
            b('buffer_store_dwordx2 v[%d:%d], v%d, s[28:31], 0 offen' % (vT0, vT0 + 1, vSOFF))
            kb = 152
            b('v_lshrrev_b32 v%d, 9, v%d' % (kb, vROW))
            b('v_mul_u32_u24 v%d, %d, v%d' % (kb, KV_CHUNK, kb))
            b('v_bfe_u32 v%d, v%d, 5, 4' % (kb + 1, vROW))
            b('v_mul_u32_u24 v%d, 1152, v%d' % (kb + 1, kb + 1))
            b('v_add_u32 v%d, v%d, v%d' % (kb, kb, kb + 1))
            b('v_add_u32 v%d, 0x%x, v%d' % (kb, WS_KV, kb))
            b('v_and_b32 v%d, 31, v%d' % (kb + 1, vROW))
            b('v_lshrrev_b32 v%d, 1, v%d' % (kb + 2, vG))
            b('v_lshl_add_u32 v%d, v%d, 5, v%d' % (kb + 2, kb + 2, kb + 1))
            b('v_lshl_add_u32 v%d, v%d, 4, v%d' % (kb + 2, kb + 2, kb))
            b('v_and_b32 v%d, 1, v%d' % (kb + 3, vG))
            b('v_lshl_add_u32 v%d, v%d, 3, v%d' % (kb + 2, kb + 3, kb + 2))
            fetch_T(b, 1, vCSA)
            finish_T(b, 1, vRSTD)
            b('buffer_store_dwordx2 v[%d:%d], v%d, s[28:31], 0 offen' % (vT0, vT0 + 1, kb + 2))
            b('s_nop 0')
            fetch_T(b, 2, vCSA)
            finish_T(b, 2, vRSTD)
            b('v_lshl_add_u32 v%d, v%d, 2, v%d' % (kb + 2, kb + 1, kb))
            b('v_cmp_eq_u32 vcc, 1, v%d' % vG)
            b('s_and_saveexec_b64 s[36:37], vcc')
            b('buffer_store_dword v%d, v%d, s[28:31], 0 offen offset:1024' % (vT0 + 1, kb + 2))
            b('s_mov_b64 exec, -1')
        stamp(b, 4)
        stamp_store(b, 0, 7)
        b('s_endpgm')
        tb = b.finish()
        c = Asm()
        c.label('K1_X1%d' % kv)
        for t in (0, 1, 2): c('ds_write_b128 v%d, v[%d:%d] offset:%d' % (vXA, ACC + 4 * t, ACC + 4 * t + 3, t * 1024))
        c('s_waitcnt lgkmcnt(0)')
        c('s_barrier')
        stats(c)
        if not kv:
            vCSA = 29
            c('v_lshlrev_b32 v%d, 4, v%d' % (vCSA, vG))
            c('v_add_u32 v%d, %d, v%d' % (vCSA, CS_LDS, vCSA))
            for t in (3, 4):
                fetch_T(c, t, vCSA)
                finish_T(c, t, vSC)
                c('buffer_store_dwordx2 v[%d:%d], v%d, s[28:31], 0 offen offset:%d' % (vT0, vT0 + 1, vSOFF, t * 32))
                c('s_nop 0')
        else:
            vS = 152
            c('s_lshl_b32 s33, s19, 7')
            c('s_add_u32 s33, s33, %d' % ST_LDS)
            c('v_lshlrev_b32 v%d, 5, v%d' % (vS, vG))
            c('v_add_u32 v%d, s33, v%d' % (vS, vS))
            R0, R1 = 156, 164
            for h_, R in ((0, R0), (1, R1)):
                c('ds_read_b128 v[%d:%d], v%d offset:%d' % (R, R + 3, vS, h_ * 512))
                c('ds_read_b128 v[%d:%d], v%d offset:%d' % (R + 4, R + 7, vS, h_ * 512 + 16))
            for r in range(4):
                c('v_add_f32 v%d, v%d, v%d' % (vMR + r, R0 + 2 * r, R1 + 2 * r))
                c('v_add_f32 v%d, v%d, v%d' % (vRR + r, R0 + 2 * r + 1, R1 + 2 * r + 1))
                c('v_mul_f32 v%d, %s, v%d' % (vMR + r, f32(1.0 / 576), vMR + r))
                c('v_mul_f32 v%d, %s, v%d' % (vRR + r, f32(1.0 / 576), vRR + r))
                c('v_fma_f32 v%d, -v%d, v%d, v%d' % (vRR + r, vMR + r, vMR + r, vRR + r))
                c('v_max_f32 v%d, 0, v%d' % (vRR + r, vRR + r))
                c('v_add_f32 v%d, %s, v%d' % (vRR + r, f32(EPS), vRR + r))
                c('v_rsq_f32 v%d, v%d' % (vRR + r, vRR + r))
            c('s_lshr_b32 s33, s23, 4')
            c('s_lshr_b32 s34, s33, 5')
            c('s_mul_i32 s34, s34, %d' % KV_CHUNK)
            c('s_and_b32 s33, s33, 31')
            c('s_mul_i32 s33, s33, 608')
            c('s_add_u32 s33, s33, s34')
            c('s_add_u32 s33, s33, 0x%x' % (WS_KV + KV_VOFF))
            vb = 172
            c('v_and_b32 v%d, 1, v%d' % (vb, vG))
            c('v_mul_u32_u24 v%d, 19, v%d' % (vb, vb))
            c('v_add_u32 v%d, v%d, v%d' % (vb, vb, vN))
            c('v_lshlrev_b32 v%d, 4, v%d' % (vb, vb))
            c('v_lshrrev_b32 v%d, 1, v%d' % (vb + 1, vG))
            c('v_lshl_add_u32 v%d, v%d, 3, v%d' % (vb, vb + 1, vb))
            c('v_add_u32 v%d, s33, v%d' % (vb, vb))
            vCC = 29
            c('v_lshlrev_b32 v%d, 2, v%d' % (vCC, vN))
            c('v_add_u32 v%d, %d, v%d' % (vCC, CS_LDS, vCC))
            def epi_V(t):
                A = ACC + 4 * t
                c('ds_read_b128 v[%d:%d], v%d offset:%d' % (PX, PX + 3, vXA, t * 1024))
                c('ds_read_b32 v%d, v%d offset:%d' % (CSR, vCC, t * 64))
                c('ds_read_b32 v%d, v%d offset:%d' % (CSR + 1, vCC, t * 64 + 320))
                c('v_add_f32 v%d, v%d, v%d' % (CSR, CSR, CSR + 1))
                for r in range(4): c('v_add_f32 v%d, v%d, v%d' % (A + r, A + r, PX + r))
                for r in range(4): c('v_fma_f32 v%d, -v%d, v%d, v%d' % (vT2 + r, vMR + r, CSR, A + r))
                for r in range(4): c('v_mul_f32 v%d, v%d, v%d' % (vT2 + r, vT2 + r, vRR + r))
                c('v_cvt_pk_bf16_f32 v%d, v%d, v%d' % (vT0, vT2, vT2 + 1))
                c('v_cvt_pk_bf16_f32 v%d, v%d, v%d' % (vT0 + 1, vT2 + 2, vT2 + 3))
            tc_fix = True
            epi_V(3)
            c('buffer_store_dwordx2 v[%d:%d], v%d, s[28:31], 0 offen' % (vT0, vT0 + 1, vb))
            c('s_nop 0')
            epi_V(4)
            c('v_cmp_eq_u32 vcc, 8, v%d' % vN)
            c('v_mov_b32 v%d, 0x3f803f80' % vT2)
            c('v_cndmask_b32 v%d, v%d, v%d, vcc' % (vT0, vT0, vT2))
            c('v_cndmask_b32 v%d, v%d, v%d, vcc' % (vT0 + 1, vT0 + 1, vT2))
            c('v_add_u32 v%d, 160, v%d' % (vb, vb))
            c('v_add_u32 v%d, -6, v%d' % (vT2, vN))
            c('v_cmp_gt_u32 vcc, 3, v%d' % vT2)
            c('s_and_saveexec_b64 s[36:37], vcc')
            c('buffer_store_dwordx2 v[%d:%d], v%d, s[28:31], 0 offen' % (vT0, vT0 + 1, vb))
        c('s_mov_b64 exec, -1')
        stamp(c, 4)
        stamp_store(c, 0, 5)
        c('s_endpgm')
        tc = c.finish()
        return ta + tb + tc

    def stats(b):
        b('s_lshl_b32 s33, s19, 7')
        b('s_add_u32 s33, s33, %d' % ST_LDS)
        b('v_lshlrev_b32 v%d, 3, v%d' % (vT2, vN))
        b('v_add_u32 v%d, s33, v%d' % (vT2, vT2))
        b('ds_read_b64 v[%d:%d], v%d' % (vSQ, vSQ + 1, vT2))
        b('ds_read_b64 v[%d:%d], v%d offset:512' % (vSQ + 2, vSQ + 3, vT2))
        b('v_add_f32 v%d, v%d, v%d' % (vMEAN, vSQ, vSQ + 2))
        b('v_add_f32 v%d, v%d, v%d' % (vSQ, vSQ + 1, vSQ + 3))
        b('v_mul_f32 v%d, %s, v%d' % (vMEAN, f32(1.0 / 576), vMEAN))
        b('v_mul_f32 v%d, %s, v%d' % (vSQ, f32(1.0 / 576), vSQ))
        b('v_fma_f32 v%d, -v%d, v%d, v%d' % (vSQ, vMEAN, vMEAN, vSQ))
        b('v_max_f32 v%d, 0, v%d' % (vSQ, vSQ))
        b('v_add_f32 v%d, %s, v%d' % (vSQ, f32(EPS), vSQ))
        b('v_rsq_f32 v%d, v%d' % (vRSTD, vSQ))
        b('v_mul_f32 v%d, %s, v%d' % (vSC, f32(QSCALE), vRSTD))

    tq = body(0)
    tkv = 'K1_KV:\n' + body(1)
    end = 'K1_END:\n  s_endpgm\n'
    return kernel_header(name) + t0 + tq + tkv + end, kernel_desc(name, 256 if common.STAMPS else 176, 102), (256, 512, LDS_K1)
```

```python
import re

REG_RE = re.compile(r'^([vsa])(\d+)$|^([vsa])\[(\d+):(\d+)\]$')

def parse_reg(tok):
    tok = tok.strip()
    neg = tok.startswith('-')
    if neg: tok = tok[1:]
    m = re.match(r'^abs\((.*)\)$', tok)
    if m: tok = m.group(1)
    if tok.startswith('|') and tok.endswith('|'): tok = tok[1:-1]
    m = REG_RE.match(tok)
    if m:
        if m.group(1):
            return {(m.group(1), int(m.group(2)))}
        return {(m.group(3), i) for i in range(int(m.group(4)), int(m.group(5)) + 1)}
    if tok == 'vcc': return {('s', 'vcc_lo'), ('s', 'vcc_hi')}
    if tok in ('vcc_lo', 'vcc_hi'): return {('s', tok)}
    if tok == 'exec': return {('s', 'exec_lo'), ('s', 'exec_hi')}
    if tok in ('exec_lo', 'exec_hi'): return {('s', tok)}
    if tok == 'm0': return {('s', 'm0')}
    if tok == 'scc': return {('s', 'scc')}
    return set()

def split_ops(s):
    ops = []; depth = 0; cur = ''
    for ch in s:
        if ch in '[(': depth += 1
        if ch in '])': depth -= 1
        if ch == ',' and depth == 0:
            ops.append(cur.strip()); cur = ''
        else:
            cur += ch
    if cur.strip(): ops.append(cur.strip())
    return ops

TRANS = ('v_exp_f32', 'v_log_f32', 'v_rcp_f32', 'v_rsq_f32', 'v_sqrt_f32', 'v_sin_f32', 'v_cos_f32', 'v_exp_f16', 'v_rcp_iflag_f32')
VCC = {('s', 'vcc_lo'), ('s', 'vcc_hi')}
EXEC = {('s', 'exec_lo'), ('s', 'exec_hi')}
M0 = {('s', 'm0')}

class Ins:
    __slots__ = ('text', 'mn', 'kind', 'defs', 'uses', 'tag', 'opt', 'passes', 'srcC', 'srcAB', 'is_lds_dma', 'wide_store_data',
                 'nops', 'pre', 'sgpr_uses_vmem', 'lanesel', 'mask_uses', 'smem', 'meta')
    def __init__(self, text, tag=None):
        self.text = text; self.tag = tag; self.opt = None
        self.defs = set(); self.uses = set(); self.passes = 0; self.srcC = set(); self.srcAB = set()
        self.is_lds_dma = False; self.wide_store_data = set(); self.pre = []
        self.sgpr_uses_vmem = set(); self.lanesel = set(); self.mask_uses = set(); self.smem = False
        self.meta = None
        self.parse()

    def parse(self):
        t = self.text.split(';')[0].strip()
        if not t or t.endswith(':') or t.startswith('.'):
            self.mn = ''; self.kind = 'none'; return
        parts = t.split(None, 1)
        mn = parts[0]; rest = parts[1] if len(parts) > 1 else ''
        self.mn = mn
        ops = split_ops(rest)
        mods = []
        if ops:
            last = ops[-1].split()
            if len(last) > 1:
                ops[-1] = last[0]; mods = last[1:]
        R = [parse_reg(o) for o in ops]
        allmods = ' '.join(mods)
        base = re.sub(r'_(e32|e64|sdwa|dpp)$', '', mn)
        if mn.startswith('v_mfma'):
            self.kind = 'mfma'
            self.defs = set(R[0]); self.srcAB = R[1] | R[2]; self.srcC = set(R[3]) if len(R) > 3 else set()
            self.uses = self.srcAB | self.srcC | EXEC
            if '32x32x16' in mn or '32x32x8' in mn: self.passes = 8
            elif '16x16x32' in mn or '16x16x16' in mn: self.passes = 4
            else: raise ValueError('unknown mfma ' + mn)
        elif mn.startswith('v_'):
            self.kind = 'valu'
            if base in TRANS: self.kind = 'trans'
            if base.startswith('v_dot'): self.kind = 'dot'
            if base.startswith('v_cmp'):
                self.defs = set(R[0]); self.uses = set().union(*R[1:]) | EXEC
                if base.startswith('v_cmpx'): self.defs |= EXEC
            elif base in ('v_readfirstlane_b32',):
                self.defs = set(R[0]); self.uses = R[1] | EXEC; self.kind = 'readlane'
            elif base == 'v_readlane_b32':
                self.defs = set(R[0]); self.uses = R[1] | R[2]; self.lanesel = set(R[2]); self.kind = 'readlane'
            elif base == 'v_writelane_b32':
                self.defs = set(R[0]); self.uses = R[0] | R[1] | R[2]; self.lanesel = set(R[2])
            elif base.startswith('v_permlane16_swap') or base.startswith('v_permlane32_swap') or base == 'v_swap_b32':
                self.defs = R[0] | R[1]; self.uses = R[0] | R[1] | EXEC
                if base.startswith('v_permlane'): self.kind = 'permlane'
            elif base in ('v_add_co_u32', 'v_sub_co_u32', 'v_subrev_co_u32'):
                self.defs = R[0] | R[1]; self.uses = set().union(*R[2:]) | EXEC
            elif base in ('v_addc_co_u32', 'v_subb_co_u32', 'v_subbrev_co_u32'):
                self.defs = R[0] | R[1]; self.uses = set().union(*R[2:]) | EXEC
                self.mask_uses = set(R[4])
            elif base == 'v_cndmask_b32':
                self.defs = set(R[0]); self.uses = set().union(*R[1:]) | EXEC
                self.mask_uses = set(R[3]) if len(R) > 3 else set(VCC)
                if len(R) <= 3: self.uses |= VCC
            else:
                self.defs = set(R[0]); self.uses = set().union(*R[1:]) | EXEC if len(R) > 1 else set(EXEC)
                if base in ('v_fmac_f32', 'v_dot2c_f32_bf16', 'v_dot2c_f32_f16', 'v_fmamk_f32_acc') or 'UNUSED_PRESERVE' in allmods:
                    self.uses |= R[0]
            if 'dpp' in mn or 'row_' in allmods or 'quad_perm' in allmods: self.meta = 'dpp'
        elif mn.startswith('ds_'):
            self.kind = 'ds'
            if mn.startswith('ds_read') or mn.startswith('ds_bpermute') or mn.startswith('ds_permute') or mn.startswith('ds_swizzle'):
                self.defs = set(R[0]); self.uses = set().union(*R[1:]) | EXEC
            elif mn.startswith('ds_write'):
                self.uses = set().union(*R) | EXEC
            elif mn.startswith('ds_add_rtn') or '_rtn_' in mn:
                self.defs = set(R[0]); self.uses = set().union(*R[1:]) | EXEC
            else:
                self.uses = set().union(*R) | EXEC
        elif mn.startswith('buffer_') or mn.startswith('global_'):
            self.kind = 'vmem'
            lds = (' lds' in (' ' + allmods)) or mn.startswith('global_load_lds')
            if mn in ('buffer_wbl2', 'buffer_inv'):
                pass
            elif lds:
                self.is_lds_dma = True
                self.uses = set().union(*R) | EXEC | M0
            elif '_load' in mn:
                self.defs = set(R[0]); self.uses = set().union(*R[1:]) | EXEC
            elif '_store' in mn:
                self.uses = set().union(*R) | EXEC
                data = R[0] if mn.startswith('buffer_') else R[1]
                if 'x4' in mn or 'x3' in mn: self.wide_store_data = set(data)
            elif '_atomic' in mn:
                self.uses = set().union(*R) | EXEC
                if 'sc0' in allmods:
                    self.defs = set(R[0])
                    if mn.startswith('global_'): self.uses = set().union(*R[1:]) | EXEC
            self.sgpr_uses_vmem = {r for r in self.uses if r[0] == 's' and r not in EXEC and r not in M0}
        elif mn.startswith('s_'):
            self.kind = 'salu'
            if mn.startswith('s_load') or mn.startswith('s_buffer_load') or mn in ('s_memtime', 's_memrealtime'):
                self.kind = 'smem'; self.smem = True
                self.defs = set(R[0]); self.uses = set().union(*R[1:]) if len(R) > 1 else set()
            elif mn in ('s_nop', 's_waitcnt', 's_barrier', 's_endpgm', 's_branch', 's_setprio', 's_sleep') or mn.startswith('s_cbranch'):
                self.kind = 'ctl'
                if mn == 's_cbranch_vccz' or mn == 's_cbranch_vccnz': self.uses = set(VCC)
                if mn in ('s_cbranch_execz', 's_cbranch_execnz'): self.uses = set(EXEC)
            elif mn.startswith('s_cmp') or mn.startswith('s_bitcmp'):
                self.uses = set().union(*R)
            elif 'saveexec' in mn:
                self.defs = R[0] | EXEC; self.uses = R[1] | EXEC
            elif mn == 's_getreg_b32':
                self.defs = set(R[0])
            elif mn == 's_setreg_b32' or mn == 's_setreg_imm32_b32':
                self.uses = set().union(*R)
            else:
                self.defs = set(R[0]); self.uses = set().union(*R[1:]) if len(R) > 1 else set()
                if mn in ('s_addk_i32', 's_mulk_i32', 's_cmov_b32'): self.uses |= R[0]
        else:
            raise ValueError('cannot parse: ' + self.text)

    def states(self):
        if self.kind == 'none': return 0
        if self.mn == 's_nop':
            return int(self.text.split()[1], 0) + 1
        return 1


class Asm:
    def __init__(self):
        self.items = []
        self.cur_opt = None
        self.nopt = 0
        self.raw_tail = []

    def __call__(self, text, tag=None):
        for ln in text.split('\n'):
            ln = ln.strip()
            if not ln: continue
            i = Ins(ln, tag)
            i.opt = self.cur_opt
            self.items.append(i)
    def label(self, l):
        i = Ins(l + ':'); i.opt = self.cur_opt; self.items.append(i)
    def comment(self, c):
        i = Ins('; ' + c); self.items.append(i)
    def directive(self, d):
        i = Ins(d); self.items.append(i)
    def loop_begin(self, label):
        self.items.append(('loop_begin', label)); self.label(label)
    def loop_end(self, branch):
        self(branch); self.items.append(('loop_end',))
    def opt_begin(self, share=None):
        assert self.cur_opt is None
        if share is not None:
            self.cur_opt = 'S' + str(share); return
        self.nopt += 1; self.cur_opt = self.nopt
    def opt_end(self):
        self.cur_opt = None
    def wait_vm(self, tag):
        self.items.append(('wait_vm', tag, self.cur_opt))
    def wait_lgkm(self, tag):
        self.items.append(('wait_lgkm', tag, self.cur_opt))
    def drain(self, vm=True, lgkm=True):
        s = 's_waitcnt' + (' vmcnt(0)' if vm else '') + (' lgkmcnt(0)' if lgkm else '')
        self(s)

    def _expand(self):
        trace = []
        stack = []
        i = 0
        items = self.items
        def rec(lo, hi):
            out = []
            j = lo
            while j < hi:
                it = items[j]
                if isinstance(it, tuple) and it[0] == 'loop_begin':
                    depth = 1; k = j + 1
                    while depth:
                        if isinstance(items[k], tuple):
                            if items[k][0] == 'loop_begin': depth += 1
                            elif items[k][0] == 'loop_end': depth -= 1
                        k += 1
                    body = rec(j + 1, k - 1)
                    out += body * 3
                    j = k
                else:
                    out.append(j); j += 1
            return out
        return rec(0, len(items))

    def _scenarios(self):
        import itertools
        items = self.items
        full = self._expand()
        opts = sorted({(it.opt if isinstance(it, Ins) else (it[2] if it[0] in ('wait_vm', 'wait_lgkm') else None)) for it in items} - {None}, key=str)
        assert len(opts) <= 8
        for combo in itertools.product((True, False), repeat=len(opts)):
            taken = {o for o, t in zip(opts, combo) if t}
            tr = []
            for pos in full:
                it = items[pos]
                o = it.opt if isinstance(it, Ins) else (it[2] if it[0] in ('wait_vm', 'wait_lgkm') else None)
                if o is not None and o not in taken: continue
                tr.append(pos)
                if isinstance(it, Ins) and it.mn == 's_endpgm': break
            yield tr

    def _waitcnt_pass(self):
        items = self.items
        need_vm = {}; need_lg = {}
        def req(d, pos, n):
            d[pos] = min(d.get(pos, 1 << 30), n)
        for trace in self._scenarios():
            vmq = []; lgq = []
            for pos in trace:
                it = items[pos]
                if isinstance(it, tuple):
                    if it[0] == 'wait_vm':
                        idxs = [k for k, e in enumerate(vmq) if e['tag'] == it[1]]
                        if idxs:
                            k = idxs[-1]; req(need_vm, pos, len(vmq) - 1 - k)
                            del vmq[:k + 1]
                    elif it[0] == 'wait_lgkm':
                        idxs = [k for k, e in enumerate(lgq) if e['tag'] == it[1]]
                        if idxs:
                            k = idxs[-1]
                            n = 0 if any(e['smem'] for e in lgq) else len(lgq) - 1 - k
                            req(need_lg, pos, n)
                            if n == 0: lgq.clear()
                            else: del lgq[:k + 1]
                    continue
                if it.kind == 'none': continue
                if it.mn == 's_waitcnt':
                    m = re.search(r'vmcnt\((\d+)\)', it.text)
                    if m:
                        n = int(m.group(1))
                        if len(vmq) > n: vmq[:] = vmq[len(vmq) - n:] if n else []
                    m = re.search(r'lgkmcnt\((\d+)\)', it.text)
                    if m:
                        n = int(m.group(1))
                        if n == 0: lgq.clear()
                        elif not any(e['smem'] for e in lgq) and len(lgq) > n: lgq[:] = lgq[len(lgq) - n:]
                    continue
                touched = it.uses | it.defs
                k = -1
                for idx, e in enumerate(vmq):
                    if e['defs'] & touched: k = idx
                if k >= 0:
                    req(need_vm, pos, len(vmq) - 1 - k)
                    del vmq[:k + 1]
                k = -1
                for idx, e in enumerate(lgq):
                    if e['defs'] & touched: k = idx
                if k >= 0:
                    n = 0 if any(e['smem'] for e in lgq) else len(lgq) - 1 - k
                    req(need_lg, pos, n)
                    if n == 0: lgq.clear()
                    else: del lgq[:k + 1]
                if it.kind == 'vmem':
                    vmq.append(dict(defs=set(it.defs), tag=it.tag, smem=False))
                elif it.kind == 'ds':
                    lgq.append(dict(defs=set(it.defs), tag=it.tag, smem=False))
                elif it.kind == 'smem':
                    lgq.append(dict(defs=set(it.defs), tag=it.tag, smem=True))
        new = []
        for pos, it in enumerate(items):
            v = need_vm.get(pos); l = need_lg.get(pos)
            if v is not None or l is not None:
                s = 's_waitcnt'
                if v is not None:
                    s += ' vmcnt(%d)' % min(v, 63)
                if l is not None:
                    s += ' lgkmcnt(%d)' % min(l, 15)
                w = Ins(s)
                w.opt = it.opt if isinstance(it, Ins) else it[2]
                new.append(w)
            if isinstance(it, tuple) and it[0] in ('wait_vm', 'wait_lgkm'):
                continue
            new.append(it)
        self.items = new

    def _hazard_pass(self):
        rounds = 0
        while True:
            rounds += 1
            assert rounds < 50
            items = self.items
            add = {}
            for tr in self._scenarios():
                trace = [p for p in tr if isinstance(items[p], Ins) and items[p].kind != 'none']
                for ti, pos in enumerate(trace):
                    it = items[pos]
                    need = 0
                    dist = 0
                    tj = ti - 1
                    while tj >= 0 and dist < 20:
                        pr = items[trace[tj]]
                        req = self._hazard(pr, it)
                        if req > dist:
                            need = max(need, req - dist)
                        dist += pr.states() + add.get(trace[tj], 0)
                        tj -= 1
                    if need > add.get(pos, 0):
                        add[pos] = need
            if not add: break
            new = []
            for pos, it in enumerate(items):
                if pos in add:
                    n = add[pos]
                    while n > 0:
                        k = min(n, 16)
                        w = Ins('s_nop %d' % (k - 1)); w.opt = it.opt
                        new.append(w); n -= k
                new.append(it)
            self.items = new

    @staticmethod
    def _hazard(p, c):
        r = 0
        pv = {x for x in p.defs if x[0] in 'va'}
        ps = {x for x in p.defs if x[0] == 's'}
        p_valu = p.kind in ('valu', 'trans', 'dot', 'readlane', 'permlane')
        c_valu = c.kind in ('valu', 'trans', 'dot', 'readlane', 'permlane')
        if p_valu:
            if c.kind == 'mfma' and pv & c.uses: r = max(r, 2)
            if p.kind == 'trans' and c_valu and c.kind != 'trans' and pv & c.uses: r = max(r, 1)
            if p.kind == 'trans' and c.kind == 'trans' and False: pass
            if p.kind == 'dot' and (pv & (c.uses | c.defs)) and c.kind in ('valu', 'trans', 'dot', 'readlane', 'permlane', 'mfma', 'vmem', 'ds'):
                if not (c.mn == p.mn and not (pv & (c.uses - c.defs))):
                    r = max(r, 3)
            if c.kind == 'readlane' and pv & c.uses: r = max(r, 1)
            if c.kind == 'permlane' and pv & c.uses: r = max(r, 2)
            if c.meta == 'dpp' and pv & c.uses: r = max(r, 2)
            if ps:
                if c_valu and (ps & (c.uses - EXEC)): r = max(r, 2)
                if c.lanesel & ps: r = max(r, 4)
                if c.kind == 'vmem' and ps & c.sgpr_uses_vmem: r = max(r, 5)
                if (ps & EXEC) and c.kind == 'mfma': r = max(r, 4)
        if p.kind == 'mfma':
            big = {4: 8, 8: 12}[p.passes]
            if c.kind == 'mfma':
                if p.defs & c.srcAB: r = max(r, big)
                if p.defs & c.srcC:
                    if not (p.defs == c.srcC and p.passes == c.passes):
                        r = max(r, {4: 6, 8: 10}[p.passes])
                if p.defs & c.defs and not (p.defs & c.srcC):
                    if p.passes != c.passes: r = max(r, {4: 6, 8: 10}[p.passes])
            elif c.kind in ('valu', 'trans', 'dot', 'readlane', 'permlane', 'vmem', 'ds'):
                if p.defs & (c.uses | c.defs): r = max(r, big)
            if c_valu and (p.srcC & c.defs): r = max(r, {4: 3, 8: 7}[p.passes])
        if p.kind == 'salu' and (p.defs & M0) and c.is_lds_dma: r = max(r, 1)
        if p.wide_store_data and (p.wide_store_data & c.defs):
            r = max(r, 2 if c_valu else 1)
        return r

    def finish(self):
        self._waitcnt_pass()
        self._hazard_pass()
        out = []
        for it in self.items:
            if isinstance(it, tuple): continue
            t = it.text
            if t.endswith(':') or t.startswith('.'): out.append(t)
            else: out.append('  ' + t)
        return '\n'.join(out) + '\n'


def vr(a, n=1):
    return 'v%d' % a if n == 1 else 'v[%d:%d]' % (a, a + n - 1)
def sr(a, n=1):
    return 's%d' % a if n == 1 else 's[%d:%d]' % (a, a + n - 1)

def kernel_header(name):
    return '.globl %s\n.p2align 8\n.type %s,@function\n%s:\n' % (name, name, name)

def kernel_desc(name, vgpr=256, sgpr=102):
    acc = (vgpr + 3) // 4 * 4
    return ('.p2align 6\n.amdhsa_kernel %s\n  .amdhsa_next_free_vgpr %d\n  .amdhsa_next_free_sgpr %d\n  .amdhsa_accum_offset %d\n'
            '  .amdhsa_group_segment_fixed_size 0\n  .amdhsa_kernarg_size 96\n  .amdhsa_user_sgpr_count 2\n'
            '  .amdhsa_user_sgpr_kernarg_segment_ptr 1\n  .amdhsa_system_sgpr_workgroup_id_x 1\n'
            '.end_amdhsa_kernel\n') % (name, vgpr, sgpr, acc)
```

```python
from asmgen import *
from common import *
import common

LDS_K2 = 4 * KV_CHUNK
Q1, Q2 = 8, 12
SB = [16, 32]
P = 48
O = 56
K1B = [72, 76]
K2B = [80, 82]
VB = [84, 92]
vK1A, vK2A, vVA = 100, 101, 102
vLANE, vHI, vQ = 1, 2, 3
vT = 104
vOOFF = 4
vM, vMX, vAL = 112, 113, 114
vPF = 116
PREFETCH = False
PACK = True
KVLATE = False
KVYOUNG = True
YPRIO = 3
vKVA = 117
import pk

def kreads(a, tile15, buf):
    a('ds_read_b128 v[%d:%d], v%d offset:%d' % (K1B[buf], K1B[buf] + 3, vK1A, tile15 * 1152))
    a('ds_read_b32 v%d, v%d offset:%d' % (K2B[buf], vK2A, tile15 * 1152))
def vreads(a, tile15, buf):
    a('ds_read_b128 v[%d:%d], v%d offset:%d' % (VB[buf], VB[buf] + 3, vVA, tile15 * 1216))
    a('ds_read_b128 v[%d:%d], v%d offset:%d' % (VB[buf] + 4, VB[buf] + 7, vVA, tile15 * 1216 + 608))

S3 = 'e0 e1 e2 e3 k8 e4 e5 c0 e6 c1 q1 e7 e8 c2 e9 c3 k16 K e10 e11 e12 e13 p0 V e14 e15 c4 c5 c6 c7'
SCHED = S3
SIDE = []
NOLDS = False
def tile_body(a, tl, cur, nxt, Sc, Sn):
    E = lambda r: a('v_exp_f32 v%d, v%d' % (Sc + r, Sc + r))
    C = lambda i: a('v_cvt_pk_bf16_f32 v%d, v%d, v%d' % (P + i, Sc + 2 * i, Sc + 2 * i + 1))
    def KR():
        if not NOLDS: kreads(a, (tl + 2) & 15, cur)
    def VR():
        if not NOLDS: vreads(a, (tl + 1) & 15, nxt)
    if SCHED == 0:
        a(mfma32k8(Sn, K2B[nxt], Q2, '0'))
        for r in range(0, 4): E(r)
        a(mfma32(Sn, K1B[nxt], Q1))
        E(4); E(5); KR(); VR(); C(0); E(6); E(7); C(1); C(2); E(8); E(9); C(3); E(10); E(11)
        a(mfma32(O, VB[cur], P))
        E(12); E(13); C(4); E(14); E(15); C(5); C(6); C(7)
        a(mfma32(O, VB[cur] + 4, P + 4))
    elif SCHED == 1:
        a(mfma32k8(Sn, K2B[nxt], Q2, '0'))
        E(0); E(1); E(2); E(3)
        C(0)
        a(mfma32(Sn, K1B[nxt], Q1))
        KR()
        E(4); E(5); C(1); E(6); E(7)
        C(2); E(8); C(3); E(9)
        a(mfma32(O, VB[cur], P))
        E(10); E(11); C(4); E(12); E(13)
        C(5); E(14); E(15)
        C(6); VR(); C(7)
        a(mfma32(O, VB[cur] + 4, P + 4))
    elif isinstance(SCHED, str):
        for t in SCHED.split():
            if t[0] == 'e': E(int(t[1:]))
            elif t[0] == 'c': C(int(t[1:]))
            elif t == 'k8': a(mfma32k8(Sn, K2B[nxt], Q2, '0'))
            elif t == 'k16': a(mfma32(Sn, K1B[nxt], Q1))
            elif t == 'p0': a(mfma32(O, VB[cur], P))
            elif t == 'p1': a(mfma32(O, VB[cur] + 4, P + 4))
            elif t == 'q1': a(mfma32(O, VB[nxt] + 4, P + 4))
            elif t == 'K': KR()
            elif t == 'V': VR()
            elif t == 'X':
                for f_ in SIDE: f_()
                del SIDE[:]
            else: raise ValueError(t)
    elif SCHED == 2:
        E(0); E(1)
        a(mfma32k8(Sn, K2B[nxt], Q2, '0'))
        E(2); E(3); C(0); E(4); E(5); C(1)
        a(mfma32(Sn, K1B[nxt], Q1))
        KR()
        E(6); E(7); C(2); E(8); C(3); E(9)
        a(mfma32(O, VB[cur], P))
        E(10); E(11); C(4); E(12); E(13); C(5); E(14); E(15)
        VR()
        C(6); C(7)
        a(mfma32(O, VB[cur] + 4, P + 4))

def gen_k2(name='k2_kernel'):
    a = Asm()
    stamp(a, 0); stamp_rt(a, 9)
    a('s_load_dwordx2 s[12:13], s[0:1], 88')
    a('s_cmp_ge_u32 s2, 256')
    a('s_cbranch_scc1 K2_END')
    a('v_and_b32 v%d, 63, v0' % vLANE)
    a('v_lshrrev_b32 v%d, 6, v0' % vT)
    a('v_readfirstlane_b32 s16, v%d' % vT)
    if PACK: pk.decode(a, 's16')
    if PREFETCH:
        a('s_lshl_b32 s50, s2, 3')
        a('s_add_u32 s50, s50, s16')
        a('s_mul_hi_u32 s51, s50, 0x%x' % ((2 ** 32 + 647) // 648))
        a('s_mul_i32 s52, s51, 648')
        a('s_sub_u32 s52, s50, s52')
        a('s_lshl_b32 s53, s51, 3')
        a('s_add_u32 s53, s53, 48')
        a('s_cmp_eq_u32 s51, 3')
        a('s_cselect_b32 s53, 32, s53')
        a('s_load_dwordx2 s[56:57], s[0:1], s53')
        a('s_lshl_b32 s52, s52, 13')
        a('v_lshlrev_b32 v%d, 7, v%d' % (vPF, vLANE))
        a('v_add_u32 v%d, s52, v%d' % (vPF, vPF))
    a('v_and_b32 v%d, 31, v%d' % (vQ, vLANE))
    a('v_lshrrev_b32 v%d, 5, v%d' % (vHI, vLANE))
    a('s_lshl_b32 s17, s2, 3')
    a('s_add_u32 s17, s17, s16')
    a('s_mul_i32 s18, s17, 1152')
    a('v_mul_u32_u24 v%d, 36, v%d' % (vOOFF, vQ))
    a('v_add_u32 v%d, s18, v%d' % (vOOFF, vOOFF))
    a('v_lshl_add_u32 v%d, v%d, 4, v%d' % (vT, vHI, vOOFF))
    a('v_lshlrev_b32 v%d, 4, v0' % (vT + 1))
    a('s_waitcnt lgkmcnt(0)')
    srd(a, 24, 12, 13, WS_KV)
    srd_off(a, 28, 12, 13, WS_KV, 4 * KV_CHUNK)
    srd_off(a, 32, 12, 13, WS_O, S * D * 2)
    if PREFETCH:
        a('s_mov_b32 s58, %d' % (D * F * 2))
        a('s_cmp_eq_u32 s51, 3')
        a('s_cselect_b32 s58, %d, s58' % (D * D * 2))
        a('s_mov_b32 s59, 0x00020000')
    a('buffer_load_dwordx4 v[%d:%d], v%d, s[24:27], 0 offen' % (Q1, Q1 + 3, vT))
    a('buffer_load_dword v%d, v%d, s[24:27], 0 offen offset:32' % (Q2, vOOFF))
    a('s_lshl_b32 s19, s16, 10')
    a('s_cmp_lt_u32 s16, 5')
    a('s_cselect_b32 s43, 8, 6')
    a('s_lshl_b32 s43, s43, 12')
    def kvdma(a, c, i):
        if i < 4:
            off = c * KV_CHUNK + i * 8192
            a('s_add_u32 m0, s19, %d' % off)
            a('s_mov_b32 s20, %d' % off)
        else:
            a('s_add_u32 s20, s43, %d' % (c * KV_CHUNK))
            a('s_add_u32 m0, s19, s20')
        a('buffer_load_dwordx4 v%d, s[28:31], s20 offen lds' % vKVA, tag='kv%d' % c)
    a('v_mov_b32 v%d, v%d' % (vKVA, vT + 1))
    for i in range(5): kvdma(a, 0, i)
    late = [(c, i) for c in range(1, 4) for i in range(5)] if KVLATE else []
    if not KVLATE and not KVYOUNG:
        for c in range(1, 4):
            for i in range(5): kvdma(a, c, i)
    if PACK:
        def scr(a):
            a('s_lshr_b32 s52, s16, 1')
            a('s_mul_i32 s52, s52, %d' % KV_CHUNK)
            a('s_and_b32 s53, s16, 1')
            a('s_mul_i32 s53, s53, 1168')
            a('s_add_u32 s52, s52, s53')
            a('s_add_u32 s52, s52, %d' % (KV_CHUNK - 3072))
        pk.setup(a, vLANE, vT + 4, scr)
    a('v_lshlrev_b32 v%d, 4, v%d' % (vK1A, vLANE))
    a('v_lshlrev_b32 v%d, 2, v%d' % (vK2A, vQ))
    a('v_add_u32 v%d, 1024, v%d' % (vK2A, vK2A))
    a('v_mov_b32 v%d, v%d' % (vT + 2, vQ))
    a('v_cmp_lt_u32 vcc, 18, v%d' % vQ)
    a('v_cndmask_b32 v%d, v%d, 4, vcc' % (vT + 2, vT + 2))
    a('v_add_u32 v%d, -20, v%d' % (vT + 3, vQ))
    a('v_cmp_gt_u32 vcc, 8, v%d' % (vT + 3))
    a('v_cndmask_b32 v%d, v%d, 0, vcc' % (vT + 2, vT + 2))
    a('v_mul_u32_u24 v%d, 19, v%d' % (vT + 3, vHI))
    a('v_add_u32 v%d, v%d, v%d' % (vT + 2, vT + 2, vT + 3))
    a('v_lshlrev_b32 v%d, 4, v%d' % (vVA, vT + 2))
    a('v_add_u32 v%d, %d, v%d' % (vVA, KV_VOFF, vVA))
    for b in range(2):
        a('v_mov_b32 v%d, 0' % (K2B[b] + 1))
    for r in range(16):
        a('v_mov_b32 v%d, 0' % (O + r))
    if isinstance(SCHED, str) and 'q1' in SCHED:
        for r in range(4):
            a('v_mov_b32 v%d, 0' % (P + 4 + r)); a('v_mov_b32 v%d, 0' % (VB[1] + 4 + r))
    a('v_mov_b32 v%d, 0' % (Q2 + 1))
    a('v_cmp_eq_u32 vcc, 0, v%d' % vHI)
    a('v_cndmask_b32 v%d, 0, v%d, vcc' % (Q2, Q2))
    a.wait_vm('kv0')
    a('s_barrier')
    stamp(a, 1)
    if KVYOUNG:
        a('s_cmp_lt_u32 s16, 4')
        a('s_cbranch_scc1 K2_KVY')
        a.opt_begin()
        a('s_sub_u32 s20, s16, 4')
        a('s_mul_i32 s20, s20, 10')
        a('s_min_u32 s20, s20, 27')
        a('s_lshl_b32 s20, s20, 10')
        a('v_lshlrev_b32 v%d, 4, v%d' % (vKVA, vLANE))
        for c in range(1, 4):
            for grp, n in ((0, 4), (4, 4), (8, 2)):
                a('s_add_u32 s19, s20, %d' % (c * KV_CHUNK + grp * 1024))
                a('s_mov_b32 m0, s19')
                for q in range(n):
                    a('buffer_load_dwordx4 v%d, s[28:31], s19 offen offset:%d lds' % (vKVA, q * 1024), tag='kv3')
        if YPRIO: a('s_setprio 1')
        a.opt_end()
        a.label('K2_KVY')
    if PACK:
        never = lambda a: a('s_cmp_eq_u32 s16, 99')
        if pk.DMA:
            pk.dma_issue(a, never)
            pk.touch(a)
        else:
            pk.load(a, 0, never)
            pk.touch(a)
            pk.load(a, 1, never)
            pk.touch(a)
    kreads(a, 0, 0)
    kreads(a, 1, 1)
    vreads(a, 0, 0)
    a(mfma32k8(SB[0], K2B[0], Q2, '0'))
    a(mfma32(SB[0], K1B[0], Q1))
    if pk.TIMEW:
        a('s_mov_b32 s70, s64'); a('s_mov_b32 s72, 0'); a('s_mov_b32 s74, 0'); a('s_mov_b32 s76, 0')
    a('s_mov_b32 s21, 0')
    a('s_mov_b32 s23, %d' % (-3 * KV_CHUNK))
    a('s_mov_b32 s42, %d' % KV_CHUNK)
    a('s_nop 9')
    a.loop_begin('K2_LOOP')
    a('s_cmp_eq_u32 s21, 3')
    a('s_cselect_b32 s22, s23, s42')
    if YPRIO and YPRIO < 4:
        a('s_cmp_lt_u32 s21, %d' % YPRIO)
        a('s_cbranch_scc1 K2_PR')
        a('s_setprio 0')
        a.label('K2_PR')
    for tl in range(16):
        cur = tl & 1; nxt = cur ^ 1
        Sc = SB[cur]; Sn = SB[nxt]
        if tl == 14:
            a('s_cmp_lg_u32 s21, 0')
            a('s_cbranch_scc1 K2_NOBAR')
            a.opt_begin()
            a.wait_vm('kv3')
            a('s_barrier')
            if PREFETCH:
                a('buffer_load_dword v%d, v%d, s[56:59], 0 offen' % (vPF + 1, vPF))
            a.opt_end()
            a.label('K2_NOBAR')
            a('v_add_u32 v%d, s22, v%d' % (vK1A, vK1A))
            a('v_add_u32 v%d, s22, v%d' % (vK2A, vK2A))
        if tl == 15:
            a('v_add_u32 v%d, s22, v%d' % (vVA, vVA))
        if late and tl < 8:
            a('s_cmp_lg_u32 s21, 0')
            a('s_cbranch_scc1 K2_KVS%d' % tl)
            a.opt_begin(share='kv')
            for _ in range(2):
                if late: kvdma(a, *late.pop(0))
            a.opt_end()
            a.label('K2_KVS%d' % tl)
        side = []
        if PACK:
            never = lambda a: a('s_cmp_eq_u32 s21, 99')
            if tl == 9: side = pk.partA(a, 0, never, lambda a: (a('s_cmp_eq_u32 s21, 3'), a('s_cselect_b32 s%d, 0, s%d' % (pk.R.sSRC + 2, pk.R.sSRC + 2))))
            if tl == 14: side = pk.partA(a, 1, lambda a: a('s_bitcmp0_b32 s21, 0'))
            if tl == 10: side = pk.partB(a, never)
            if tl == 15: side = pk.partB(a, lambda a: a('s_bitcmp1_b32 s21, 0'))
        if PACK and pk.DMA:
            never = lambda a: a('s_cmp_eq_u32 s21, 99')
            odd = lambda a: a('s_bitcmp1_b32 s21, 0')
            side = []
            if tl in (6, 14): side = pk.dmaA(a)
            if tl == 7: side = pk.dmaB(a, odd, never)
            if tl == 15: side = pk.dmaB(a, never, odd, lambda a: (a('s_cmp_eq_u32 s21, 3'), a('s_cselect_b32 s%d, 0, s%d' % (pk.R.sSRC + 2, pk.R.sSRC + 2))))
        for f_ in side: f_()
        tile_body(a, tl, cur, nxt, Sc, Sn)
    a('s_add_u32 s21, s21, 1')
    a('s_cmp_lt_u32 s21, 4')
    a.loop_end('s_cbranch_scc1 K2_LOOP')
    if isinstance(SCHED, str) and 'q1' in SCHED:
        a(mfma32(O, VB[1] + 4, P + 4))
    stamp(a, 2)
    if PACK:
        pk.finish(a, vLANE, vT)
        a('s_waitcnt vmcnt(0)')
    a('v_mov_b32 v%d, v%d' % (vT, O + 10))
    a('v_mov_b32 v%d, v%d' % (vT + 1, O + 10))
    a('v_permlane32_swap_b32 v%d, v%d' % (vT, vT + 1))
    a('v_max3_f32 v%d, |v%d|, |v%d|, |v%d|' % (vT + 2, O, O + 1, O + 2))
    a('v_max3_f32 v%d, |v%d|, |v%d|, v%d' % (vT + 2, O + 3, O + 4, vT + 2))
    a('v_max3_f32 v%d, |v%d|, |v%d|, v%d' % (vT + 2, O + 5, O + 6, vT + 2))
    a('v_max3_f32 v%d, |v%d|, |v%d|, v%d' % (vT + 2, O + 7, O + 8, vT + 2))
    a('v_max_f32 v%d, |v%d|, v%d' % (vT + 2, O + 9, vT + 2))
    a('v_cmp_lt_f32 vcc, %s, v%d' % (f32(2.0 ** -60), vT))
    a('s_mov_b32 s38, %s' % f32(2.0 ** 60))
    a('s_mov_b32 s39, %s' % f32(2.0 ** 120))
    a('v_cmp_gt_f32 s[36:37], s38, v%d' % vT)
    a('v_cmp_gt_f32 s[40:41], s39, v%d' % (vT + 2))
    a('s_and_b64 s[36:37], s[36:37], vcc')
    a('s_and_b64 s[36:37], s[36:37], s[40:41]')
    a('s_cmp_eq_u64 s[36:37], -1')
    a('s_cbranch_scc0 K2_SLOW')
    t1 = a.finish()

    a = Asm()
    a.label('K2_FIN')
    a('v_rcp_f32 v%d, v%d' % (vT, vT))
    for r in range(10):
        a('v_mul_f32 v%d, v%d, v%d' % (O + r, O + r, vT))
    for i in range(5):
        a('v_cvt_pk_bf16_f32 v%d, v%d, v%d' % (P + i, O + 2 * i, O + 2 * i + 1))
    a('s_lshr_b32 s22, s16, 1')
    a('s_mul_i32 s22, s22, %d' % KV_CHUNK)
    a('s_and_b32 s23, s16, 1')
    a('s_mul_i32 s23, s23, 1168')
    a('s_add_u32 s22, s22, s23')
    a('s_add_u32 s22, s22, %d' % (KV_CHUNK - 3072))
    a('v_mul_u32_u24 v%d, 36, v%d' % (vT + 1, vQ))
    a('v_add_u32 v%d, s22, v%d' % (vT + 1, vT + 1))
    a('v_lshl_add_u32 v%d, v%d, 3, v%d' % (vT + 2, vHI, vT + 1))
    a('ds_write2_b32 v%d, v%d, v%d offset0:0 offset1:1' % (vT + 2, P, P + 1))
    a('ds_write2_b32 v%d, v%d, v%d offset0:4 offset1:5' % (vT + 2, P + 2, P + 3))
    a('s_mov_b32 exec_hi, 0')
    a('ds_write_b32 v%d, v%d offset:32' % (vT + 1, P + 4))
    a('s_mov_b32 exec_hi, -1')
    a('s_waitcnt lgkmcnt(0)')
    a('s_barrier')
    def out_units(ireg):
        a('v_and_b32 v%d, 7, v%d' % (vT + 3, vLANE))
        a('v_bfe_u32 v%d, v%d, 3, 2' % (vT + 4, vLANE))
        a('v_lshrrev_b32 v%d, 5, v%d' % (vT + 5, vLANE))
        a('s_lshl_b32 s23, %s, 1' % ireg)
        a('v_add_u32 v%d, s23, v%d' % (vT + 5, vT + 5))
        a('v_lshrrev_b32 v%d, 1, v%d' % (vT + 6, vT + 3))
        a('v_mul_u32_u24 v%d, %d, v%d' % (vT + 6, KV_CHUNK, vT + 6))
        a('v_and_b32 v%d, 1, v%d' % (vT + 7, vT + 3))
        a('v_mul_u32_u24 v%d, 1168, v%d' % (vT + 7, vT + 7))
        a('v_add3_u32 v%d, v%d, v%d, s47' % (vT + 6, vT + 6, vT + 7))
        a('v_lshl_add_u32 v%d, v%d, 6, v%d' % (vT + 6, vT + 5, vT + 6))
        a('v_lshl_add_u32 v%d, v%d, 4, v%d' % (vT + 6, vT + 4, vT + 6))
        a('ds_read_b128 v[%d:%d], v%d' % (P, P + 3, vT + 6))
        a('v_lshlrev_b32 v%d, 10, v%d' % (vT + 7, vT + 5))
        a('v_lshl_add_u32 v%d, v%d, 8, v%d' % (vT + 7, vT + 4, vT + 7))
        a('v_lshl_add_u32 v%d, v%d, 4, v%d' % (vT + 7, vT + 3, vT + 7))
        a('buffer_store_dwordx4 v[%d:%d], v%d, s[32:35], s48 offen' % (P, P + 3, vT + 7))
    a('s_mov_b32 s47, %d' % (KV_CHUNK - 3072))
    a('s_lshr_b32 s48, s2, 1')
    a('s_mul_i32 s48, s48, 18432')
    a('s_and_b32 s49, s2, 1')
    a('s_lshl_b32 s49, s49, 7')
    a('s_add_u32 s48, s48, s49')
    out_units('s16')
    a('s_cmp_lg_u32 s16, 0')
    a('s_cbranch_scc1 K2_DONE')
    a('s_mov_b32 s50, 8')
    out_units('s50')
    a.label('K2_DONE')
    if pk.TIMEW:
        a('s_sub_u32 s70, s70, s64'); a('s_add_u32 s72, s72, s64'); a('s_add_u32 s74, s74, s64')
        stamp_store(a, 1, 6)
        a('s_endpgm')
    stamp(a, 3)
    stamp_store(a, 1, 4)
    a('s_endpgm')
    t2 = a.finish()

    a = Asm()
    a.label('K2_SLOW')
    a('v_lshlrev_b32 v%d, 4, v%d' % (vK1A, vLANE))
    a('v_lshlrev_b32 v%d, 2, v%d' % (vK2A, vQ))
    a('v_add_u32 v%d, 1024, v%d' % (vK2A, vK2A))
    for r in range(16):
        a('v_mov_b32 v%d, 0' % (O + r))
    a('v_mov_b32 v%d, %s' % (vM, f32(-3.0e38)))
    a('s_mov_b32 s43, %d' % (KV_CHUNK - 15 * 1152))
    a('s_mov_b32 s44, 1152')
    a('s_mov_b32 s45, %d' % (KV_CHUNK - 15 * 1216))
    a('s_mov_b32 s46, 1216')
    a('s_mov_b32 s21, 0')
    Sc = SB[0]
    a.loop_begin('K2_SLOOP')
    kreads(a, 0, 0)
    vreads(a, 0, 0)
    a(mfma32k8(Sc, K2B[0], Q2, '0'))
    a(mfma32(Sc, K1B[0], Q1))
    a('v_max3_f32 v%d, v%d, v%d, v%d' % (vMX, Sc, Sc + 1, Sc + 2))
    for r in range(3, 15, 2):
        a('v_max3_f32 v%d, v%d, v%d, v%d' % (vMX, Sc + r, Sc + r + 1, vMX))
    a('v_max_f32 v%d, v%d, v%d' % (vMX, Sc + 15, vMX))
    a('v_mov_b32 v%d, v%d' % (vAL, vMX))
    a('v_permlane32_swap_b32 v%d, v%d' % (vMX, vAL))
    a('v_max3_f32 v%d, v%d, v%d, v%d' % (vMX, vMX, vAL, vM))
    a('v_sub_f32 v%d, v%d, v%d' % (vAL, vM, vMX))
    a('v_exp_f32 v%d, v%d' % (vAL, vAL))
    a('v_mov_b32 v%d, v%d' % (vM, vMX))
    for r in range(16):
        a('v_sub_f32 v%d, v%d, v%d' % (Sc + r, Sc + r, vM))
    for r in range(16):
        a('v_exp_f32 v%d, v%d' % (Sc + r, Sc + r))
    for r in range(16):
        a('v_mul_f32 v%d, v%d, v%d' % (O + r, O + r, vAL))
    for i in range(8):
        a('v_cvt_pk_bf16_f32 v%d, v%d, v%d' % (P + i, Sc + 2 * i, Sc + 2 * i + 1))
    a(mfma32(O, VB[0], P))
    a(mfma32(O, VB[0] + 4, P + 4))
    a('s_add_u32 s21, s21, 1')
    a('s_and_b32 s22, s21, 15')
    a('s_cmp_eq_u32 s22, 0')
    a('s_cselect_b32 s22, s43, s44')
    a('s_cselect_b32 s23, s45, s46')
    a('v_add_u32 v%d, s22, v%d' % (vK1A, vK1A))
    a('v_add_u32 v%d, s22, v%d' % (vK2A, vK2A))
    a('v_add_u32 v%d, s23, v%d' % (vVA, vVA))
    a('s_cmp_lt_u32 s21, 64')
    a.loop_end('s_cbranch_scc1 K2_SLOOP')
    a('v_mov_b32 v%d, v%d' % (vT, O + 10))
    a('v_mov_b32 v%d, v%d' % (vT + 1, O + 10))
    a('v_permlane32_swap_b32 v%d, v%d' % (vT, vT + 1))
    a('s_nop 1')
    a('s_branch K2_FIN')
    t3 = a.finish()
    end = 'K2_END:\n  s_endpgm\n'
    return kernel_header(name) + t1 + t2 + t3 + end, kernel_desc(name, 256 if common.STAMPS else 136, 102), (256, 512, LDS_K2)
```

```python
from asmgen import *
from common import *
import common
W_BYTES = 6 * 18432
XC_LDS = W_BYTES
LDS_K3 = XC_LDS + 24576
X = 32
FR = 72
NB = 8
ACC = 104
XR = 128
PX = 136
vLANE, vG, vN, vROW = 1, 2, 3, 4
vL16, vRB, vXA, vD = 5, 6, 7, 8
vT = 10
vS1, vS2 = 28, 29
ONE = 30
P_SIZE = WS_PEND - WS_P1
NZW = 65

def gen_k3(name='k3_kernel'):
    a = Asm()
    stamp(a, 0); stamp_rt(a, 9)
    a('s_load_dwordx2 s[4:5], s[0:1], 0')
    a('s_load_dwordx2 s[12:13], s[0:1], 88')
    a('s_cmp_ge_u32 s2, 192')
    a('s_cbranch_scc1 K3_CT')
    a('v_and_b32 v%d, 63, v0' % vLANE)
    a('v_lshrrev_b32 v%d, 6, v0' % vT)
    a('v_readfirstlane_b32 s16, v%d' % vT)
    a('s_and_b32 s19, s16, 3')
    a('s_lshr_b32 s20, s16, 2')
    a('s_and_b32 s21, s2, 7')
    a('s_lshr_b32 s22, s2, 3')
    a('s_and_b32 s22, s22, 3')
    a('s_lshl_b32 s22, s22, 3')
    a('s_add_u32 s17, s21, s22')
    a('s_lshr_b32 s18, s2, 5')
    a('v_and_b32 v%d, 15, v%d' % (vN, vLANE))
    a('v_lshrrev_b32 v%d, 4, v%d' % (vG, vLANE))
    a('s_lshl_b32 s23, s17, 2')
    a('s_add_u32 s23, s23, s19')
    a('s_lshl_b32 s33, s23, 4')
    a('v_add_u32 v%d, s33, v%d' % (vROW, vN))
    a('v_lshlrev_b32 v%d, 4, v%d' % (vL16, vLANE))
    a('s_mul_i32 s34, s23, 18432')
    a('s_mul_i32 s33, s20, 9216')
    a('s_add_u32 s34, s34, s33')
    for i in range(5):
        d = 44 + i
        a('s_add_u32 s33, s16, %d' % (8 * i))
        if i == 4:
            a('s_cmp_ge_u32 s33, 36')
            a('s_cselect_b32 s33, s16, s33')
        a('s_cmp_ge_u32 s33, 18')
        a('s_cselect_b32 s35, 1, 0')
        a('s_mul_i32 s36, s35, 18')
        a('s_sub_u32 s33, s33, s36')
        a('s_mul_i32 s36, s33, 43')
        a('s_lshr_b32 s36, s36, 7')
        a('s_mul_i32 s37, s36, 3')
        a('s_sub_u32 s33, s33, s37')
        a('s_mul_i32 s35, s35, 9')
        a('s_add_u32 s33, s33, s35')
        a('s_lshl_b32 s33, s33, 10')
        a('s_mul_i32 s36, s36, 18432')
        a('s_add_u32 s%d, s33, s36' % d)
    a('s_mul_i32 s49, s18, %d' % W_BYTES)
    a('s_add_u32 s49, s49, 0x%x' % (WS_P3 - WS_P1))
    a('s_waitcnt lgkmcnt(0)')
    srd(a, 24, 4, 5, S * D * 2)
    srd_off(a, 28, 12, 13, WS_P1, P_SIZE)
    srd_off(a, 36, 12, 13, WS_O, S * D * 2)
    srd_off(a, 40, 12, 13, WS_H, WS_HB - WS_H)
    def issue(a, g):
        for k in range(3 * g, 3 * g + 3):
            a('buffer_load_dwordx4 v[%d:%d], v%d, s[36:39], s34 offen offset:%d' % (X + 4 * k, X + 4 * k + 3, vL16, (k - 3 * g) * 1024))
        a('s_add_u32 s34, s34, 3072')
        for i in range(5):
            a('s_add_u32 m0, s%d, %d' % (44 + i, g * 3072))
            a('s_add_u32 s33, m0, s49')
            a('buffer_load_dwordx4 v%d, s[28:31], s33 offen lds' % vL16)
    issue(a, 0)
    a('s_barrier')
    issue(a, 1)
    a('s_mul_i32 s33, s18, 192')
    a('s_mul_i32 s35, s20, 96')
    a('s_add_u32 s50, s33, s35')
    a('v_mul_u32_u24 v%d, 1152, v%d' % (vT, vROW))
    a('v_lshl_add_u32 v%d, v%d, 3, v%d' % (vT + 1, vG, vT))
    a('s_mul_i32 s33, s20, 9216')
    a('v_add_u32 v%d, s33, v%d' % (vRB, vL16))
    a('s_mul_i32 s33, s19, 6144')
    a('s_add_u32 s33, s33, %d' % XC_LDS)
    a('v_add_u32 v%d, s33, v%d' % (vXA, vL16))
    a('v_mov_b32 v%d, 0x3f803f80' % ONE)
    a('s_mul_i32 s51, s23, 18432')
    a('s_mul_i32 s33, s18, 6')
    a('s_mul_i32 s35, s20, 3')
    a('s_add_u32 s33, s33, s35')
    a('s_lshl_b32 s33, s33, 9')
    a('s_add_u32 s51, s51, s33')
    a('v_lshrrev_b32 v%d, 1, v%d' % (vT + 2, vG))
    a('v_lshlrev_b32 v%d, 8, v%d' % (vT + 2, vT + 2))
    a('v_lshl_add_u32 v%d, v%d, 4, v%d' % (vT + 3, vN, vT + 2))
    a('v_and_b32 v%d, 1, v%d' % (vT + 2, vG))
    a('v_lshl_add_u32 v%d, v%d, 3, v%d' % (vD, vT + 2, vT + 3))
    stamp(a, 1)
    for g in range(3):
        a('s_waitcnt vmcnt(%d)' % (8 if g == 0 else (11 if g == 1 else 0)))
        a('s_barrier')
        if g == 0:
            stamp(a, 2)
            issue(a, 2)
            for ti in range(3):
                a('buffer_load_dwordx2 v[%d:%d], v%d, s[24:27], s50 offen offset:%d' % (XR + 2 * ti, XR + 2 * ti + 1, vT + 1, ti * 32))
        steps = [(k, ct) for k in range(3 * g, 3 * g + 3) for ct in range(6)]
        PD = NB - 1
        def reads(idx):
            k, ct = steps[idx]
            fr = FR + 4 * (idx % NB)
            off = ct * 18432 + k * 1024
            if off < 65536: a('ds_read_b128 v[%d:%d], v%d offset:%d' % (fr, fr + 3, vRB, off))
            else: a('ds_read_b128 v[%d:%d], v%d offset:%d' % (fr, fr + 3, vRB + 3, off - 55296))
        if g == 0: a('v_add_u32 v%d, 55296, v%d' % (vRB + 3, vRB))
        for i in range(PD): reads(i)
        for idx, (k, ct) in enumerate(steps):
            fr = FR + 4 * (idx % NB)
            a(mfma16(ACC + 4 * ct, fr, X + 4 * k, '0' if k == 0 else None))
            if idx + PD < len(steps): reads(idx + PD)
    stamp(a, 3)
    a('s_cmp_lg_u32 s20, 0')
    a('s_cbranch_scc1 K3_H1')
    t0 = a.finish()

    def tail(hf):
        a = Asm()
        if hf: a.label('K3_H1')
        a('s_nop 7')
        send = range(3, 6) if hf == 0 else range(0, 3)
        keep = range(0, 3) if hf == 0 else range(3, 6)
        for ct in send: a('ds_write_b128 v%d, v[%d:%d] offset:%d' % (vXA, ACC + 4 * ct, ACC + 4 * ct + 3, ct * 1024))
        a('s_waitcnt lgkmcnt(0)')
        a('s_barrier')
        a('v_mov_b32 v%d, 0' % vS1)
        a('v_mov_b32 v%d, 0' % vS2)
        for ti, ct in enumerate(keep):
            A = ACC + 4 * ct
            a('ds_read_b128 v[%d:%d], v%d offset:%d' % (PX + 4 * ti, PX + 4 * ti + 3, vXA, ct * 1024))
        for ti, ct in enumerate(keep):
            A = ACC + 4 * ct
            t_ = vT + 4
            a('v_lshlrev_b32 v%d, 16, v%d' % (t_, XR + 2 * ti))
            a('v_and_b32 v%d, 0xffff0000, v%d' % (t_ + 1, XR + 2 * ti))
            a('v_lshlrev_b32 v%d, 16, v%d' % (t_ + 2, XR + 2 * ti + 1))
            a('v_and_b32 v%d, 0xffff0000, v%d' % (t_ + 3, XR + 2 * ti + 1))
            for r in range(4):
                a('v_add_f32 v%d, v%d, v%d' % (A + r, A + r, PX + 4 * ti + r))
            for r in range(4):
                a('v_add_f32 v%d, v%d, v%d' % (t_ + r, t_ + r, A + r))
            a('v_cvt_pk_bf16_f32 v%d, v%d, v%d' % (XR + 2 * ti, t_, t_ + 1))
            a('v_cvt_pk_bf16_f32 v%d, v%d, v%d' % (XR + 2 * ti + 1, t_ + 2, t_ + 3))
            a('buffer_store_dwordx2 v[%d:%d], v%d, s[40:43], s51 offen offset:%d' % (XR + 2 * ti, XR + 2 * ti + 1, vD, ti * 512))
            for r in range(2):
                a('v_dot2_f32_bf16 v%d, v%d, v%d, v%d' % (vS1, XR + 2 * ti + r, ONE, vS1))
                a('v_dot2_f32_bf16 v%d, v%d, v%d, v%d' % (vS2, XR + 2 * ti + r, XR + 2 * ti + r, vS2))
        xlane_sum(a, vS1, vT)
        xlane_sum(a, vS2, vT)
        a('s_lshl_b32 s33, s18, 1')
        a('s_add_u32 s33, s33, s20')
        a('s_lshl_b32 s33, s33, 3')
        a('s_add_u32 s33, s33, 0x%x' % (WS_ST - WS_H))
        a('v_mul_u32_u24 v%d, 96, v%d' % (vT, vROW))
        stamp(a, 4)
        stamp_store(a, 2, 5)
        a('v_cmp_eq_u32 vcc, 0, v%d' % vG)
        a('s_and_saveexec_b64 s[44:45], vcc')
        a('buffer_store_dwordx2 v[%d:%d], v%d, s[40:43], s33 offen' % (vS1, vS1 + 1, vT))
        a('s_endpgm')
        return a.finish()
    t1 = tail(0) + tail(1)

    a = Asm()
    a.label('K3_CT')
    a('v_and_b32 v1, 63, v0')
    a('v_lshrrev_b32 v2, 6, v0')
    a('v_readfirstlane_b32 s16, v2')
    a('s_sub_u32 s17, s2, 192')
    a('s_lshl_b32 s17, s17, 3')
    a('s_add_u32 s17, s17, s16')
    a('s_cmp_ge_u32 s17, 36')
    a('s_cbranch_scc1 K3_ZF')
    a('s_cmp_ge_u32 s17, 18')
    a('s_cselect_b32 s18, 1, 0')
    a('s_mul_i32 s19, s18, 18')
    a('s_sub_u32 s19, s17, s19')
    a('s_lshl_b32 s19, s19, 6')
    a('v_add_u32 v3, s19, v1')
    a('v_lshlrev_b32 v4, 4, v3')
    a('s_mul_i32 s20, s18, %d' % (9 * 18432))
    a('s_waitcnt lgkmcnt(0)')
    srd_off(a, 40, 12, 13, WS_CSP, WS_PEND - WS_CSP)
    for kq in range(9):
        a('buffer_load_dwordx4 v[%d:%d], v4, s[40:43], s20 offen' % (8 + 4 * kq, 11 + 4 * kq))
        a('s_add_u32 s20, s20, 18432')
    a('v_lshrrev_b32 v5, 2, v3')
    a('v_lshlrev_b32 v5, 7, v5')
    a('v_and_b32 v6, 3, v3')
    a('v_lshl_add_u32 v5, v6, 4, v5')
    a('s_lshl_b32 s21, s18, 6')
    a('s_add_u32 s21, s21, 0x%x' % (WS_CT - WS_CSP))
    for kq in range(1, 9):
        for r in range(4):
            a('v_add_f32 v%d, v%d, v%d' % (8 + r, 8 + r, 8 + 4 * kq + r))
    a('buffer_store_dwordx4 v[8:11], v5, s[40:43], s21 offen')
    a('s_endpgm')
    a.label('K3_ZF')
    a('s_cmp_ge_u32 s17, %d' % (36 + NZW))
    a('s_cbranch_scc1 K3_END2')
    a('s_sub_u32 s17, s17, 36')
    a('s_lshl_b32 s17, s17, 10')
    a('v_lshlrev_b32 v4, 4, v1')
    for r in range(4): a('v_mov_b32 v%d, 0' % (8 + r))
    a('s_waitcnt lgkmcnt(0)')
    srd_off(a, 40, 12, 13, WS_FLAG, NZW * 1024)
    a('buffer_store_dwordx4 v[8:11], v4, s[40:43], s17 offen')
    a.label('K3_END2')
    a('s_endpgm')
    return kernel_header(name) + t0 + t1 + a.finish(), kernel_desc(name, 256 if common.STAMPS else 152, 102), (256, 512, LDS_K3)
```

```python
from asmgen import *
from common import *
NJ1, NJ2 = 1296, 1944
PMOD = 'sc1'
NOLD = False
DMA = True
TIMEW = False
NOST = False
NODS = False
NODOT = False
CS_OFF = WS_CSP - WS_P1
P2_OFF = WS_P2 - WS_P1

class Regs: pass
R = Regs()
R.sSRC, R.sDST, R.sCS = 56, 60, 4
R.sSO, R.sDO, R.sSLO, R.sSHI, R.sDHI, R.sCSO, R.sSCR = 8, 9, 10, 11, 14, 15, 52
R.vPS, R.vPD, R.vPR, R.vCS, R.vONE, R.vDAT, R.vPF = 118, 119, 120, 121, 122, 124, 116
R.vSET = [128, 132]
R.vPW = 123
T = [50, 51, 53, 54, 55, 48, 49]

def decode(a, sWave):
    J, t1, t2, t3, t4, t5, t6 = T
    a('s_lshl_b32 s%d, s2, 3' % J)
    a('s_add_u32 s%d, s%d, %s' % (J, J, sWave))
    a('s_mov_b32 s%d, 32' % t1)
    a('s_cmp_lt_u32 s%d, %d' % (J, NJ2)); a('s_cselect_b32 s%d, 64, s%d' % (t1, t1))
    a('s_cmp_lt_u32 s%d, %d' % (J, NJ1)); a('s_cselect_b32 s%d, 56, s%d' % (t1, t1))
    a('s_cmp_lt_u32 s%d, 648' % J); a('s_cselect_b32 s%d, 48, s%d' % (t1, t1))
    a('s_load_dwordx2 s[%d:%d], s[0:1], s%d' % (R.sSRC, R.sSRC + 1, t1))

def setup(a, vLANE, vt, scratch_sreg_code, ws_lo=12, ws_hi=13):
    J, t1, t2, t3, t4, t5, t6 = T
    scratch_sreg_code(a)
    a('v_lshrrev_b32 v%d, 3, v%d' % (vt, vLANE))
    a('v_and_b32 v%d, 7, v%d' % (vt + 1, vLANE))
    a('v_lshlrev_b32 v%d, 4, v%d' % (vt + 1, vt + 1))
    a('v_lshrrev_b32 v%d, 4, v%d' % (vt + 2, vLANE))
    a('v_and_b32 v%d, 15, v%d' % (vt + 3, vLANE))
    a('v_lshrrev_b32 v%d, 2, v%d' % (R.vPR, vt + 3))
    a('v_lshlrev_b32 v%d, 7, v%d' % (R.vPR, R.vPR))
    a('v_lshl_add_u32 v%d, v%d, 5, v%d' % (R.vPR, vt + 2, R.vPR))
    a('v_and_b32 v%d, 3, v%d' % (R.vCS, vt + 3))
    a('v_lshl_add_u32 v%d, v%d, 3, v%d' % (R.vPR, R.vCS, R.vPR))
    a('v_add_u32 v%d, s%d, v%d' % (R.vPR, R.sSCR, R.vPR))
    a('v_lshlrev_b32 v%d, 4, v%d' % (vt + 3, vt + 3))
    a('v_mov_b32 v%d, 0x3f803f80' % R.vONE)
    a('v_lshlrev_b32 v%d, 4, v%d' % (R.vPW, vLANE))
    a('v_add_u32 v%d, s%d, v%d' % (R.vPW, R.sSCR, R.vPW))
    srd_off(a, R.sDST, ws_lo, ws_hi, WS_P1, WS_PEND - WS_P1)
    srd_off(a, R.sCS, ws_lo, ws_hi, WS_P1, WS_PEND - WS_P1)
    a('s_mov_b32 s%d, 0x00020000' % (R.sSRC + 3))
    a('s_mov_b32 s96, s%d' % R.sSRC)
    a('s_mov_b32 s97, s%d' % (R.sSRC + 1))
    a('s_mov_b32 s98, 0')
    a('s_mov_b32 s99, 0x00020000')
    a('s_cmp_lt_u32 s%d, %d' % (J, NJ1))
    a('s_cbranch_scc0 PK_NOT1')
    a('s_cmp_ge_u32 s%d, 648' % J)
    a('s_cselect_b32 s%d, 1, 0' % t1)
    a('s_mul_i32 s%d, s%d, 648' % (t2, t1))
    a('s_sub_u32 s%d, s%d, s%d' % (t2, J, t2))
    a('s_mul_hi_u32 s%d, s%d, 0x%x' % (t3, t2, (2 ** 32 + 71) // 72))
    a('s_mul_i32 s%d, s%d, 72' % (t4, t3))
    a('s_sub_u32 s%d, s%d, s%d' % (t4, t2, t4))
    a('s_mul_i32 s%d, s%d, %d' % (R.sSO, t3, 64 * 9216))
    a('s_lshl_b32 s%d, s%d, 7' % (t5, t4))
    a('s_add_u32 s%d, s%d, s%d' % (R.sSO, R.sSO, t5))
    a('s_mul_i32 s%d, s%d, %d' % (R.sDO, t4, 4 * 36864))
    a('s_lshl_b32 s%d, s%d, 12' % (t5, t3))
    a('s_add_u32 s%d, s%d, s%d' % (R.sDO, R.sDO, t5))
    a('s_lshl_b32 s%d, s%d, 10' % (t5, t1))
    a('s_add_u32 s%d, s%d, s%d' % (R.sDO, R.sDO, t5))
    a('s_mov_b32 s%d, %d' % (R.sSLO, 8 * 9216))
    a('s_mov_b32 s%d, %d' % (R.sSHI, 8 * 9216))
    a('s_mov_b32 s%d, 1280' % R.sDHI)
    a('s_mul_i32 s%d, s%d, 9' % (t5, t1))
    a('s_add_u32 s%d, s%d, s%d' % (t5, t5, t3))
    a('s_mul_i32 s%d, s%d, %d' % (R.sCSO, t5, 4608 * 4))
    a('s_lshl_b32 s%d, s%d, 8' % (t5, t4))
    a('s_add_u32 s%d, s%d, s%d' % (R.sCSO, R.sCSO, t5))
    a('s_add_u32 s%d, s%d, 0x%x' % (R.sCSO, R.sCSO, CS_OFF))
    a('s_mov_b32 s%d, %d' % (R.sSRC + 2, D * F * 2))
    a('v_mul_u32_u24 v%d, 9216, v%d' % (R.vPS, vt))
    a('v_add_u32 v%d, v%d, v%d' % (R.vPS, R.vPS, vt + 1))
    a('v_mul_u32_u24 v%d, 36864, v%d' % (R.vPD, vt + 2))
    a('v_add_u32 v%d, v%d, v%d' % (R.vPD, R.vPD, vt + 3))
    a('v_mov_b32 v%d, 0x40000000' % R.vPF)
    a('s_branch PK_SET')
    a.label('PK_NOT1')
    a('s_mov_b32 s%d, 0' % (R.sCS + 2))
    a('s_mov_b32 s%d, 0' % R.sCSO)
    a('s_cmp_lt_u32 s%d, %d' % (J, NJ2))
    a('s_cbranch_scc0 PK_NOT2')
    a('s_sub_u32 s%d, s%d, %d' % (t2, J, NJ1))
    a('s_mul_hi_u32 s%d, s%d, 0x%x' % (t3, t2, (2 ** 32 + 8) // 9))
    a('s_mul_i32 s%d, s%d, 9' % (t4, t3))
    a('s_sub_u32 s%d, s%d, s%d' % (t4, t2, t4))
    a('s_mul_i32 s%d, s%d, %d' % (R.sSO, t3, 64 * 1152))
    a('s_lshl_b32 s%d, s%d, 7' % (t5, t4))
    a('s_add_u32 s%d, s%d, s%d' % (R.sSO, R.sSO, t5))
    a('s_mul_hi_u32 s%d, s%d, 0x%x' % (t1, t3, (2 ** 32 + 17) // 18))
    a('s_mul_i32 s%d, s%d, 18' % (t5, t1))
    a('s_sub_u32 s%d, s%d, s%d' % (t5, t3, t5))
    a('s_mul_i32 s%d, s%d, 144' % (t1, t1))
    a('s_lshl_b32 s%d, s%d, 1' % (t5, t5))
    a('s_add_u32 s%d, s%d, s%d' % (t1, t1, t5))
    a('s_mul_i32 s%d, s%d, 9216' % (R.sDO, t1))
    a('s_add_u32 s%d, s%d, 0x%x' % (R.sDO, R.sDO, P2_OFF))
    a('s_mov_b32 s%d, 4608' % R.sSLO)
    a('s_mov_b32 s%d, 23040' % R.sSHI)
    a('s_mov_b32 s%d, 8448' % R.sDHI)
    a('s_mov_b32 s%d, %d' % (R.sSRC + 2, D * F * 2))
    a('v_lshrrev_b32 v%d, 2, v%d' % (R.vPS, vt))
    a('v_and_b32 v%d, 3, v%d' % (R.vPD, vt))
    a('v_lshl_add_u32 v%d, v%d, 4, v%d' % (R.vPS, R.vPS, R.vPD))
    a('v_mul_u32_u24 v%d, 1152, v%d' % (R.vPS, R.vPS))
    a('v_add_u32 v%d, v%d, v%d' % (R.vPS, R.vPS, vt + 1))
    a('s_lshl_b32 s%d, s%d, 2' % (t4, t4))
    a('v_add_u32 v%d, s%d, v%d' % (vt + 2, t4, vt + 2))
    a('v_mul_u32_u24 v%d, 7282, v%d' % (vt, vt + 2))
    a('v_lshrrev_b32 v%d, 16, v%d' % (vt, vt))
    a('v_mul_u32_u24 v%d, 9, v%d' % (vt + 1, vt))
    a('v_sub_u32 v%d, v%d, v%d' % (vt + 2, vt + 2, vt + 1))
    a('v_mul_u32_u24 v%d, %d, v%d' % (R.vPD, 36 * 9216, vt))
    a('v_lshl_add_u32 v%d, v%d, 10, v%d' % (R.vPD, vt + 2, R.vPD))
    a('v_add_u32 v%d, v%d, v%d' % (R.vPD, R.vPD, vt + 3))
    a('v_mov_b32 v%d, 0x40000000' % R.vPF)
    a('s_branch PK_SET')
    a.label('PK_NOT2')
    a('s_sub_u32 s%d, s%d, %d' % (t2, J, NJ2))
    a('s_mul_hi_u32 s%d, s%d, 0x%x' % (t3, t2, (2 ** 32 + 8) // 9))
    a('s_mul_i32 s%d, s%d, 9' % (t4, t3))
    a('s_sub_u32 s%d, s%d, s%d' % (t4, t2, t4))
    a('s_mul_i32 s%d, s%d, %d' % (R.sSO, t3, 64 * 1152))
    a('s_lshl_b32 s%d, s%d, 7' % (t5, t4))
    a('s_add_u32 s%d, s%d, s%d' % (R.sSO, R.sSO, t5))
    a('s_mul_i32 s%d, s%d, %d' % (R.sDO, t4, 4 * 18432))
    a('s_lshl_b32 s%d, s%d, 11' % (t5, t3))
    a('s_add_u32 s%d, s%d, s%d' % (R.sDO, R.sDO, t5))
    a('s_add_u32 s%d, s%d, 0x%x' % (R.sDO, R.sDO, WS_P3 - WS_P1))
    a('s_mov_b32 s%d, %d' % (R.sSLO, 8 * 1152))
    a('s_mov_b32 s%d, %d' % (R.sSHI, 8 * 1152))
    a('s_mov_b32 s%d, 256' % R.sDHI)
    a('s_mov_b32 s%d, %d' % (R.sSRC + 2, D * D * 2))
    a('v_mul_u32_u24 v%d, 1152, v%d' % (R.vPS, vt))
    a('v_add_u32 v%d, v%d, v%d' % (R.vPS, R.vPS, vt + 1))
    a('v_mul_u32_u24 v%d, 18432, v%d' % (R.vPD, vt + 2))
    a('v_add_u32 v%d, v%d, v%d' % (R.vPD, R.vPD, vt + 3))
    a('v_mov_b32 v%d, 0x40000000' % R.vPF)
    a('s_cmp_lt_u32 s%d, 81' % t2)
    a('s_cbranch_scc1 PK_SET')
    a('s_mov_b32 s%d, 0' % (R.sSRC + 2))
    a('s_mov_b32 s%d, 0' % (R.sDST + 2))
    for r in (R.sSO, R.sDO, R.sSLO, R.sSHI, R.sDHI): a('s_mov_b32 s%d, 0' % r)
    a.label('PK_SET')
    a('v_mov_b32 v%d, 0' % R.vCS)

def touch(a):
    a('buffer_load_dword v%d, v%d, s[96:99], 0 offen' % (R.vPW, R.vPF))

def load(a, st, hi_code):
    if not NOLD: a('buffer_load_dwordx4 v[%d:%d], v%d, s[%d:%d], s%d offen' % (R.vSET[st], R.vSET[st] + 3, R.vPS, R.sSRC, R.sSRC + 3, R.sSO))
    t = T[1]
    hi_code(a)
    a('s_cselect_b32 s%d, s%d, s%d' % (t, R.sSHI, R.sSLO))
    a('s_add_u32 s%d, s%d, s%d' % (R.sSO, R.sSO, t))

def partA(a, st, hi_code, last_code=None):
    d = R.vDAT
    def ld():
        if last_code: last_code(a)
        load(a, st, hi_code)
    if NODS: return [ld]
    if TIMEW:
        def tw():
            a('s_memtime s[96:97]'); a('s_waitcnt lgkmcnt(0)')
            a('s_waitcnt vmcnt(3)')
            a('s_memtime s[98:99]'); a('s_waitcnt lgkmcnt(0)')
            a('s_sub_u32 s100, s98, s96')
            a('s_add_u32 s%d, s%d, s100' % (72 + 2 * st, 72 + 2 * st))
            a('s_max_u32 s70, s70, s100')
        return [tw, lambda: a('ds_write_b128 v%d, v[%d:%d]' % (R.vPW, R.vSET[st], R.vSET[st] + 3)),
            lambda: a('ds_read_b64_tr_b16 v[%d:%d], v%d' % (d, d + 1, R.vPR)),
            lambda: a('ds_read_b64_tr_b16 v[%d:%d], v%d offset:512' % (d + 2, d + 3, R.vPR)),
            ld]
    return [lambda: a('ds_write_b128 v%d, v[%d:%d]' % (R.vPW, R.vSET[st], R.vSET[st] + 3)),
            lambda: a('ds_read_b64_tr_b16 v[%d:%d], v%d' % (d, d + 1, R.vPR)),
            lambda: a('ds_read_b64_tr_b16 v[%d:%d], v%d offset:512' % (d + 2, d + 3, R.vPR)),
            ld]

def partB(a, hi_code):
    d = R.vDAT
    out = []
    for r in range(0 if NODOT else 4):
        out.append(lambda r=r: a('v_dot2_f32_bf16 v%d, v%d, v%d, v%d' % (R.vCS, d + r, R.vONE, R.vCS)))
    if not NOST: out.append(lambda: a('buffer_store_dwordx4 v[%d:%d], v%d, s[%d:%d], s%d offen %s' % (d, d + 3, R.vPD, R.sDST, R.sDST + 3, R.sDO, PMOD)))
    def adv():
        u = T[2]
        hi_code(a)
        a('s_cselect_b32 s%d, s%d, 256' % (u, R.sDHI))
        a('s_add_u32 s%d, s%d, s%d' % (R.sDO, R.sDO, u))
    out.append(adv)
    return out

def finish(a, vLANE, vt):
    a('v_lshlrev_b32 v%d, 2, v%d' % (vt, vLANE))
    a('buffer_store_dword v%d, v%d, s[%d:%d], s%d offen' % (R.vCS, vt, R.sCS, R.sCS + 3, R.sCSO))

def dma_issue(a, hi_code):
    a('s_mov_b32 m0, s%d' % R.sSCR)
    t = T[1]
    hi_code(a)
    a('buffer_load_dwordx4 v%d, s[%d:%d], s%d offen lds' % (R.vPS, R.sSRC, R.sSRC + 3, R.sSO), tag='pk')
    a('s_cselect_b32 s%d, s%d, s%d' % (t, R.sSHI, R.sSLO))
    a('s_add_u32 s%d, s%d, s%d' % (R.sSO, R.sSO, t))

def dmaA(a):
    d = R.vDAT
    return [lambda: a.wait_vm('pk'),
            lambda: a('ds_read_b64_tr_b16 v[%d:%d], v%d' % (d, d + 1, R.vPR)),
            lambda: a('ds_read_b64_tr_b16 v[%d:%d], v%d offset:512' % (d + 2, d + 3, R.vPR))]

def dmaB(a, src_hi, dst_hi, last_code=None):
    d = R.vDAT
    out = []
    for r in range(4):
        out.append(lambda r=r: a('v_dot2_f32_bf16 v%d, v%d, v%d, v%d' % (R.vCS, d + r, R.vONE, R.vCS)))
    def nxt():
        if last_code: last_code(a)
        dma_issue(a, src_hi)
    out.append(nxt)
    out.append(lambda: a('buffer_store_dwordx4 v[%d:%d], v%d, s[%d:%d], s%d offen %s' % (d, d + 3, R.vPD, R.sDST, R.sDST + 3, R.sDO, PMOD)))
    def adv():
        u = T[2]
        dst_hi(a)
        a('s_cselect_b32 s%d, s%d, 256' % (u, R.sDHI))
        a('s_add_u32 s%d, s%d, s%d' % (R.sDO, R.sDO, u))
    out.append(adv)
    return out
```

```python
from asmgen import *
from common import *
import common
from f1a import Side, emit
from f2b import gen_red, rstd2_code
WSTG = 18432
STG = WSTG + 16384
LDS_F2 = 4 * STG
ACC = 16
HS = 88
FR = 120
NB = 12
L = 10
vL16, vRB0, vRB1, vHB0, vHB1, vT = 1, 2, 3, 4, 5, 6
NS = 18
P_SIZE = WS_PEND - WS_P1
H_SIZE = WS_PART - WS_HB
NOW = False
NOH = False
FUSE = True
SPIN = 200000
STMOD = 'sc1'
LDMOD = 'sc1'
WBL2 = False
NREC = 9
DSET = [[0, 1, 2], [3, 4], [5, 6], [7, 8]]
DMASK = [sum(1 << d for d in s_) for s_ in DSET]
vRS, vHA, vOA, vHR = 8, 10, 11, 168
XB_SIZE = 256 * 4 * 9 * 1024
TOUCH = False
SAMEADDR = 0
NODMA = 0
UNIF = 0
NOBAR = 0

def acc(dt, tt): return ACC + 4 * (2 * dt + tt)
def hreg(par, m, tt): return HS + 16 * par + 8 * m + 4 * tt

def read(a, par, i):
    g = par * NS + i
    fr = FR + 4 * (g % NB)
    a('ds_read_b128 v[%d:%d], v%d offset:%d' % (fr, fr + 3, vRB1 if par else vRB0, i * 1024), tag='r%d' % (g % NB))

def hreads(par):
    return [('ds_read_b128 v[%d:%d], v%d offset:%d' % (hreg(par, m, tt), hreg(par, m, tt) + 3, vHB1 if par else vHB0, (2 * m + tt) * 1024), 'h') for m in range(2) for tt in range(2)]

BARPOS = 12
PRE = 8
def unif_plan():
    order = [('w', 0), ('h', 0), ('h', 1)] + [('w', j) for j in range(1, 9)] + [('h', 2), ('h', 3)] + [('w', j) for j in range(9, 18)]
    if UNIF == 2:
        order = [('w', 0), ('h', 0), ('h', 1)] + [('w', j) for j in range(1, 6)] + [('h', 2), ('w', 6), ('h', 3)] + [('w', j) for j in range(7, 18)]
    out = []
    for k, (ty, j) in enumerate(order):
        if UNIF <= 2: sl = -2 * (NS - BARPOS) + k + k // 3
        elif UNIF == 3: sl = -2 * (NS - BARPOS) + k + k // 4
        else: sl = -2 * (NS - BARPOS) + k + k // 2
        out.append((sl, ty, j))
    return out

def stage(a, par):
    planA = {i: [] for i in range(NS)}; planB = {i: [] for i in range(NS)}
    plan = [(0, 'A', 8), (0, 'B', 9), (1, 'A', 10), (1, 'B', 11), (2, 'A', 12), (2, 'B', 13), (3, 'B', 14), (4, 'B', 15), (5, 'B', 16), (6, 'B', 17)]
    for st, sl, fr_ in plan:
        (planA if sl == 'A' else planB)[st].append(('w', par, fr_))
    nxt = [('w', 1 - par, 0), ('w', 1 - par, 1), ('h', 1 - par, 0), ('w', 1 - par, 2), ('h', 1 - par, 1), ('w', 1 - par, 3),
           ('w', 1 - par, 4), ('w', 1 - par, 5), ('h', 1 - par, 2), ('w', 1 - par, 6), ('h', 1 - par, 3), ('w', 1 - par, 7)]
    for i in range(BARPOS, NS):
        planA[i].append(nxt.pop(0)); planB[i].append(nxt.pop(0))
    if UNIF:
        planA = {i: [] for i in range(NS)}; planB = {i: [] for i in range(NS)}
        for sl, ty, j in unif_plan():
            if sl < 0:
                sl += 2 * NS; p_ = 1 - par
            else: p_ = par
            (planA if sl % 2 == 0 else planB)[sl // 2].append((ty, p_, j))
    def do(x):
        if x[0] == 'w': read(a, x[1], x[2])
        else: emit(a, hreads(x[1])[x[2]])
    for i in range(NS):
        m, dt = i // 9, i % 9
        g = par * NS + i
        fr = FR + 4 * (g % NB)
        if i == BARPOS:
            a.wait_lgkm('r%d' % ((par * NS + NS - 1) % NB))
            if not NOBAR: a('s_barrier')
        a(mfma16(acc(dt, 0), fr, hreg(par, m, 0)))
        for x in planA[i]: do(x)
        if not planA[i] and i % 2 == 1 and i < BARPOS - 2:
            a.wait_lgkm('r%d' % ((g + 2) % NB))
        if par == 1 and i == 10:
            pass
        a(mfma16(acc(dt, 1), fr, hreg(par, m, 1)))
        for x in planB[i]: do(x)
        if par == 0 and i == 10:
            a('v_add_u32 v%d, %d, v%d' % (vRB1, STG, vRB0))
        if par == 0 and i == 11:
            a('v_add_u32 v%d, %d, v%d' % (vHB1, STG, vHB0))
        if par == 1 and i == 9:
            a('s_xor_b32 s22, s22, %d' % (2 * STG))
        if par == 1 and i == 10:
            a('v_add_u32 v%d, s22, v%d' % (vRB0, vL16))
        if par == 1 and i == 11:
            a('v_add_u32 v%d, s23, v%d' % (vHB0, vRB0))

def dma(a, tag, lab):
    if NODMA:
        a('s_add_u32 s21, s21, %d' % WSTG)
        a('s_add_u32 s35, s35, 4096')
        return
    a('s_add_u32 m0, s33, s47')
    for q in range(4):
        a('buffer_load_dwordx4 v%d, s[24:27], s21 offen offset:%d lds' % (vL16, q * 1024), tag=tag)
    a('s_add_u32 m0, s33, s48')
    for q in range(4):
        a('buffer_load_dwordx4 v%d, s[36:39], s35 offen offset:%d lds' % (vL16, q * 1024), tag=tag)
    a('s_cmp_ge_u32 s16, 2')
    a('s_cbranch_scc1 %s' % lab)
    a.opt_begin()
    a('s_add_u32 s34, s33, s47')
    a('s_add_u32 m0, s34, 4096')
    a('s_add_u32 s34, s21, 4096')
    a('buffer_load_dwordx4 v%d, s[24:27], s34 offen lds' % vL16, tag=tag)
    a.opt_end()
    a.label(lab)
    a('s_add_u32 s21, s21, %d' % WSTG)
    a('s_add_u32 s35, s35, 4096')

def gen_f2(name='f2_kernel'):
    a = Asm()
    stamp(a, 0); stamp_rt(a, 9)
    a('s_load_dwordx2 s[12:13], s[0:1], 88')
    a('s_load_dwordx2 s[4:5], s[0:1], 72')
    a('s_cmp_ge_u32 s2, 256')
    a('s_cbranch_scc1 F2_END')
    a('v_and_b32 v%d, 63, v0' % vT)
    a('v_lshrrev_b32 v%d, 6, v0' % (vT + 1))
    a('v_readfirstlane_b32 s17, v%d' % (vT + 1))
    a('v_lshlrev_b32 v%d, 4, v%d' % (vL16, vT))
    a('s_and_b32 s16, s17, 3')
    a('s_and_b32 s33, s2, 7')
    a('s_lshr_b32 s34, s2, 3')
    a('s_and_b32 s19, s33, 3')
    a('s_lshr_b32 s33, s33, 2')
    a('s_lshl_b32 s33, s33, 3')
    a('s_lshr_b32 s20, s34, 2')
    a('s_add_u32 s20, s20, s33')
    a('s_and_b32 s18, s34, 3')
    a('s_cmp_lt_u32 s17, 4')
    a('s_cbranch_scc1 F2_CONS')
    t0 = a.finish()

    a = Asm()
    a('s_lshl_b32 s35, s20, 2')
    a('s_add_u32 s35, s35, s16')
    a('s_mul_i32 s35, s35, 144')
    a('s_mul_i32 s33, s19, 36')
    a('s_add_u32 s35, s35, s33')
    a('s_lshl_b32 s35, s35, 11')
    a('s_mul_i32 s47, s16, 5')
    a('s_cmp_eq_u32 s16, 3')
    a('s_cselect_b32 s33, 1, 0')
    a('s_sub_u32 s47, s47, s33')
    a('s_lshl_b32 s47, s47, 10')
    a('s_lshl_b32 s48, s16, 12')
    a('s_add_u32 s48, s48, %d' % WSTG)
    a('s_lshl_b32 s21, s19, 2')
    a('s_add_u32 s21, s21, s18')
    a('s_mul_i32 s21, s21, %d' % (36 * 9216))
    a('s_add_u32 s21, s21, s47')
    a('s_add_u32 s21, s21, 0x%x' % (WS_P2 - WS_P1))
    if SAMEADDR & 1:
        a('s_mul_i32 s35, s16, %d' % (144 * 2048))
    if SAMEADDR & 2:
        a('s_add_u32 s21, s47, 0x%x' % (WS_P2 - WS_P1))
    a('s_waitcnt lgkmcnt(0)')
    srd_off(a, 24, 12, 13, WS_P1, P_SIZE)
    srd_off(a, 36, 12, 13, WS_HB, H_SIZE)
    a('s_mov_b32 s50, 0x%x' % (0 if NOW else P_SIZE))
    a('s_mov_b32 s51, 0x%x' % (0 if NOH else H_SIZE))
    a('s_mov_b32 s33, 0')
    dma(a, 'p0', 'F2_D0')
    a('s_mov_b32 s33, %d' % STG)
    dma(a, 'w1', 'F2_D1')
    stamp(a, 1)
    a.wait_vm('p0')
    stamp(a, 2)
    a('s_barrier')
    a('s_mov_b32 s33, %d' % (2 * STG))
    dma(a, 'w2', 'F2_D2')
    a('s_mov_b32 s33, %d' % (3 * STG))
    dma(a, 'w3', 'F2_D2B')
    a('s_mov_b32 s33, 0')
    a('s_mov_b32 s49, 0')
    a.loop_begin('F2_PLOOP')
    a('s_waitcnt vmcnt(16)')
    if not NOBAR: a('s_barrier')
    a('s_cmp_le_u32 s49, 13')
    a('s_cselect_b32 s26, s50, 0')
    a('s_cselect_b32 s38, s51, 0')
    dma(a, 'wx', 'F2_D3')
    a('s_add_u32 s33, s33, %d' % STG)
    a('s_cmp_eq_u32 s33, %d' % (4 * STG))
    a('s_cselect_b32 s33, 0, s33')
    a('s_add_u32 s49, s49, 1')
    a('s_cmp_le_u32 s49, 17')
    a.loop_end('s_cbranch_scc1 F2_PLOOP')
    stamp(a, 3)
    stamp_store(a, 6, 4, 's17')
    a('s_waitcnt vmcnt(0)')
    a.label('F2_END')
    a('s_endpgm')
    t1 = a.finish()

    a = Asm()
    a.label('F2_CONS')
    a('v_mov_b32 v%d, v%d' % (vRB0, vL16))
    a('v_add_u32 v%d, %d, v%d' % (vRB1, STG, vL16))
    a('s_lshl_b32 s23, s16, 12')
    a('s_add_u32 s23, s23, %d' % WSTG)
    a('v_add_u32 v%d, s23, v%d' % (vHB0, vL16))
    a('v_add_u32 v%d, %d, v%d' % (vHB1, STG, vHB0))
    for r in range(72): a('v_mov_b32 v%d, 0' % (ACC + r))
    a('s_mov_b32 s22, 0')
    a('s_waitcnt lgkmcnt(0)')
    srd_off(a, 40, 12, 13, WS_PART, WS_FLAG - WS_PART)
    if FUSE:
        srd_off(a, 56, 12, 13, WS_H, WS_HB - WS_H)
        srd(a, 52, 4, 5, S * D * 2)
        srd_off(a, 60, 12, 13, WS_FLAG, 256 * 128)
        a('v_and_b32 v%d, 15, v%d' % (vT + 7, vT))
        a('v_lshrrev_b32 v%d, 4, v%d' % (vT + 8, vT))
        a('s_lshl_b32 s46, s20, 2')
        a('s_add_u32 s46, s46, s16')
        a('s_lshl_b32 s33, s46, 5')
        a('v_add_u32 v%d, s33, v%d' % (vT + 9, vT + 7))
        a('v_mul_u32_u24 v%d, 96, v%d' % (180, vT + 9))
        a('v_mul_u32_u24 v%d, 24, v%d' % (181, vT + 8))
        a('v_add_u32 v180, v180, v181')
        a('s_mov_b32 s33, 0x%x' % (WS_ST - WS_H))
        for tt in range(2):
            a('buffer_load_dwordx4 v[%d:%d], v180, s[56:59], s33 offen offset:%d' % (184 + 6 * tt, 187 + 6 * tt, tt * 1536))
            a('buffer_load_dwordx2 v[%d:%d], v180, s[56:59], s33 offen offset:%d' % (188 + 6 * tt, 189 + 6 * tt, tt * 1536 + 16))
        a('v_lshrrev_b32 v%d, 1, v%d' % (vHA, vT + 8))
        a('v_lshlrev_b32 v%d, 8, v%d' % (vHA, vHA))
        a('v_lshl_add_u32 v%d, v%d, 4, v%d' % (vHA, vT + 7, vHA))
        a('v_and_b32 v181, 1, v%d' % (vT + 8))
        a('v_lshl_add_u32 v%d, v181, 3, v%d' % (vHA, vHA))
        a('v_mul_u32_u24 v%d, 1152, v%d' % (vOA, vT + 9))
        a('v_lshl_add_u32 v%d, v%d, 3, v%d' % (vOA, vT + 8, vOA))
        a('s_lshl_b32 s45, s19, 1')
        a('s_add_u32 s45, s45, 1')
        a('s_cmp_eq_u32 s19, 0')
        a('s_cselect_b32 s45, 0, s45')
        a('s_mul_i32 s44, s46, 36864')
        a('s_mul_i32 s33, s18, 9')
        a('s_lshl_b32 s33, s33, 9')
        a('s_add_u32 s44, s44, s33')
        a('s_lshl_b32 s33, s45, 9')
        a('s_add_u32 s33, s33, s44')
        a('s_add_u32 s34, s33, 18432')
        for k in range(3):
            a('buffer_load_dwordx2 v[%d:%d], v%d, s[56:59], s33 offen offset:%d' % (vHR + 4 * k, vHR + 4 * k + 1, vHA, k * 512))
            a('buffer_load_dwordx2 v[%d:%d], v%d, s[56:59], s34 offen offset:%d' % (vHR + 4 * k + 2, vHR + 4 * k + 3, vHA, k * 512))
        for tt in range(2):
            rstd2_code(a, None, None, 184 + 6 * tt, 181, None)
            a('v_mov_b32 v%d, v%d' % (vRS + tt, 184 + 6 * tt))
    if TOUCH:
        srd_off(a, 24, 12, 13, WS_P1, P_SIZE)
        srd_off(a, 36, 12, 13, WS_HB, H_SIZE)
        a('v_lshlrev_b32 v%d, 7, v%d' % (vT + 1, vT))
        a('s_lshl_b32 s35, s20, 2')
        a('s_add_u32 s35, s35, s16')
        a('s_mul_i32 s35, s35, 144')
        a('s_mul_i32 s33, s19, 36')
        a('s_add_u32 s35, s35, s33')
        a('s_lshl_b32 s35, s35, 11')
        a('s_lshl_b32 s33, s18, 13')
        a('s_add_u32 s35, s35, s33')
        a('s_lshl_b32 s21, s19, 2')
        a('s_add_u32 s21, s21, s18')
        a('s_mul_i32 s21, s21, %d' % (36 * 9216))
        a('s_add_u32 s21, s21, 0x%x' % (WS_P2 - WS_P1))
        a('s_and_b32 s33, s20, 7')
        a('s_lshl_b32 s33, s33, 13')
        a('s_add_u32 s21, s21, s33')
        a('s_lshl_b32 s33, s16, 16')
        a('s_add_u32 s21, s21, s33')
        a('buffer_load_dword v%d, v%d, s[24:27], s21 offen' % (vT + 2, vT + 1))
        a('buffer_load_dword v%d, v%d, s[36:39], s35 offen' % (vT + 3, vT + 1))
        a('s_add_u32 s35, s35, 32768')
        a('buffer_load_dword v%d, v%d, s[36:39], s35 offen' % (vT + 4, vT + 1))
        a('s_add_u32 s21, s21, %d' % (4 * 65536))
        a('s_add_u32 s35, s35, 32768')
        a('s_cmp_ge_u32 s16, 2')
        a('s_cselect_b32 s26, 0, s26')
        a('buffer_load_dword v%d, v%d, s[24:27], s21 offen' % (vT + 5, vT + 1))
        a('s_cmp_eq_u32 s18, 0')
        a('s_cselect_b32 s38, s38, 0')
        a('buffer_load_dword v%d, v%d, s[36:39], s35 offen' % (vT + 6, vT + 1))
    stamp(a, 1)
    a('s_barrier')
    if UNIF:
        for sl, ty, j in unif_plan():
            if sl < 0:
                if ty == 'w': read(a, 0, j)
                else: emit(a, hreads(0)[j])
    else:
        for x in hreads(0): emit(a, x)
        for i in range(PRE): read(a, 0, i)
    a('s_mov_b32 s49, 0')
    a.loop_begin('F2_LOOP')
    stage(a, 0)
    stage(a, 1)
    a('s_add_u32 s49, s49, 1')
    a('s_cmp_le_u32 s49, 8')
    a.loop_end('s_cbranch_scc1 F2_LOOP')
    stamp(a, 2)
    if not FUSE:
        a('s_lshl_b32 s34, s2, 2')
        a('s_add_u32 s34, s34, s16')
        a('s_mul_i32 s34, s34, 18432')
        for i in range(18):
            a('buffer_store_dwordx4 v[%d:%d], v%d, s[40:43], s34 offen offset:%d' % (ACC + 4 * i, ACC + 4 * i + 3, vL16, (i % 4) * 1024))
            if i % 4 == 3: a('s_add_u32 s34, s34, 4096')
        stamp(a, 3)
        stamp_store(a, 4, 4, 's17')
        a('s_endpgm')
        t2 = a.finish()
    else:
        a('s_nop 7')
        a('s_lshl_b32 s35, s20, 2')
        a('s_add_u32 s35, s35, s18')
        a('s_lshl_b32 s35, s35, 2')
        a('s_add_u32 s35, s35, s16')
        a('s_mul_i32 s34, s35, %d' % (4 * 9216))
        a('s_lshl_b32 s35, s35, 7')
        a('s_mul_i32 s47, s18, 288')
        a('v_mov_b32 v12, 0')
        for s_ in range(1, 4):
            a('s_cmp_eq_u32 s19, %d' % s_)
            a('s_cbranch_scc1 F2_EPI%d' % s_)
        t2 = a.finish()
        for s_ in range(4):
            t2 += epi_variant(s_)
        t2 += rescue()
    return kernel_header(name) + t0 + t1 + t2, kernel_desc(name, 256, 102), ((256, 512, LDS_F2))

REC = 88
def put_record(a, dt, s_, r):
    for tt in range(2):
        A = acc(dt, tt)
        a('v_cvt_pk_bf16_f32 v%d, v%d, v%d' % (r + 2 * tt, A, A + 1))
        a('v_cvt_pk_bf16_f32 v%d, v%d, v%d' % (r + 2 * tt + 1, A + 2, A + 3))
    off = (s_ * 9 + dt) * 1024
    a('s_add_u32 s33, s34, %d' % (off & ~4095))
    a('buffer_store_dwordx4 v[%d:%d], v%d, s[40:43], s33 offen offset:%d %s' % (r, r + 3, vL16, off & 4095, STMOD))

def word_op(a, op, val):
    a('v_mov_b32 v13, %s' % val)
    a('s_mov_b64 exec, 1')
    a('buffer_atomic_%s v13, v12, s[60:63], s35 offen sc0 sc1' % op)
    a('s_waitcnt vmcnt(0)')
    a('s_mov_b64 exec, -1')
    a('v_readfirstlane_b32 s36, v13')

def finalize(a, dt, tt, srcs, hr, own, t):
    first = own is None
    S_ = own if own is not None else t + 4
    for k, r in enumerate(srcs):
        a('v_lshlrev_b32 v%d, 16, v%d' % (t, r))
        a('v_and_b32 v%d, 0xffff0000, v%d' % (t + 1, r))
        a('v_lshlrev_b32 v%d, 16, v%d' % (t + 2, r + 1))
        a('v_and_b32 v%d, 0xffff0000, v%d' % (t + 3, r + 1))
        for j in range(4):
            if first and k == 0: a('v_mov_b32 v%d, v%d' % (S_ + j, t + j))
            else: a('v_add_f32 v%d, v%d, v%d' % (S_ + j, S_ + j, t + j))
    a('v_lshlrev_b32 v%d, 16, v%d' % (t, hr))
    a('v_and_b32 v%d, 0xffff0000, v%d' % (t + 1, hr))
    a('v_lshlrev_b32 v%d, 16, v%d' % (t + 2, hr + 1))
    a('v_and_b32 v%d, 0xffff0000, v%d' % (t + 3, hr + 1))
    for j in range(4):
        a('v_fma_f32 v%d, v%d, v%d, v%d' % (t + j, S_ + j, vRS + tt, t + j))
    a('v_cvt_pk_bf16_f32 v%d, v%d, v%d' % (t, t, t + 1))
    a('v_cvt_pk_bf16_f32 v%d, v%d, v%d' % (t + 1, t + 2, t + 3))

def epi_variant(s_):
    a = Asm()
    a.label('F2_EPI%d' % s_)
    own = DSET[s_]
    k = 0
    for dt in range(9):
        if dt in own or k >= NREC: continue
        put_record(a, dt, s_, REC + 4 * k); k += 1
    stamp(a, 1)
    if WBL2: a('buffer_wbl2 sc1')
    a('s_waitcnt vmcnt(0)')
    stamp(a, 3)
    word_op(a, 'add', '1')
    a('s_mov_b32 s38, 0')
    a('s_and_b32 s37, s36, 7')
    a('s_cmp_eq_u32 s37, 3')
    a('s_cbranch_scc0 F2_POLL%d' % s_)
    a('s_lshr_b32 s38, s36, 4')
    a('s_branch F2_GO%d' % s_)
    t = a.finish()
    a = Asm()
    a.label('F2_POLL%d' % s_)
    a('s_mov_b32 s39, %d' % SPIN)
    a.label('F2_PL%d' % s_)
    a('s_cmp_eq_u32 s39, 0')
    a('s_cbranch_scc1 F2_TMO%d' % s_)
    a('s_sub_u32 s39, s39, 1')
    a('buffer_load_dword v13, v12, s[60:63], s35 offen sc0 sc1')
    a('s_waitcnt vmcnt(0)')
    a('v_readfirstlane_b32 s36, v13')
    a('s_and_b32 s37, s36, 7')
    a('s_cmp_eq_u32 s37, 4')
    a('s_cbranch_scc0 F2_PL%d' % s_)
    a('s_branch F2_GO%d' % s_)
    t += a.finish()
    a = Asm()
    a.label('F2_TMO%d' % s_)
    for k, dt in enumerate(own):
        put_record(a, dt, s_, REC + 4 * k)
    a('s_waitcnt vmcnt(0)')
    word_op(a, 'or', str(16 << s_))
    a('s_and_b32 s37, s36, 7')
    a('s_cmp_eq_u32 s37, 4')
    a('s_cbranch_scc1 F2_GO%d' % s_)
    a('s_endpgm')
    t += a.finish()
    a = Asm()
    a.label('F2_GO%d' % s_)
    stamp(a, 4)
    others = [x for x in range(4) if x != s_]
    LD = 88
    for k, dt in enumerate(own):
        for j, o in enumerate(others):
            off = (o * 9 + dt) * 1024
            r = LD + 12 * k + 4 * j
            a('s_add_u32 s33, s34, %d' % (off & ~4095))
            a('buffer_load_dwordx4 v[%d:%d], v%d, s[40:43], s33 offen offset:%d %s' % (r, r + 3, vL16, off & 4095, LDMOD))
    if common.STAMPS:
        a('s_waitcnt vmcnt(0)')
        stamp(a, 2)
    T_ = 128
    n = 0
    for k, dt in enumerate(own):
        for tt in range(2):
            t_ = T_ + 8 * (n % 4); n += 1
            finalize(a, dt, tt, [LD + 12 * k + 4 * j + 2 * tt for j in range(3)], vHR + 4 * k + 2 * tt, acc(dt, tt), t_)
            a('s_add_u32 s33, s47, %d' % (tt * 16 * 1152 + dt * 32))
            a('buffer_store_dwordx2 v[%d:%d], v%d, s[52:55], s33 offen' % (t_, t_ + 1, vOA))
    stamp(a, 5)
    stamp_store(a, 4, 6, 's17')
    a('s_cmp_lg_u32 s38, 0')
    a('s_cbranch_scc1 F2_RESCUE')
    a('s_endpgm')
    t += a.finish()
    return t

def rescue():
    a = Asm()
    a.label('F2_RESCUE')
    a('s_mov_b32 s39, 0')
    for q in range(4):
        a('s_bitcmp1_b32 s38, %d' % q)
        a('s_cselect_b32 s37, %d, 0' % DMASK[q])
        a('s_or_b32 s39, s39, s37')
    a('s_mov_b32 s48, 0')
    t = a.finish()
    a = Asm()
    a.label('F2_RL')
    a('s_bitcmp1_b32 s39, s48')
    a('s_cbranch_scc0 F2_RN')
    a('s_lshl_b32 s33, s48, 10')
    a('s_add_u32 s33, s33, s34')
    for o in range(4):
        a('buffer_load_dwordx4 v[%d:%d], v%d, s[40:43], s33 offen sc1' % (88 + 4 * o, 91 + 4 * o, vL16))
        a('s_add_u32 s33, s33, 9216')
    a('s_lshl_b32 s33, s48, 9')
    a('s_add_u32 s33, s33, s44')
    a('buffer_load_dwordx2 v[104:105], v%d, s[56:59], s33 offen' % vHA)
    a('s_add_u32 s33, s33, 18432')
    a('buffer_load_dwordx2 v[106:107], v%d, s[56:59], s33 offen' % vHA)
    a('s_waitcnt vmcnt(0)')
    for tt in range(2):
        t_ = 128 + 8 * tt
        finalize(a, None, tt, [88 + 4 * o + 2 * tt for o in range(4)], 104 + 2 * tt, None, t_)
        a('s_lshl_b32 s33, s48, 5')
        a('s_add_u32 s33, s33, s47')
        a('s_add_u32 s33, s33, %d' % (tt * 16 * 1152))
        a('buffer_store_dwordx2 v[%d:%d], v%d, s[52:55], s33 offen' % (t_, t_ + 1, vOA))
    a('s_waitcnt vmcnt(0)')
    a.label('F2_RN')
    a('s_add_u32 s48, s48, 1')
    a('s_cmp_lt_u32 s48, 9')
    a('s_cbranch_scc1 F2_RL')
    a('s_endpgm')
    t += a.finish()
    return t
```

```python
from asmgen import *
from common import *
import common
import f1a
from f1a import Side, emit, xreg, dma_groups, epilogue, csreads, STG, CT_LDS, X, ACC, FR, NB, L, CSR, REC, vL16, vNMU, vRB0, vRB1, vCTA, vT, NSTEP, P1_SIZE
LDS_FF = CT_LDS + 3072
H_SIZE = WS_PART - WS_HB
STPOS = 16
XPRE = 8
HMOD = 'sc1'
SPIN = 200000
SPINF = 200000
FLAG_BYTES = 520 * 128
PW_OFF = 256 * 128
ACC2 = 16
HS = 88
WSTG = 18432
NS = 18
BARPOS = 12
PRE = 8
vHB0, vHB1 = 7, 8
vOA, vHA, vW = 11, 12, 13
vRS = 14
vHR = 160
LD = 88
T_ = 128
NREC = 9
DSET = [[0, 1, 2], [3, 4], [5, 6], [7, 8]]
DMASK = [sum(1 << d for d in s_) for s_ in DSET]
sC, sR, sJ, sS = 18, 19, 20, 28
sPW, sAW, sXB, sOC, sHB_, sHR = 56, 57, 58, 59, 30, 31
SRD_XB, SRD_HF, SRD_HS, SRD_OUT, SRD_W = 24, 36, 40, 52, 60
STMOD = 'sc1'
LDMOD = 'sc1'

def acc2(dt, tt): return ACC2 + 4 * (2 * dt + tt)
def hreg(par, m, tt): return HS + 16 * par + 8 * m + 4 * tt

def read1(a, par, i):
    fr = FR + 4 * (i % NB)
    a('ds_read_b128 v[%d:%d], v%d offset:%d' % (fr, fr + 3, vRB1 if par else vRB0, i * 1024), tag='r%d' % (i % NB))

def read2(a, par, i):
    g = par * NS + i
    fr = FR + 4 * (g % NB)
    a('ds_read_b128 v[%d:%d], v%d offset:%d' % (fr, fr + 3, vRB1 if par else vRB0, i * 1024), tag='r%d' % (g % NB))

def hreads(par):
    return [('ds_read_b128 v[%d:%d], v%d offset:%d' % (hreg(par, m, tt), hreg(par, m, tt) + 3, vHB1 if par else vHB0, (2 * m + tt) * 1024), 'h') for m in range(2) for tt in range(2)]

def nmu_code():
    ins = []
    for tt, b in ((0, ACC + 16), (1, ACC + 22)):
        v = vNMU + tt
        ins.append('v_add_f32 v%d, v%d, v%d' % (v, b, b + 2))
        ins.append('v_add_f32 v%d, v%d, v%d' % (vRS + tt, b + 1, b + 3))
        ins.append('v_add_f32 v%d, v%d, v%d' % (v, v, b + 4))
        ins.append('v_add_f32 v%d, v%d, v%d' % (vRS + tt, vRS + tt, b + 5))
        ins.append('v_mov_b32 v%d, v%d' % (vT, v))
        ins.append('s_nop 1')
        ins.append('v_permlane16_swap_b32 v%d, v%d' % (v, vT))
        ins.append('v_add_f32 v%d, v%d, v%d' % (v, v, vT))
        ins.append('v_mov_b32 v%d, v%d' % (vT, v))
        ins.append('s_nop 1')
        ins.append('v_permlane32_swap_b32 v%d, v%d' % (v, vT))
        ins.append('v_add_f32 v%d, v%d, v%d' % (v, v, vT))
        ins.append('v_mul_f32 v%d, %s, v%d' % (v, f32(-1.0 / 576), v))
    return ins

def rstd_code(t):
    ins = []
    for tt in range(2):
        v = vRS + tt
        ins += ['v_mov_b32 v%d, v%d' % (t, v), 's_nop 1', 'v_permlane16_swap_b32 v%d, v%d' % (v, t), 'v_add_f32 v%d, v%d, v%d' % (v, v, t),
                'v_mov_b32 v%d, v%d' % (t, v), 's_nop 1', 'v_permlane32_swap_b32 v%d, v%d' % (v, t), 'v_add_f32 v%d, v%d, v%d' % (v, v, t),
                'v_mul_f32 v%d, %s, v%d' % (v, f32(1.0 / 576), v),
                'v_fma_f32 v%d, -v%d, v%d, v%d' % (v, vNMU + tt, vNMU + tt, v),
                'v_max_f32 v%d, 0, v%d' % (v, v),
                'v_add_f32 v%d, %s, v%d' % (v, f32(EPS), v),
                'v_rcp_f32 v%d, v%d' % (v, v)]
    return ins

def hstores():
    return ['buffer_store_dwordx4 v[%d:%d], v%d, s[%d:%d], s44 offen offset:%d %s' % (REC + 4 * tt, REC + 4 * tt + 3, vL16, SRD_HS, SRD_HS + 3, tt * 1024, HMOD) for tt in range(2)]

def pub_hook(a, cmp_val, lab):
    a('s_cmp_eq_u32 s49, %d' % cmp_val)
    a('s_cbranch_scc1 %s' % lab)
    a.label(lab + '_B')

def pub_inline(a, level, nvm):
    a('s_waitcnt vmcnt(%d)' % nvm)
    a('s_mov_b64 exec, 1')
    a('v_mov_b32 v%d, 0x%x' % (vW, 1 << (8 * (level - 1))))
    a('buffer_atomic_add v%d, off, s[%d:%d], s%d sc1' % (vW, SRD_W, SRD_W + 3, sPW))
    a('s_mov_b64 exec, -1')

def pub_block(lab, level, nvm):
    a = Asm()
    a.label(lab)
    pub_inline(a, level, nvm)
    a('s_branch %s_B' % lab)
    return a.finish()

def stage1(a, par, peeled=False, last=False, pub=None):
    A = ACC + 16 * par
    side = Side()
    first = peeled and par == 0
    barpos = NSTEP - L
    if not first:
        side.add(list(epilogue(1 - par, 1 - par)), 1)
        if par == 0:
            st = hstores()
            side.add([['s_nop 0', st[0]]], STPOS)
            side.add([['s_nop 0', st[1]]], STPOS + 2)
            side.add(['s_add_u32 s44, s44, 8192'], STPOS + 2)
    else:
        xq = list(XLATE)
        side.add(nmu_code(), 28)
    nxt = None
    if last:
        h = hreads(0)
        nxt = {26: ('w', 0), 27: ('w', 1), 28: ('h', 0), 29: ('w', 2), 30: ('h', 1), 31: ('w', 3), 32: ('w', 4), 33: ('w', 5), 34: ('w', 6), 35: ('w', 7)}
    for i in range(NSTEP):
        k, mat = i >> 1, i & 1
        fr = FR + 4 * (i % NB)
        if i == barpos:
            a('s_barrier')
        a(mfma16(A + 8 * mat, fr, xreg(k, 0), '0' if k == 0 else None))
        cap = 2
        if i == barpos and par == 1:
            a('s_xor_b32 s22, s22, %d' % (2 * STG))
            a('v_add_u32 v%d, s22, v%d' % (vRB0, vL16))
            side.add(['v_add_u32 v%d, %d, v%d' % (vRB1, STG, vRB0), 'v_add_u32 v%d, 256, v%d' % (vCTA, vCTA)], i + 1)
            if last: a('v_add_u32 v%d, s23, v%d' % (vHB0, vRB0))
            cap = 0
        if i == barpos + 2:
            side.add(csreads(0 if par else 128), i)
        if last and i == 31: side.add([h[2]], 32); side.add([h[3]], 34)
        if i % 2 == 1:
            a.wait_lgkm('r%d' % ((i + 2) % NB)); cap -= 1
        if first and xq:
            for x in xq.pop(0): a(x)
        if pub is not None and i == 20 and par == 1:
            pub(a); cap = 0
        side.step(a, i, cap)
        a(mfma16(A + 8 * mat + 4, fr, xreg(k, 1), '0' if k == 0 else None))
        j = i + L
        if j < NSTEP: read1(a, par, j)
        elif last:
            ty, ix = nxt[i]
            if ty == 'w': read2(a, 0, ix)
            else: emit(a, h[ix])
        else: read1(a, 1 - par, j - NSTEP)
        side.step(a, i, 1)
    side.flush(a)

def stage2(a, par, first=False, items=None, pub=None):
    planA = {i: [] for i in range(NS)}; planB = {i: [] for i in range(NS)}
    plan = [(0, 'A', 8), (0, 'B', 9), (1, 'A', 10), (1, 'B', 11), (2, 'A', 12), (2, 'B', 13), (3, 'B', 14), (4, 'B', 15), (5, 'B', 16), (6, 'B', 17)]
    for st, sl, fr_ in plan:
        (planA if sl == 'A' else planB)[st].append(('w', par, fr_))
    nxt = [('w', 1 - par, 0), ('w', 1 - par, 1), ('h', 1 - par, 0), ('w', 1 - par, 2), ('h', 1 - par, 1), ('w', 1 - par, 3),
           ('w', 1 - par, 4), ('w', 1 - par, 5), ('h', 1 - par, 2), ('w', 1 - par, 6), ('h', 1 - par, 3), ('w', 1 - par, 7)]
    for i in range(BARPOS, NS):
        planA[i].append(nxt.pop(0)); planB[i].append(nxt.pop(0))
    side = Side()
    if items:
        for x, st in items: side.add([x], st)
    def do(x):
        if x[0] == 'w': read2(a, x[1], x[2])
        else: emit(a, hreads(x[1])[x[2]])
    for i in range(NS):
        m, dt = i // 9, i % 9
        g = par * NS + i
        fr = FR + 4 * (g % NB)
        c0 = '0' if (first and m == 0) else None
        if i == BARPOS:
            a.wait_lgkm('r%d' % ((par * NS + NS - 1) % NB))
            a('s_barrier')
        a(mfma16(acc2(dt, 0), fr, hreg(par, m, 0), c0))
        for x in planA[i]: do(x)
        capA = 1 if planA[i] else 2
        if not planA[i] and i % 2 == 1 and i < BARPOS - 2:
            a.wait_lgkm('r%d' % ((g + 2) % NB)); capA -= 1
        if pub is not None and i == 8:
            pub(a); capA = 0
        side.step(a, i, capA)
        a(mfma16(acc2(dt, 1), fr, hreg(par, m, 1), c0))
        for x in planB[i]: do(x)
        capB = 1 if planB[i] else 2
        if par == 0 and i == 10:
            a('v_add_u32 v%d, %d, v%d' % (vRB1, STG, vRB0)); capB -= 1
        if par == 0 and i == 11:
            a('v_add_u32 v%d, %d, v%d' % (vHB1, STG, vHB0)); capB -= 1
        if par == 1 and i == 9:
            a('s_xor_b32 s22, s22, %d' % (2 * STG))
        if par == 1 and i == 10:
            a('v_add_u32 v%d, s22, v%d' % (vRB0, vL16)); capB -= 1
        if par == 1 and i == 11:
            a('v_add_u32 v%d, s23, v%d' % (vHB0, vRB0)); capB -= 1
        side.step(a, i, capB)
    side.flush(a)

def dma2(a, tag, lab):
    a('s_add_u32 m0, s33, s47')
    for q in range(4):
        a('buffer_load_dwordx4 v%d, s[24:27], s21 offen offset:%d lds' % (vL16, q * 1024), tag=tag)
    a('s_add_u32 m0, s33, s48')
    for q in range(4):
        a('buffer_load_dwordx4 v%d, s[36:39], s35 offen offset:%d lds' % (vL16, q * 1024), tag=tag)
    a('s_cmp_ge_u32 s16, 2')
    a('s_cbranch_scc1 %s' % lab)
    a.opt_begin(share='w5')
    a('s_add_u32 s34, s33, s47')
    a('s_add_u32 m0, s34, 4096')
    a('s_add_u32 s34, s21, 4096')
    a('buffer_load_dwordx4 v%d, s[24:27], s34 offen lds' % vL16, tag=tag)
    a.opt_end()
    a.label(lab)
    a('s_add_u32 s21, s21, %d' % WSTG)
    a('s_add_u32 s35, s35, 4096')

def flag_load(a, tag=None):
    a('buffer_load_dword v20, off, s[%d:%d], s%d sc0 sc1' % (SRD_W, SRD_W + 3, sPW), tag=tag)

def flag_spin(lab, level):
    a = Asm()
    a.label(lab)
    a('s_mov_b32 s54, %d' % SPINF)
    a.label(lab + '_L')
    a('s_cmp_eq_u32 s54, 0')
    a('s_cbranch_scc1 %s_B' % lab)
    a('s_sub_u32 s54, s54, 1')
    flag_load(a)
    a('s_waitcnt vmcnt(0)')
    a('v_readfirstlane_b32 s55, v20')
    a('s_bfe_u32 s55, s55, 0x%x' % ((8 << 16) | (8 * (level - 1))))
    a('s_cmp_eq_u32 s55, 4')
    a('s_cbranch_scc0 %s_L' % lab)
    a('s_branch %s_B' % lab)
    return a.finish()

def flag_check(a, level, lab):
    a('v_readfirstlane_b32 s55, v20')
    a('s_bfe_u32 s55, s55, 0x%x' % ((8 << 16) | (8 * (level - 1))))
    a('s_cmp_eq_u32 s55, 4')
    a('s_cbranch_scc0 %s' % lab)
    a.label(lab + '_B')

def gen_ff(name='ff_kernel'):
    global XLATE
    a = Asm()
    stamp(a, 0); stamp_rt(a, 9)
    a('s_load_dwordx2 s[12:13], s[0:1], 88')
    a('s_load_dwordx2 s[4:5], s[0:1], 72')
    a('s_cmp_ge_u32 s2, 256')
    a('s_cbranch_scc1 FF_END')
    a('v_and_b32 v%d, 63, v0' % vT)
    a('v_lshrrev_b32 v%d, 6, v0' % (vT + 1))
    a('v_readfirstlane_b32 s17, v%d' % (vT + 1))
    a('v_lshlrev_b32 v%d, 4, v%d' % (vL16, vT))
    a('s_and_b32 s16, s17, 3')
    a('s_and_b32 s33, s2, 7')
    a('s_lshr_b32 s34, s2, 3')
    a('s_lshr_b32 s19, s33, 2')
    a('s_lshl_b32 s19, s19, 3')
    a('s_and_b32 s35, s34, 7')
    a('s_add_u32 s19, s19, s35')
    a('s_and_b32 s28, s33, 3')
    a('s_lshr_b32 s18, s34, 3')
    a('s_lshl_b32 s20, s28, 2')
    a('s_add_u32 s20, s20, s18')
    a('s_lshl_b32 s46, s19, 2')
    a('s_add_u32 s46, s46, s16')
    a('s_mul_i32 s44, s46, 144')
    a('s_mul_i32 s33, s28, 36')
    a('s_add_u32 s44, s44, s33')
    a('s_lshl_b32 s29, s44, 11')
    a('s_add_u32 s44, s44, s18')
    a('s_lshl_b32 s44, s44, 11')
    a('s_lshl_b32 s33, s19, 2')
    a('s_add_u32 s33, s33, s28')
    a('s_lshl_b32 s33, s33, 2')
    a('s_add_u32 s33, s33, s16')
    a('s_lshl_b32 s33, s33, 7')
    a('s_add_u32 s%d, s33, %d' % (sPW, PW_OFF))
    a('s_mul_i32 s21, s20, %d' % (18 * STG))
    a('s_lshl_b32 s33, s17, 12')
    a('s_add_u32 s34, s21, s33')
    a('s_mul_i32 s47, s20, %d' % (18 * 128))
    a('s_add_u32 s47, s47, 0x%x' % (WS_CT - WS_P1))
    a('s_sub_u32 s48, s17, 4')
    a('s_min_u32 s48, s48, 2')
    a('s_lshl_b32 s48, s48, 10')
    a('s_lshl_b32 s35, s17, 10')
    a('s_add_u32 s35, s35, 32768')
    a('s_add_u32 s45, s21, s35')
    a('s_add_u32 s47, s47, s48')
    a('s_add_u32 s48, s48, %d' % CT_LDS)
    a('s_cmp_ge_u32 s17, 4')
    a('s_cselect_b32 s45, s47, s45')
    a('s_cselect_b32 s35, s48, s35')
    a('s_waitcnt lgkmcnt(0)')
    srd_off(a, 24, 12, 13, WS_P1, P1_SIZE)
    a('s_mov_b32 m0, s33')
    for q in range(4):
        a('buffer_load_dwordx4 v%d, s[24:27], s34 offen offset:%d lds' % (vL16, q * 1024))
    a('s_mov_b32 m0, s35')
    a('buffer_load_dwordx4 v%d, s[24:27], s45 offen lds' % vL16)
    srd_off(a, SRD_W, 12, 13, WS_FLAG, FLAG_BYTES)
    a('s_cmp_ge_u32 s17, 4')
    a('s_cbranch_scc1 FF_PROD')
    t0 = a.finish()

    a = Asm()
    a('s_mul_i32 s35, s46, %d' % (2 * 18 * 1024))
    a('s_add_u32 s45, s35, %d' % (18 * 1024))
    a('v_and_b32 v%d, 15, v%d' % (vT + 1, vT))
    a('v_lshrrev_b32 v%d, 4, v%d' % (vT + 2, vT))
    a('s_lshl_b32 s33, s46, 5')
    a('v_add_u32 v%d, s33, v%d' % (vT + 3, vT + 1))
    a('v_lshrrev_b32 v%d, 1, v%d' % (vHA, vT + 2))
    a('v_lshlrev_b32 v%d, 8, v%d' % (vHA, vHA))
    a('v_lshl_add_u32 v%d, v%d, 4, v%d' % (vHA, vT + 1, vHA))
    a('v_and_b32 v%d, 1, v%d' % (vW, vT + 2))
    a('v_lshl_add_u32 v%d, v%d, 3, v%d' % (vHA, vW, vHA))
    a('v_mul_u32_u24 v%d, 1152, v%d' % (vOA, vT + 3))
    a('v_lshl_add_u32 v%d, v%d, 3, v%d' % (vOA, vT + 2, vOA))
    a('v_mul_u32_u24 v%d, 96, v%d' % (vT + 1, vT + 3))
    a('v_mul_u32_u24 v%d, 24, v%d' % (vT + 3, vT + 2))
    a('v_add_u32 v%d, v%d, v%d' % (vT + 1, vT + 1, vT + 3))
    a('v_lshlrev_b32 v%d, 4, v%d' % (vCTA, vT + 2))
    a('v_add_u32 v%d, %d, v%d' % (vCTA, CT_LDS - 128, vCTA))
    a('v_mov_b32 v%d, v%d' % (vRB0, vL16))
    a('v_add_u32 v%d, %d, v%d' % (vRB1, STG, vL16))
    a('s_mov_b32 s22, 0')
    srd_off(a, SRD_HF, 12, 13, WS_H, WS_HB - WS_H)
    srd_off(a, SRD_HS, 12, 13, WS_HB, H_SIZE)
    xl = []
    for k in range(18):
        for tt in range(2):
            r = xreg(k, tt)
            g = ['buffer_load_dwordx4 v[%d:%d], v%d, s[36:39], s%d offen offset:%d' % (r, r + 3, vL16, 35 if tt == 0 else 45, (k % 4) * 1024)]
            if k % 4 == 3 and tt == 1: g += ['s_add_u32 s35, s35, 4096', 's_add_u32 s45, s45, 4096']
            xl.append(g)
    xl.append(['s_mov_b32 s35, 0x%x' % (WS_ST - WS_H)])
    for tt, b in ((0, ACC + 16), (1, ACC + 22)):
        xl.append(['buffer_load_dwordx4 v[%d:%d], v%d, s[36:39], s35 offen offset:%d' % (b, b + 3, vT + 1, tt * 1536)])
        xl.append(['buffer_load_dwordx2 v[%d:%d], v%d, s[36:39], s35 offen offset:%d' % (b + 4, b + 5, vT + 1, tt * 1536 + 16)])
    for g in xl[:2 * XPRE]:
        for x in g: a(x)
    XLATE = xl[2 * XPRE:]
    a('s_lshl_b32 s23, s16, 12')
    a('s_add_u32 s23, s23, %d' % WSTG)
    a('s_lshl_b32 s33, s19, 2')
    a('s_add_u32 s33, s33, s18')
    a('s_lshl_b32 s33, s33, 2')
    a('s_add_u32 s33, s33, s16')
    a('s_mul_i32 s%d, s33, %d' % (sXB, 4 * 9216))
    a('s_lshl_b32 s%d, s33, 7' % sAW)
    a('s_mul_i32 s%d, s18, 288' % sOC)
    a('s_mul_i32 s%d, s46, 36864' % sHB_)
    a('s_mul_i32 s33, s18, %d' % (9 * 512))
    a('s_add_u32 s%d, s%d, s33' % (sHB_, sHB_))
    a('s_lshl_b32 s33, s28, 1')
    a('s_add_u32 s33, s33, 1')
    a('s_cmp_eq_u32 s28, 0')
    a('s_cselect_b32 s33, 0, s33')
    a('s_lshl_b32 s33, s33, 9')
    a('s_add_u32 s%d, s33, s%d' % (sHR, sHB_))
    srd_off(a, SRD_XB, 12, 13, WS_PART, WS_FLAG - WS_PART)
    srd(a, SRD_OUT, 4, 5, S * D * 2)
    stamp(a, 1)
    a('s_waitcnt vmcnt(%d)' % (2 * XPRE))
    a('s_barrier')
    stamp(a, 2)
    for i in range(L): read1(a, 0, i)
    a.wait_lgkm('r1')
    stage1(a, 0, True)
    stage1(a, 1, True)
    a('s_mov_b32 s49, 1')
    a.loop_begin('FF_LOOP1')
    stage1(a, 0)
    stage1(a, 1, pub=lambda a: pub_hook(a, 5, 'FF_PUB1'))
    a('s_add_u32 s49, s49, 1')
    a('s_cmp_le_u32 s49, 7')
    a.loop_end('s_cbranch_scc1 FF_LOOP1')
    stage1(a, 0)
    stage1(a, 1, last=True, pub=lambda a: pub_inline(a, 2, 2))
    stamp(a, 3)
    a('s_barrier')
    st = hstores()
    items = [(x, 1) for x in epilogue(1, 1)] + [(['s_nop 0', st[0]], 9), (['s_nop 0', st[1]], 10)]
    stage2(a, 0, first=True, items=items)
    stage2(a, 1, items=[(x, 0) for x in rstd_code(vW)])
    a('s_mov_b32 s49, 1')
    a.loop_begin('FF_LOOP2')
    stage2(a, 0)
    stage2(a, 1, pub=lambda a: pub_hook(a, 1, 'FF_PUB3'))
    a('s_add_u32 s49, s49, 1')
    a('s_cmp_le_u32 s49, 8')
    a.loop_end('s_cbranch_scc1 FF_LOOP2')
    stamp(a, 4)
    a('s_add_u32 s34, s%d, 18432' % sHR)
    for k in range(3):
        a('buffer_load_dwordx2 v[%d:%d], v%d, s[36:39], s%d offen offset:%d' % (vHR + 4 * k, vHR + 4 * k + 1, vHA, sHR, k * 512))
        a('buffer_load_dwordx2 v[%d:%d], v%d, s[36:39], s34 offen offset:%d' % (vHR + 4 * k + 2, vHR + 4 * k + 3, vHA, k * 512))
    a('s_nop 4')
    for s_ in range(1, 4):
        a('s_cmp_eq_u32 s28, %d' % s_)
        a('s_cbranch_scc1 FF_EPI%d' % s_)
    t1 = a.finish()
    for s_ in range(4):
        t1 += epi_variant(s_)
    t1 += rescue()
    t1 += pub_block('FF_PUB1', 1, 2) + pub_block('FF_PUB3', 3, 0)

    a = Asm()
    a.label('FF_PROD')
    a('s_mul_i32 s23, s16, 9216')
    a('s_add_u32 s21, s21, s23')
    srd_off(a, 36, 12, 13, WS_HB, H_SIZE)
    a('s_add_u32 s21, s21, %d' % STG)
    a('s_add_u32 s33, s23, %d' % STG)
    for g in dma_groups('w1'):
        for x in g: emit(a, x)
    stamp(a, 1)
    a('s_waitcnt vmcnt(9)')
    stamp(a, 2)
    a('s_barrier')
    a('s_add_u32 s21, s21, %d' % STG)
    a('s_add_u32 s33, s23, %d' % (2 * STG))
    for g in dma_groups('w0'):
        for x in g: emit(a, x)
    a('s_mov_b32 s22, 0')
    a('s_mov_b32 s49, 0')
    a.loop_begin('FF_PLOOP1')
    a.wait_vm('w1')
    a('s_barrier')
    a('s_xor_b32 s22, s22, %d' % (2 * STG))
    a('s_add_u32 s33, s22, %d' % STG)
    a('s_add_u32 s33, s33, s23')
    a('s_add_u32 s21, s21, %d' % STG)
    for g in dma_groups('w1'):
        for x in g: emit(a, x)
    a.wait_vm('w0')
    a('s_barrier')
    a('s_xor_b32 s33, s22, %d' % (2 * STG))
    a('s_add_u32 s33, s33, s23')
    a('s_add_u32 s21, s21, %d' % STG)
    for g in dma_groups('w0'):
        for x in g: emit(a, x)
    a('s_add_u32 s49, s49, 1')
    a('s_cmp_le_u32 s49, 6')
    a.loop_end('s_cbranch_scc1 FF_PLOOP1')
    flag_load(a, 'fl')
    a.wait_vm('w1')
    a('s_barrier')
    a('s_add_u32 s33, s23, %d' % STG)
    a('s_add_u32 s21, s21, %d' % STG)
    for g in dma_groups('w17'):
        for x in g: emit(a, x)
    a('s_mov_b32 s35, s29')
    a('s_mul_i32 s47, s16, 5')
    a('s_cmp_eq_u32 s16, 3')
    a('s_cselect_b32 s33, 1, 0')
    a('s_sub_u32 s47, s47, s33')
    a('s_lshl_b32 s47, s47, 10')
    a('s_lshl_b32 s48, s16, 12')
    a('s_add_u32 s48, s48, %d' % WSTG)
    a('s_mul_i32 s21, s20, %d' % (36 * 9216))
    a('s_add_u32 s21, s21, s47')
    a('s_add_u32 s21, s21, 0x%x' % (WS_P2 - WS_P1))
    a.wait_vm('w0')
    a.wait_vm('fl')
    a('s_barrier')
    flag_check(a, 1, 'FF_SP1')
    a('s_mov_b32 s33, %d' % (2 * STG))
    dma2(a, 'd0', 'FF_D0')
    a.wait_vm('w17')
    a('s_barrier')
    a('s_mov_b32 s33, %d' % (3 * STG))
    dma2(a, 'd1', 'FF_D1')
    a.wait_vm('d0')
    a('s_barrier')
    a('s_mov_b32 s33, 0')
    dma2(a, 'd2', 'FF_D2')
    stamp(a, 3)
    a('s_barrier')
    a('s_mov_b32 s33, %d' % STG)
    dma2(a, 'd3', 'FF_D3')
    a('s_mov_b32 s33, %d' % (2 * STG))
    a('s_mov_b32 s49, 0')
    a('s_mov_b32 s50, 0x%x' % P1_SIZE)
    a('s_mov_b32 s51, 0x%x' % H_SIZE)
    t2 = a.finish()
    a = Asm()
    a.loop_begin('FF_PLOOP2')
    a('s_waitcnt vmcnt(16)')
    a('s_barrier')
    a('s_cmp_eq_u32 s49, 4')
    a('s_cbranch_scc1 FF_CK2')
    a.label('FF_CK2_B')
    a('s_cmp_eq_u32 s49, 10')
    a('s_cbranch_scc1 FF_CK3')
    a.label('FF_CK3_B')
    a('s_cmp_eq_u32 s49, 2')
    a('s_cbranch_scc1 FF_FL')
    a('s_cmp_eq_u32 s49, 8')
    a('s_cbranch_scc1 FF_FL')
    a.label('FF_FL_B')
    a('s_cmp_le_u32 s49, 13')
    a('s_cselect_b32 s26, s50, 0')
    a('s_cselect_b32 s38, s51, 0')
    dma2(a, 'wx', 'FF_D4')
    a('s_add_u32 s33, s33, %d' % STG)
    a('s_cmp_eq_u32 s33, %d' % (4 * STG))
    a('s_cselect_b32 s33, 0, s33')
    a('s_add_u32 s49, s49, 1')
    a('s_cmp_le_u32 s49, 17')
    a.loop_end('s_cbranch_scc1 FF_PLOOP2')
    stamp(a, 4)
    stamp_store(a, 5, 5, 's17')
    a('s_waitcnt vmcnt(0)')
    a.label('FF_END')
    a('s_endpgm')
    t2 += a.finish()
    a = Asm()
    a.label('FF_FL')
    flag_load(a)
    a('s_branch FF_FL_B')
    for lv, lab in ((2, 'FF_CK2'), (3, 'FF_CK3')):
        a.label(lab)
        a('v_readfirstlane_b32 s55, v20')
        a('s_bfe_u32 s55, s55, 0x%x' % ((8 << 16) | (8 * (lv - 1))))
        a('s_cmp_eq_u32 s55, 4')
        a('s_cbranch_scc1 %s_B' % lab)
        a('s_branch FF_SP%d' % lv)
    t2 += a.finish()
    t2 += flag_spin('FF_SP1', 1)
    for lv in (2, 3):
        t2 += flag_spin('FF_SP%d' % lv, lv).replace('FF_SP%d_B' % lv, 'FF_CK%d_B' % lv)
    return kernel_header(name) + t0 + t1 + t2, kernel_desc(name, 256, 102), (256, 512, LDS_FF)

def put_record(a, dt, s_, r):
    for tt in range(2):
        A = acc2(dt, tt)
        a('v_cvt_pk_bf16_f32 v%d, v%d, v%d' % (r + 2 * tt, A, A + 1))
        a('v_cvt_pk_bf16_f32 v%d, v%d, v%d' % (r + 2 * tt + 1, A + 2, A + 3))
    off = (s_ * 9 + dt) * 1024
    a('s_add_u32 s33, s%d, %d' % (sXB, off & ~4095))
    a('buffer_store_dwordx4 v[%d:%d], v%d, s[%d:%d], s33 offen offset:%d %s' % (r, r + 3, vL16, SRD_XB, SRD_XB + 3, off & 4095, STMOD))

def word_op(a, op, val):
    a('v_mov_b32 v%d, %s' % (vW, val))
    a('s_mov_b64 exec, 1')
    a('buffer_atomic_%s v%d, off, s[%d:%d], s%d sc0 sc1' % (op, vW, SRD_W, SRD_W + 3, sAW))
    a('s_waitcnt vmcnt(0)')
    a('s_mov_b64 exec, -1')
    a('v_readfirstlane_b32 s6, v%d' % vW)

def finalize(a, dt, tt, srcs, hr, own, t):
    first = own is None
    S_ = own if own is not None else t + 4
    for k, r in enumerate(srcs):
        a('v_lshlrev_b32 v%d, 16, v%d' % (t, r))
        a('v_and_b32 v%d, 0xffff0000, v%d' % (t + 1, r))
        a('v_lshlrev_b32 v%d, 16, v%d' % (t + 2, r + 1))
        a('v_and_b32 v%d, 0xffff0000, v%d' % (t + 3, r + 1))
        for j in range(4):
            if first and k == 0: a('v_mov_b32 v%d, v%d' % (S_ + j, t + j))
            else: a('v_add_f32 v%d, v%d, v%d' % (S_ + j, S_ + j, t + j))
    a('v_lshlrev_b32 v%d, 16, v%d' % (t, hr))
    a('v_and_b32 v%d, 0xffff0000, v%d' % (t + 1, hr))
    a('v_lshlrev_b32 v%d, 16, v%d' % (t + 2, hr + 1))
    a('v_and_b32 v%d, 0xffff0000, v%d' % (t + 3, hr + 1))
    for j in range(4):
        a('v_fma_f32 v%d, v%d, v%d, v%d' % (t + j, S_ + j, vRS + tt, t + j))
    a('v_cvt_pk_bf16_f32 v%d, v%d, v%d' % (t, t, t + 1))
    a('v_cvt_pk_bf16_f32 v%d, v%d, v%d' % (t + 1, t + 2, t + 3))

def epi_variant(s_):
    a = Asm()
    a.label('FF_EPI%d' % s_)
    own = DSET[s_]
    k = 0
    for dt in range(9):
        if dt in own: continue
        put_record(a, dt, s_, LD + 4 * k); k += 1
    stamp(a, 5)
    a('s_waitcnt vmcnt(0)')
    stamp(a, 6)
    word_op(a, 'add', '1')
    a('s_mov_b32 s8, 0')
    a('s_and_b32 s7, s6, 7')
    a('s_cmp_eq_u32 s7, 3')
    a('s_cbranch_scc0 FF_POLL%d' % s_)
    a('s_lshr_b32 s8, s6, 4')
    a('s_branch FF_GO%d' % s_)
    t = a.finish()
    a = Asm()
    a.label('FF_POLL%d' % s_)
    a('s_mov_b32 s9, %d' % SPIN)
    a.label('FF_PL%d' % s_)
    a('s_cmp_eq_u32 s9, 0')
    a('s_cbranch_scc1 FF_TMO%d' % s_)
    a('s_sub_u32 s9, s9, 1')
    a('buffer_load_dword v%d, off, s[%d:%d], s%d sc0 sc1' % (vW, SRD_W, SRD_W + 3, sAW))
    a('s_waitcnt vmcnt(0)')
    a('v_readfirstlane_b32 s6, v%d' % vW)
    a('s_and_b32 s7, s6, 7')
    a('s_cmp_eq_u32 s7, 4')
    a('s_cbranch_scc0 FF_PL%d' % s_)
    a('s_branch FF_GO%d' % s_)
    t += a.finish()
    a = Asm()
    a.label('FF_TMO%d' % s_)
    for k, dt in enumerate(own):
        put_record(a, dt, s_, LD + 4 * k)
    a('s_waitcnt vmcnt(0)')
    word_op(a, 'or', str(16 << s_))
    a('s_and_b32 s7, s6, 7')
    a('s_cmp_eq_u32 s7, 4')
    a('s_cbranch_scc1 FF_GO%d' % s_)
    a('s_endpgm')
    t += a.finish()
    a = Asm()
    a.label('FF_GO%d' % s_)
    stamp(a, 7)
    others = [x for x in range(4) if x != s_]
    for k, dt in enumerate(own):
        for j, o in enumerate(others):
            off = (o * 9 + dt) * 1024
            r = LD + 12 * k + 4 * j
            a('s_add_u32 s33, s%d, %d' % (sXB, off & ~4095))
            a('buffer_load_dwordx4 v[%d:%d], v%d, s[%d:%d], s33 offen offset:%d %s' % (r, r + 3, vL16, SRD_XB, SRD_XB + 3, off & 4095, LDMOD))
    n = 0
    for k, dt in enumerate(own):
        for tt in range(2):
            t_ = T_ + 8 * (n % 4); n += 1
            finalize(a, dt, tt, [LD + 12 * k + 4 * j + 2 * tt for j in range(3)], vHR + 4 * k + 2 * tt, acc2(dt, tt), t_)
            a('s_add_u32 s33, s%d, %d' % (sOC, tt * 16 * 1152 + dt * 32))
            a('buffer_store_dwordx2 v[%d:%d], v%d, s[%d:%d], s33 offen' % (t_, t_ + 1, vOA, SRD_OUT, SRD_OUT + 3))
    stamp(a, 8)
    stamp_store(a, 3, 9, 's17')
    a('s_cmp_lg_u32 s8, 0')
    a('s_cbranch_scc1 FF_RESCUE')
    a('s_endpgm')
    t += a.finish()
    return t

def rescue():
    a = Asm()
    a.label('FF_RESCUE')
    a('s_mov_b32 s9, 0')
    for q in range(4):
        a('s_bitcmp1_b32 s8, %d' % q)
        a('s_cselect_b32 s7, %d, 0' % DMASK[q])
        a('s_or_b32 s9, s9, s7')
    a('s_mov_b32 s48, 0')
    t = a.finish()
    a = Asm()
    a.label('FF_RL')
    a('s_bitcmp1_b32 s9, s48')
    a('s_cbranch_scc0 FF_RN')
    a('s_lshl_b32 s33, s48, 10')
    a('s_add_u32 s33, s33, s%d' % sXB)
    for o in range(4):
        a('buffer_load_dwordx4 v[%d:%d], v%d, s[%d:%d], s33 offen sc1' % (88 + 4 * o, 91 + 4 * o, vL16, SRD_XB, SRD_XB + 3))
        a('s_add_u32 s33, s33, 9216')
    a('s_lshl_b32 s33, s48, 9')
    a('s_add_u32 s33, s33, s%d' % sHB_)
    a('buffer_load_dwordx2 v[104:105], v%d, s[36:39], s33 offen' % vHA)
    a('s_add_u32 s33, s33, 18432')
    a('buffer_load_dwordx2 v[106:107], v%d, s[36:39], s33 offen' % vHA)
    a('s_waitcnt vmcnt(0)')
    for tt in range(2):
        t_ = 128 + 8 * tt
        finalize(a, None, tt, [88 + 4 * o + 2 * tt for o in range(4)], 104 + 2 * tt, None, t_)
        a('s_lshl_b32 s33, s48, 5')
        a('s_add_u32 s33, s33, s%d' % sOC)
        a('s_add_u32 s33, s33, %d' % (tt * 16 * 1152))
        a('buffer_store_dwordx2 v[%d:%d], v%d, s[%d:%d], s33 offen' % (t_, t_ + 1, vOA, SRD_OUT, SRD_OUT + 3))
    a('s_waitcnt vmcnt(0)')
    a.label('FF_RN')
    a('s_add_u32 s48, s48, 1')
    a('s_cmp_lt_u32 s48, 9')
    a('s_cbranch_scc1 FF_RL')
    a('s_endpgm')
    t += a.finish()
    return t
```

```python
from asmgen import *
from common import *
NJ1, NJ2 = 1296, 1944
PAIRMAJ = False
PMOD = 'sc1'
NOLD = False
DMA = True
TIMEW = False
NOST = False
NODS = False
NODOT = False
CS_OFF = WS_CSP - WS_P1
P2_OFF = WS_P2 - WS_P1

class Regs: pass
R = Regs()
R.sSRC, R.sDST, R.sCS = 56, 60, 4
R.sSO, R.sDO, R.sSLO, R.sSHI, R.sDHI, R.sCSO, R.sSCR = 8, 9, 10, 11, 14, 15, 52
R.vPS, R.vPD, R.vPR, R.vCS, R.vONE, R.vDAT, R.vPF = 118, 119, 120, 121, 122, 124, 116
R.vSET = [128, 132]
R.vPW = 123
T = [50, 51, 53, 54, 55, 48, 49]

def decode(a, sWave):
    J, t1, t2, t3, t4, t5, t6 = T
    a('s_lshl_b32 s%d, s2, 3' % J)
    a('s_add_u32 s%d, s%d, %s' % (J, J, sWave))
    a('s_mov_b32 s%d, 32' % t1)
    a('s_cmp_lt_u32 s%d, %d' % (J, NJ2)); a('s_cselect_b32 s%d, 64, s%d' % (t1, t1))
    a('s_cmp_lt_u32 s%d, %d' % (J, NJ1)); a('s_cselect_b32 s%d, 56, s%d' % (t1, t1))
    a('s_cmp_lt_u32 s%d, 648' % J); a('s_cselect_b32 s%d, 48, s%d' % (t1, t1))
    a('s_load_dwordx2 s[%d:%d], s[0:1], s%d' % (R.sSRC, R.sSRC + 1, t1))

def setup(a, vLANE, vt, scratch_sreg_code, ws_lo=12, ws_hi=13):
    J, t1, t2, t3, t4, t5, t6 = T
    scratch_sreg_code(a)
    a('v_lshrrev_b32 v%d, 3, v%d' % (vt, vLANE))
    a('v_and_b32 v%d, 7, v%d' % (vt + 1, vLANE))
    a('v_lshlrev_b32 v%d, 4, v%d' % (vt + 1, vt + 1))
    a('v_lshrrev_b32 v%d, 4, v%d' % (vt + 2, vLANE))
    a('v_and_b32 v%d, 15, v%d' % (vt + 3, vLANE))
    a('v_lshrrev_b32 v%d, 2, v%d' % (R.vPR, vt + 3))
    a('v_lshlrev_b32 v%d, 7, v%d' % (R.vPR, R.vPR))
    a('v_lshl_add_u32 v%d, v%d, 5, v%d' % (R.vPR, vt + 2, R.vPR))
    a('v_and_b32 v%d, 3, v%d' % (R.vCS, vt + 3))
    a('v_lshl_add_u32 v%d, v%d, 3, v%d' % (R.vPR, R.vCS, R.vPR))
    a('v_add_u32 v%d, s%d, v%d' % (R.vPR, R.sSCR, R.vPR))
    a('v_lshlrev_b32 v%d, 4, v%d' % (vt + 3, vt + 3))
    a('v_mov_b32 v%d, 0x3f803f80' % R.vONE)
    a('v_lshlrev_b32 v%d, 4, v%d' % (R.vPW, vLANE))
    a('v_add_u32 v%d, s%d, v%d' % (R.vPW, R.sSCR, R.vPW))
    srd_off(a, R.sDST, ws_lo, ws_hi, WS_P1, WS_PEND - WS_P1)
    srd_off(a, R.sCS, ws_lo, ws_hi, WS_P1, WS_PEND - WS_P1)
    a('s_mov_b32 s%d, 0x00020000' % (R.sSRC + 3))
    a('s_mov_b32 s96, s%d' % R.sSRC)
    a('s_mov_b32 s97, s%d' % (R.sSRC + 1))
    a('s_mov_b32 s98, 0')
    a('s_mov_b32 s99, 0x00020000')
    a('s_cmp_lt_u32 s%d, %d' % (J, NJ1))
    a('s_cbranch_scc0 PK_NOT1')
    a('s_cmp_ge_u32 s%d, 648' % J)
    a('s_cselect_b32 s%d, 1, 0' % t1)
    a('s_mul_i32 s%d, s%d, 648' % (t2, t1))
    a('s_sub_u32 s%d, s%d, s%d' % (t2, J, t2))
    a('s_mul_hi_u32 s%d, s%d, 0x%x' % (t3, t2, (2 ** 32 + 71) // 72))
    a('s_mul_i32 s%d, s%d, 72' % (t4, t3))
    a('s_sub_u32 s%d, s%d, s%d' % (t4, t2, t4))
    a('s_mul_i32 s%d, s%d, %d' % (R.sSO, t3, 64 * 9216))
    a('s_lshl_b32 s%d, s%d, 7' % (t5, t4))
    a('s_add_u32 s%d, s%d, s%d' % (R.sSO, R.sSO, t5))
    a('s_mul_i32 s%d, s%d, %d' % (R.sDO, t4, 4 * 36864))
    a('s_lshl_b32 s%d, s%d, 12' % (t5, t3))
    a('s_add_u32 s%d, s%d, s%d' % (R.sDO, R.sDO, t5))
    a('s_lshl_b32 s%d, s%d, 10' % (t5, t1))
    a('s_add_u32 s%d, s%d, s%d' % (R.sDO, R.sDO, t5))
    a('s_mov_b32 s%d, %d' % (R.sSLO, 8 * 9216))
    a('s_mov_b32 s%d, %d' % (R.sSHI, 8 * 9216))
    a('s_mov_b32 s%d, 1280' % R.sDHI)
    a('s_mul_i32 s%d, s%d, 9' % (t5, t1))
    a('s_add_u32 s%d, s%d, s%d' % (t5, t5, t3))
    a('s_mul_i32 s%d, s%d, %d' % (R.sCSO, t5, 4608 * 4))
    a('s_lshl_b32 s%d, s%d, 8' % (t5, t4))
    a('s_add_u32 s%d, s%d, s%d' % (R.sCSO, R.sCSO, t5))
    a('s_add_u32 s%d, s%d, 0x%x' % (R.sCSO, R.sCSO, CS_OFF))
    a('s_mov_b32 s%d, %d' % (R.sSRC + 2, D * F * 2))
    a('v_mul_u32_u24 v%d, 9216, v%d' % (R.vPS, vt))
    a('v_add_u32 v%d, v%d, v%d' % (R.vPS, R.vPS, vt + 1))
    a('v_mul_u32_u24 v%d, 36864, v%d' % (R.vPD, vt + 2))
    a('v_add_u32 v%d, v%d, v%d' % (R.vPD, R.vPD, vt + 3))
    a('v_mov_b32 v%d, 0x40000000' % R.vPF)
    a('s_branch PK_SET')
    a.label('PK_NOT1')
    a('s_mov_b32 s%d, 0' % (R.sCS + 2))
    a('s_mov_b32 s%d, 0' % R.sCSO)
    a('s_cmp_lt_u32 s%d, %d' % (J, NJ2))
    a('s_cbranch_scc0 PK_NOT2')
    a('s_sub_u32 s%d, s%d, %d' % (t2, J, NJ1))
    a('s_mul_hi_u32 s%d, s%d, 0x%x' % (t3, t2, (2 ** 32 + 8) // 9))
    a('s_mul_i32 s%d, s%d, 9' % (t4, t3))
    a('s_sub_u32 s%d, s%d, s%d' % (t4, t2, t4))
    a('s_mul_i32 s%d, s%d, %d' % (R.sSO, t3, 64 * 1152))
    a('s_lshl_b32 s%d, s%d, 7' % (t5, t4))
    a('s_add_u32 s%d, s%d, s%d' % (R.sSO, R.sSO, t5))
    a('s_mul_hi_u32 s%d, s%d, 0x%x' % (t1, t3, (2 ** 32 + 17) // 18))
    a('s_mul_i32 s%d, s%d, 18' % (t5, t1))
    a('s_sub_u32 s%d, s%d, s%d' % (t5, t3, t5))
    if not PAIRMAJ:
        a('s_mul_i32 s%d, s%d, 144' % (t1, t1))
        a('s_lshl_b32 s%d, s%d, 1' % (t5, t5))
        a('s_add_u32 s%d, s%d, s%d' % (t1, t1, t5))
        a('s_mul_i32 s%d, s%d, 9216' % (R.sDO, t1))
        a('s_add_u32 s%d, s%d, 0x%x' % (R.sDO, R.sDO, P2_OFF))
        a('s_mov_b32 s%d, 4608' % R.sSLO)
        a('s_mov_b32 s%d, 23040' % R.sSHI)
        a('s_mov_b32 s%d, 8448' % R.sDHI)
    else:
        a('s_mul_i32 s%d, s%d, 144' % (t1, t1))
        a('s_lshl_b32 s%d, s%d, 1' % (t5, t5))
        a('s_mul_i32 s%d, s%d, 57' % (t6, t5))
        a('s_lshr_b32 s%d, s%d, 9' % (t6, t6))
        a('s_mul_i32 s%d, s%d, 9' % (t2, t6))
        a('s_sub_u32 s%d, s%d, s%d' % (t5, t5, t2))
        a('s_cmp_eq_u32 s%d, 8' % t5)
        a('s_mov_b32 s%d, %d' % (R.sDHI, 4 * 9216 - 768))
        a('s_cselect_b32 s%d, 0x%x, s%d' % (R.sDHI, (-31 * 9216 - 768) & 0xffffffff, R.sDHI))
        a('s_lshl_b32 s%d, s%d, 2' % (t5, t5))
        a('s_add_u32 s%d, s%d, s%d' % (t5, t5, t6))
        a('s_add_u32 s%d, s%d, s%d' % (t1, t1, t5))
        a('s_mul_i32 s%d, s%d, 9216' % (R.sDO, t1))
        a('s_add_u32 s%d, s%d, 0x%x' % (R.sDO, R.sDO, P2_OFF))
        a('s_mov_b32 s%d, 4608' % R.sSLO)
        a('s_mov_b32 s%d, 23040' % R.sSHI)
    a('s_mov_b32 s%d, %d' % (R.sSRC + 2, D * F * 2))
    a('v_lshrrev_b32 v%d, 2, v%d' % (R.vPS, vt))
    a('v_and_b32 v%d, 3, v%d' % (R.vPD, vt))
    a('v_lshl_add_u32 v%d, v%d, 4, v%d' % (R.vPS, R.vPS, R.vPD))
    a('v_mul_u32_u24 v%d, 1152, v%d' % (R.vPS, R.vPS))
    a('v_add_u32 v%d, v%d, v%d' % (R.vPS, R.vPS, vt + 1))
    a('s_lshl_b32 s%d, s%d, 2' % (t4, t4))
    a('v_add_u32 v%d, s%d, v%d' % (vt + 2, t4, vt + 2))
    a('v_mul_u32_u24 v%d, 7282, v%d' % (vt, vt + 2))
    a('v_lshrrev_b32 v%d, 16, v%d' % (vt, vt))
    a('v_mul_u32_u24 v%d, 9, v%d' % (vt + 1, vt))
    a('v_sub_u32 v%d, v%d, v%d' % (vt + 2, vt + 2, vt + 1))
    a('v_mul_u32_u24 v%d, %d, v%d' % (R.vPD, 36 * 9216, vt))
    a('v_lshl_add_u32 v%d, v%d, 10, v%d' % (R.vPD, vt + 2, R.vPD))
    a('v_add_u32 v%d, v%d, v%d' % (R.vPD, R.vPD, vt + 3))
    a('v_mov_b32 v%d, 0x40000000' % R.vPF)
    a('s_branch PK_SET')
    a.label('PK_NOT2')
    a('s_sub_u32 s%d, s%d, %d' % (t2, J, NJ2))
    a('s_mul_hi_u32 s%d, s%d, 0x%x' % (t3, t2, (2 ** 32 + 8) // 9))
    a('s_mul_i32 s%d, s%d, 9' % (t4, t3))
    a('s_sub_u32 s%d, s%d, s%d' % (t4, t2, t4))
    a('s_mul_i32 s%d, s%d, %d' % (R.sSO, t3, 64 * 1152))
    a('s_lshl_b32 s%d, s%d, 7' % (t5, t4))
    a('s_add_u32 s%d, s%d, s%d' % (R.sSO, R.sSO, t5))
    a('s_mul_i32 s%d, s%d, %d' % (R.sDO, t4, 4 * 18432))
    a('s_lshl_b32 s%d, s%d, 11' % (t5, t3))
    a('s_add_u32 s%d, s%d, s%d' % (R.sDO, R.sDO, t5))
    a('s_add_u32 s%d, s%d, 0x%x' % (R.sDO, R.sDO, WS_P3 - WS_P1))
    a('s_mov_b32 s%d, %d' % (R.sSLO, 8 * 1152))
    a('s_mov_b32 s%d, %d' % (R.sSHI, 8 * 1152))
    a('s_mov_b32 s%d, 256' % R.sDHI)
    a('s_mov_b32 s%d, %d' % (R.sSRC + 2, D * D * 2))
    a('v_mul_u32_u24 v%d, 1152, v%d' % (R.vPS, vt))
    a('v_add_u32 v%d, v%d, v%d' % (R.vPS, R.vPS, vt + 1))
    a('v_mul_u32_u24 v%d, 18432, v%d' % (R.vPD, vt + 2))
    a('v_add_u32 v%d, v%d, v%d' % (R.vPD, R.vPD, vt + 3))
    a('v_mov_b32 v%d, 0x40000000' % R.vPF)
    a('s_cmp_lt_u32 s%d, 81' % t2)
    a('s_cbranch_scc1 PK_SET')
    a('s_mov_b32 s%d, 0' % (R.sSRC + 2))
    a('s_mov_b32 s%d, 0' % (R.sDST + 2))
    for r in (R.sSO, R.sDO, R.sSLO, R.sSHI, R.sDHI): a('s_mov_b32 s%d, 0' % r)
    a.label('PK_SET')
    a('v_mov_b32 v%d, 0' % R.vCS)

def touch(a):
    a('buffer_load_dword v%d, v%d, s[96:99], 0 offen' % (R.vPW, R.vPF))

def load(a, st, hi_code):
    if not NOLD: a('buffer_load_dwordx4 v[%d:%d], v%d, s[%d:%d], s%d offen' % (R.vSET[st], R.vSET[st] + 3, R.vPS, R.sSRC, R.sSRC + 3, R.sSO))
    t = T[1]
    hi_code(a)
    a('s_cselect_b32 s%d, s%d, s%d' % (t, R.sSHI, R.sSLO))
    a('s_add_u32 s%d, s%d, s%d' % (R.sSO, R.sSO, t))

def partA(a, st, hi_code, last_code=None):
    d = R.vDAT
    def ld():
        if last_code: last_code(a)
        load(a, st, hi_code)
    if NODS: return [ld]
    if TIMEW:
        def tw():
            a('s_memtime s[96:97]'); a('s_waitcnt lgkmcnt(0)')
            a('s_waitcnt vmcnt(3)')
            a('s_memtime s[98:99]'); a('s_waitcnt lgkmcnt(0)')
            a('s_sub_u32 s100, s98, s96')
            a('s_add_u32 s%d, s%d, s100' % (72 + 2 * st, 72 + 2 * st))
            a('s_max_u32 s70, s70, s100')
        return [tw, lambda: a('ds_write_b128 v%d, v[%d:%d]' % (R.vPW, R.vSET[st], R.vSET[st] + 3)),
            lambda: a('ds_read_b64_tr_b16 v[%d:%d], v%d' % (d, d + 1, R.vPR)),
            lambda: a('ds_read_b64_tr_b16 v[%d:%d], v%d offset:512' % (d + 2, d + 3, R.vPR)),
            ld]
    return [lambda: a('ds_write_b128 v%d, v[%d:%d]' % (R.vPW, R.vSET[st], R.vSET[st] + 3)),
            lambda: a('ds_read_b64_tr_b16 v[%d:%d], v%d' % (d, d + 1, R.vPR)),
            lambda: a('ds_read_b64_tr_b16 v[%d:%d], v%d offset:512' % (d + 2, d + 3, R.vPR)),
            ld]

def partB(a, hi_code):
    d = R.vDAT
    out = []
    for r in range(0 if NODOT else 4):
        out.append(lambda r=r: a('v_dot2_f32_bf16 v%d, v%d, v%d, v%d' % (R.vCS, d + r, R.vONE, R.vCS)))
    if not NOST: out.append(lambda: a('buffer_store_dwordx4 v[%d:%d], v%d, s[%d:%d], s%d offen %s' % (d, d + 3, R.vPD, R.sDST, R.sDST + 3, R.sDO, PMOD)))
    def adv():
        u = T[2]
        hi_code(a)
        a('s_cselect_b32 s%d, s%d, 256' % (u, R.sDHI))
        a('s_add_u32 s%d, s%d, s%d' % (R.sDO, R.sDO, u))
    out.append(adv)
    return out

def finish(a, vLANE, vt):
    a('v_lshlrev_b32 v%d, 2, v%d' % (vt, vLANE))
    a('buffer_store_dword v%d, v%d, s[%d:%d], s%d offen' % (R.vCS, vt, R.sCS, R.sCS + 3, R.sCSO))

def dma_issue(a, hi_code):
    a('s_mov_b32 m0, s%d' % R.sSCR)
    t = T[1]
    hi_code(a)
    a('buffer_load_dwordx4 v%d, s[%d:%d], s%d offen lds' % (R.vPS, R.sSRC, R.sSRC + 3, R.sSO), tag='pk')
    a('s_cselect_b32 s%d, s%d, s%d' % (t, R.sSHI, R.sSLO))
    a('s_add_u32 s%d, s%d, s%d' % (R.sSO, R.sSO, t))

def dmaA(a):
    d = R.vDAT
    return [lambda: a.wait_vm('pk'),
            lambda: a('ds_read_b64_tr_b16 v[%d:%d], v%d' % (d, d + 1, R.vPR)),
            lambda: a('ds_read_b64_tr_b16 v[%d:%d], v%d offset:512' % (d + 2, d + 3, R.vPR))]

def dmaB(a, src_hi, dst_hi, last_code=None):
    d = R.vDAT
    out = []
    for r in range(4):
        out.append(lambda r=r: a('v_dot2_f32_bf16 v%d, v%d, v%d, v%d' % (R.vCS, d + r, R.vONE, R.vCS)))
    def nxt():
        if last_code: last_code(a)
        dma_issue(a, src_hi)
    out.append(nxt)
    out.append(lambda: a('buffer_store_dwordx4 v[%d:%d], v%d, s[%d:%d], s%d offen %s' % (d, d + 3, R.vPD, R.sDST, R.sDST + 3, R.sDO, PMOD)))
    def adv():
        u = T[2]
        dst_hi(a)
        a('s_cselect_b32 s%d, s%d, 256' % (u, R.sDHI))
        a('s_add_u32 s%d, s%d, s%d' % (R.sDO, R.sDO, u))
    out.append(adv)
    return out
```

```python
import sys, importlib
sys.path.insert(0, 'gen')
HDR = open('sequential_preLN__grouped_kv_mqa__glu_gated_bilinear__prompt.s.ref').read().split('; Override launch geometry')[0]
def build(parts, path):
    out = HDR
    for t, d, (g, b, l), n in parts:
        out += '; @launch kernel=%s grid=(%d,1,1) block=(%d,1,1) lds=%d\n' % (n, g, b, l)
    out += '.amdgcn_target "amdgcn-amd-amdhsa--gfx950"\n.text\n'
    for t, d, _, n in parts: out += t
    out += '.section .rodata,"a"\n'
    for t, d, _, n in parts: out += d
    open(path, 'w').write(out)
if __name__ == '__main__':
    import common
    if '--stamps' in sys.argv:
        common.STAMPS = True; sys.argv.remove('--stamps')
    import k1b as k1, k2, k3b as k3, f1a as f1, f2a as f2, ff, pk
    for arg in list(sys.argv):
        if '=' in arg and '.' in arg.split('=')[0]:
            mod, rest = arg.split('.', 1); var, val = rest.split('=')
            mod = {"k1": "k1b", "k3": "k3b", "f1": "f1a", "f2": "f2a"}.get(mod, mod); setattr(sys.modules[mod], var, eval(val)); sys.argv.remove(arg)
    FUSEFF = '--ff' in sys.argv
    if FUSEFF:
        sys.argv.remove('--ff')
        import ff, pk
        pk.PAIRMAJ = True
    parts = []
    t, d, g = k1.gen_k1(); parts.append((t, d, g, 'k1_kernel'))
    t, d, g = k2.gen_k2(); parts.append((t, d, g, 'k2_kernel'))
    t, d, g = k3.gen_k3(); parts.append((t, d, g, 'k3_kernel'))
    if FUSEFF:
        t, d, g = ff.gen_ff(); parts.append((t, d, g, 'ff_kernel'))
        HDR += '; layout: PAIRMAJ\n'
    else:
        t, d, g = f1.gen_f1(); parts.append((t, d, g, 'f1_kernel'))
        t, d, g = f2.gen_f2(); parts.append((t, d, g, 'f2_kernel'))
    if not f2.FUSE and not FUSEFF:
        t, d, g = f2.gen_red(); parts.append((t, d, g, 'red_kernel'))
    build(parts, sys.argv[1] if len(sys.argv) > 1 else 'dev.s')
```
